```python
import torch

def _softmax(x, axis=-1):
    return torch.softmax(x, dim=axis)
def _gelu(x):
    return torch.nn.functional.gelu(x, approximate="tanh")
def _silu(x):
    return torch.nn.functional.silu(x)
def _sigmoid(x):
    return torch.sigmoid(x)
def _layernorm(x, axis=-1, eps=1e-5):
    m = x.mean(dim=axis, keepdim=True)
    v = x.var(dim=axis, keepdim=True, unbiased=False)
    return (x - m) / torch.sqrt(v + eps)
def _scatter_add(tgt, idx, src, axis=0):
    return tgt.clone().index_add_(axis, idx, src)
def _segment_sum(src, seg, n):
    out = torch.zeros((n,) + src.shape[1:], dtype=src.dtype)
    return out.index_add_(0, seg, src)
def _pad(x, pw):
    flat = tuple(v for pair in reversed(pw) for v in pair)
    return torch.nn.functional.pad(x, flat)

kernel_name = 'parallel_sum__ssm_conv_s4__dense_activation_squared_relu__prompt'

def setup_inputs():

    _w = (lambda a: (lambda t: t.to(torch.bfloat16) if t.is_floating_point() else t)(torch.as_tensor(a)))
    def _A_setup():
        B, L, D, N = 1, 2048, 512, 128
        A_re = -(lambda _x: torch.exp(torch.as_tensor(_x)))((lambda *s: torch.randn(*s, dtype=torch.bfloat16) * 3.2)(D, N))
        A_im = torch.pi * (lambda *s: torch.randn(*s, dtype=torch.bfloat16) * 0.2)(D, N)
        B_re = (lambda *s: torch.randn(*s, dtype=torch.bfloat16) * 0.4)(D, N)
        B_im = (lambda *s: torch.randn(*s, dtype=torch.bfloat16) * 0.4)(D, N)
        C_re = (lambda *s: torch.randn(*s, dtype=torch.bfloat16) * 0.4)(D, N)
        C_im = (lambda *s: torch.randn(*s, dtype=torch.bfloat16) * 0.4)(D, N)
        log_dt = (lambda *s: torch.randn(*s, dtype=torch.bfloat16) * 0.2)(D) * 0.5 - 4.0
        Dskip = (lambda *s: torch.randn(*s, dtype=torch.bfloat16) * 0.4)(D)
        return {
            "u": _w((lambda *s: torch.randn(*s, dtype=torch.bfloat16) * 0.05)(B, L, D)),
            "A_re": _w(A_re),
            "A_im": _w(A_im),
            "B_re": _w(B_re),
            "B_im": _w(B_im),
            "C_re": _w(C_re),
            "C_im": _w(C_im),
            "log_dt": _w(log_dt),
            "Dskip": _w(Dskip),
        }
    _A_in = _A_setup()

    def _B_setup():
        B, S, D, F = 1, 2048, 512, 1376
        return {
            "x": _w((lambda *s: torch.randn(*s, dtype=torch.bfloat16) * 0.05)(B, S, D)),
            "w1": _w((lambda *s: torch.randn(*s, dtype=torch.bfloat16) * 0.05)(D, F)),
            "b1": _w((lambda *s: torch.randn(*s, dtype=torch.bfloat16) * 0.2)(F)),
            "w2": _w((lambda *s: torch.randn(*s, dtype=torch.bfloat16) * 0.05)(F, D)),
            "b2": _w((lambda *s: torch.randn(*s, dtype=torch.bfloat16) * 0.8)(D)),
        }
    _B_in = _B_setup()

    return {
        "A_u": _A_in["u"],
        "A_A_re": _A_in["A_re"],
        "A_A_im": _A_in["A_im"],
        "A_B_re": _A_in["B_re"],
        "A_B_im": _A_in["B_im"],
        "A_C_re": _A_in["C_re"],
        "A_C_im": _A_in["C_im"],
        "A_log_dt": _A_in["log_dt"],
        "A_Dskip": _A_in["Dskip"],
        "B_x": _B_in["x"],
        "B_w1": _B_in["w1"],
        "B_b1": _B_in["b1"],
        "B_w2": _B_in["w2"],
        "B_b2": _B_in["b2"],
    }

def reference(A_u, A_A_re, A_A_im, A_B_re, A_B_im, A_C_re, A_C_im, A_log_dt, A_Dskip, B_x, B_w1, B_b1, B_w2, B_b2):
    def _A_ref(u, A_re, A_im, B_re, B_im, C_re, C_im, log_dt, Dskip):
        Bsz, L, D = u.shape
        dt = torch.exp(log_dt)[:, None]
        A = A_re + 1j * A_im
        Bc = B_re + 1j * B_im
        Cc = C_re + 1j * C_im
        logdA = dt * A
        dB = dt * Bc
        l = (lambda x, dt: x.to(dt))(torch.arange(L), A_re.dtype)
        P = torch.exp(logdA[:, :, None] * l[None, None, :])
        K = torch.einsum("dn,dnl,dn->dl", Cc, P, dB).real
        L2 = 2 * L
        Kp = _pad(K, ((0, 0), (0, L)))
        up = (lambda x, *d: x.permute(*d))(u, 0, 2, 1)
        up = _pad(up, ((0, 0), (0, 0), (0, L)))
        Kf = (lambda x, axes=(-2,-1): torch.fft.rfft2(x.float(), dim=axes))(Kp[:, None, :], axes=(-2, -1))
        Uf = (lambda x, axes=(-2,-1): torch.fft.rfft2(x.float(), dim=axes))(up[:, :, None, :], axes=(-2, -1))
        Yf = Uf * Kf[None, :, :, :]
        y = (lambda x, s, axes=(-2,-1): torch.fft.irfft2(x, s=s, dim=axes).to(torch.bfloat16))(Yf, (1, L2), axes=(-2, -1))[:, :, 0, :L]
        y = (lambda x, *d: x.permute(*d))(y, 0, 2, 1) + u * Dskip[None, None, :]
        return y

    def _B_ref(x, w1, b1, w2, b2):
        h = torch.einsum("bsd,df->bsf", x, w1) + b1
        zero = torch.zeros_like(h)
        r = torch.where(h > zero, h, zero)
        h = r * r
        out = torch.einsum("bsf,fd->bsd", h, w2) + b2
        return out

    x = A_u
    xn = _layernorm(x, axis=-1)
    return x + _A_ref(xn, A_A_re, A_A_im, A_B_re, A_B_im, A_C_re, A_C_im, A_log_dt, A_Dskip) + _B_ref(xn, B_w1, B_b1, B_w2, B_b2)
```

```python
import re

REG_RE = re.compile(r'(?<![\w.])([vsa])(?:(\d+)|\[(\d+):(\d+)\])(?![\w])')

def regs_of(tok):
    out = []
    for m in REG_RE.finditer(tok):
        f = m.group(1)
        if m.group(2) is not None:
            out.append((f, int(m.group(2))))
        else:
            out += [(f, k) for k in range(int(m.group(3)), int(m.group(4)) + 1)]
    for name in ("vcc", "exec", "m0"):
        if re.search(r'(?<![\w])' + name + r'(_lo|_hi)?(?![\w])', tok):
            out.append((name, 0))
    return out

def split_ops(s):
    ops, depth, cur = [], 0, ""
    for ch in s:
        if ch in "[(": depth += 1
        if ch in "])": depth -= 1
        if ch == "," and depth == 0:
            ops.append(cur.strip()); cur = ""
        else:
            cur += ch
    if cur.strip(): ops.append(cur.strip())
    return ops

TRANS = ("v_exp_f32", "v_log_f32", "v_rcp_f32", "v_rsq_f32", "v_sqrt_f32", "v_sin_f32", "v_cos_f32")

class Ins:
    __slots__ = ("text", "mn", "ops", "mods", "wr", "rd", "kind", "passes", "srcc")
    def __init__(self, text):
        self.text = text
        t = text.split(";")[0].strip()
        parts = t.split(None, 1)
        self.mn = parts[0]
        rest = parts[1] if len(parts) > 1 else ""
        ops = split_ops(rest)
        self.mods = ""
        if ops:
            last = ops[-1]
            m = re.match(r'^(\S+(?:\[[^\]]*\])?)\s+(.*)$', last)
            if m and not last.startswith("hwreg") and not last.startswith("vmcnt") and not last.startswith("lgkmcnt"):
                ops[-1] = m.group(1); self.mods = m.group(2)
        self.ops = ops
        mn = self.mn
        self.passes = 0; self.srcc = []
        R = [regs_of(o) for o in ops]
        wr, rd = [], []
        if mn.startswith("v_mfma"):
            self.kind = "mfma"
            self.passes = 8 if "32x32x16" in mn else 4
            wr = R[0]; rd = R[1] + R[2] + R[3]; self.srcc = R[3]
        elif mn.startswith("v_cmp"):
            self.kind = "valu"; wr = R[0]; rd = sum(R[1:], [])
        elif mn in ("v_readfirstlane_b32", "v_readlane_b32"):
            self.kind = "valu"; wr = R[0]; rd = sum(R[1:], [])
        elif mn.startswith("v_permlane"):
            self.kind = "valu"; wr = R[0] + R[1]; rd = R[0] + R[1]
        elif mn.startswith("v_"):
            self.kind = "valu"; wr = list(R[0]); rd = sum(R[1:], [])
            if mn.startswith(("v_add_co", "v_addc_co", "v_sub_co", "v_subrev_co")):
                wr = R[0] + R[1]; rd = sum(R[2:], [])
            if mn.startswith(("v_fmac", "v_dot2c", "v_writelane")) or "_dpp" in mn or "row_" in self.mods or "quad_perm" in self.mods:
                rd = rd + R[0]
            if mn.startswith("v_cndmask") and len(ops) == 3:
                rd = rd + [("vcc", 0)]
        elif mn.startswith("ds_"):
            self.kind = "ds"
            if mn.startswith(("ds_read", "ds_bpermute", "ds_permute", "ds_swizzle")):
                wr = R[0]; rd = sum(R[1:], [])
            else:
                rd = sum(R, [])
        elif mn.startswith(("buffer_", "global_")):
            self.kind = "vmem"
            if mn in ("buffer_inv", "buffer_wbl2"):
                pass
            elif "lds" in self.mods.split() or "_lds_" in mn:
                rd = sum(R, []) + [("m0", 0)]
            elif "_load" in mn:
                wr = R[0]; rd = sum(R[1:], [])
            else:
                rd = sum(R, [])
        elif mn.startswith("s_"):
            self.kind = "salu"
            if mn.startswith(("s_cmp", "s_cbranch", "s_branch", "s_waitcnt", "s_barrier", "s_nop", "s_endpgm", "s_setprio", "s_sleep", "s_bitcmp")):
                rd = sum(R, [])
            elif mn.endswith("saveexec_b64"):
                wr = R[0] + [("exec", 0)]; rd = sum(R[1:], []) + [("exec", 0)]
            else:
                wr = R[0] if R else []; rd = sum(R[1:], [])
        else:
            raise ValueError("unknown instruction: " + text)
        self.wr, self.rd = wr, rd
    def is_dpp(self):
        return "_dpp" in self.mn or "row_" in self.mods or "quad_perm" in self.mods or "wave_" in self.mods
    def store_data(self):
        if self.kind == "vmem" and ("store_dwordx4" in self.mn or "store_dwordx3" in self.mn):
            o = self.ops[0] if self.mn.startswith("buffer") else self.ops[1]
            return regs_of(o)
        return []

def states(ins):
    if ins.mn == "s_nop":
        return int(ins.ops[0], 0) + 1
    return 1

def vreg(r): return r[0] in ("v", "a")
def sreg(r): return r[0] in ("s", "vcc")

def need(prev, cur):
    n = 0
    pw = set(prev.wr); cr = set(cur.rd); cw = set(cur.wr)
    if prev.kind == "valu":
        vw = {r for r in pw if vreg(r)}; sw = {r for r in pw if sreg(r)}
        if cur.kind == "mfma" and vw & cr: n = max(n, 2)
        if cur.kind == "valu":
            if cur.is_dpp() and vw & cr: n = max(n, 2)
            if cur.mn.startswith("v_permlane") and vw & cr: n = max(n, 2)
            if cur.mn in ("v_readfirstlane_b32", "v_readlane_b32") and vw & cr: n = max(n, 1)
            if sw & cr: n = max(n, 2)
            if cur.mn in ("v_readlane_b32", "v_writelane_b32") and sw & set(regs_of(cur.ops[2])): n = max(n, 4)
            if prev.mn in TRANS and cur.mn not in TRANS and vw & (cr | cw): n = max(n, 1)
            if ("op_sel" in prev.mods and not prev.mn.startswith("v_pk_")) and vw & (cr | cw): n = max(n, 1)
        if cur.kind == "vmem" and sw & cr: n = max(n, 5)
        if cur.kind == "salu" and sw & cr: n = max(n, 1)
        if cur.kind == "salu" and cur.mn.startswith("s_cbranch_vcc") and ("vcc", 0) in pw: n = max(n, 5)
    if prev.kind == "mfma":
        big = prev.passes == 8
        if cur.kind == "mfma":
            ab = set(regs_of(cur.ops[1]) + regs_of(cur.ops[2]))
            if pw & ab: n = max(n, 12 if big else 8)
            c = set(cur.srcc)
            if pw & c:
                if c == pw and cur.passes == prev.passes: pass
                else: n = max(n, 10 if big else 6)
            if (pw & cw) and not (pw & c): n = max(n, 12 if big else 8)
        else:
            if pw & (cr | cw): n = max(n, 12 if big else 8)
            if cur.kind == "valu" and set(prev.srcc) & cw: n = max(n, 7 if big else 3)
    if prev.kind == "salu" and ("m0", 0) in pw:
        if cur.kind == "vmem" and ("m0", 0) in cr: n = max(n, 1)
    if prev.kind == "vmem":
        sd = set(prev.store_data())
        if sd & cw: n = max(n, 2)
    return n

WINDOW = 20

def hazard_pass(lines):
    out = []; hist = []
    inserted = 0
    for ln in lines:
        t = ln.split(";")[0].strip()
        if not t or t.endswith(":") or t.startswith("."):
            out.append(ln); continue
        ins = Ins(ln.strip())
        req = 0; dist = 0
        for p in reversed(hist):
            k = need(p, ins)
            if k > dist: req = max(req, k - dist)
            dist += states(p)
            if dist >= WINDOW: break
        while req > 0:
            k = min(req, 16)
            nop = Ins(f"s_nop {k-1}")
            out.append(f"    s_nop {k-1}"); hist.append(nop); req -= k; inserted += 1
        out.append(ln); hist.append(ins)
        if len(hist) > 40: hist = hist[-30:]
    return out, inserted

class Stream:
    def __init__(self, name):
        self.name = name; self.L = []
        self.vm = []
        self.lg = []
        self.vm_done = 0; self.lg_done = 0
        self.bars = []
    def __call__(self, s):
        for ln in s.strip("\n").split("\n"):
            ln = ln.strip()
            if not ln: continue
            self.L.append(("" if ln.endswith(":") else "    ") + ln)
    def vmem(self, s, tag=None):
        self(s); self.vm.append(tag)
    def lds(self, s, tag=None):
        self(s); self.lg.append(tag)
    def _n(self, lst, tag):
        idx = max(i for i, t in enumerate(lst) if t == tag)
        return len(lst) - 1 - idx, idx + 1
    def wait_vm(self, tag, extra=""):
        n, upto = self._n(self.vm, tag)
        if upto <= self.vm_done: return
        n = min(n, 63)
        self(f"s_waitcnt vmcnt({n})"); self.vm_done = len(self.vm) - n
    def wait_vm_all(self):
        self("s_waitcnt vmcnt(0)"); self.vm_done = len(self.vm)
    def wait_lg(self, tag):
        n, upto = self._n(self.lg, tag)
        if upto <= self.lg_done: return
        n = min(n, 15)
        self(f"s_waitcnt lgkmcnt({n})"); self.lg_done = len(self.lg) - n
    def wait_lg_all(self):
        self("s_waitcnt lgkmcnt(0)"); self.lg_done = len(self.lg)
    def barrier(self, name):
        self(f"s_barrier ; {name}"); self.bars.append(name)
```

```python
import sys, struct
from asmlib import Stream, hazard_pass

KNAME = "parallel_sum__ssm_conv_s4__dense_activation_squared_relu__prompt_kernel"

WS_NONCE = 0
WS_STATS = 0x1000
WS_XNT   = 0x10000
WS_Y     = 0x500000
WS_H     = 0x900000
WS_DBG   = 0xF00000
WS_SIZE  = 0x1000000 + 0x1000000
OOB      = 0x7fff0000

SLOT1 = 28672
KC    = 114688; KCOPY = 2624; KCSZ = 4*KCOPY
SEC_E = 2176; SEC_O = 2384
ESCR  = 135680
P1BUF = 152064; P1ROW = 1040
UT    = 152064; UTSZ = (272 + 2048 + 16)*2
MISC  = 161408
LDS_BYTES = 163840
SLOT2 = 16384
def slot2(j):
    if j <= 6: return j*SLOT2
    if j == 7: return KC
    if j == 8: return KC + SLOT2
    return (j-9)*SLOT2
XCH = 2*SLOT2
TT  = 3*SLOT2
TTROW = 272

sU, sAre, sAim, sBre, sBim, sCre, sCim, sLdt = 4, 6, 8, 10, 12, 14, 16, 18
sDsk, sW1, sB1, sW2, sB2, sOut, sDbg, sWs = 20, 24, 26, 28, 30, 32, 34, 36
SU, SW1, SW2, SWS, SOUT = "s[40:43]", "s[44:47]", "s[48:51]", "s[52:55]", "s[56:59]"
sWave, sXcd, sI, sN, sTagHi, sTagLo = 60, 61, 62, 63, 64, 65
sT0, sTB, sR0, sF0, sG1ok, sD0, sR2, sC2 = 66, 67, 68, 69, 70, 71, 72, 73
sA, sB, sC, sD, sE, sF, sG, sH = 74, 75, 76, 77, 78, 79, 80, 81
sXoff, sWoff, sM = 82, 83, 84
sH0, sH1 = 85, 86
sRetry = 87
sP0, sP1 = 88, 90
sHW, sCH, sNH = 92, 93, 94
sStamp = 96

def f32(x): return "0x%08x" % struct.unpack("<I", struct.pack("<f", x))[0]
def sp(n): return f"s[{n}:{n+1}]"
def vr(a, n): return f"v[{a}:{a+n-1}]" if n > 1 else f"v{a}"

class Opt:
    dumpK = False
    stop = None
    stamps = False
    s1split = False
OPT = Opt()

def stamp(S, idx):
    if not OPT.stamps: return
    S(f"s_memrealtime {sp(sStamp)}")
    S("s_waitcnt lgkmcnt(0)")
    S.lg_done = len(S.lg)
    S(f"v_mov_b32 v254, s{sStamp}")
    S(f"s_lshl_b32 s98, s2, 3")
    S(f"s_add_u32 s98, s98, s{sWave}")
    S(f"s_lshl_b32 s98, s98, 7")
    S(f"s_add_u32 s98, s98, {WS_DBG + idx*4}")
    S(f"s_mov_b64 s[100:101], exec")
    S(f"s_mov_b64 exec, 1")
    S.vmem(f"buffer_store_dword v254, off, {SWS}, s98", "stamp")
    S(f"s_mov_b64 exec, s[100:101]")

def prologue(S):
    S(f"""
    s_cmp_ge_u32 s2, 256
    s_cbranch_scc1 L_end
    s_load_dwordx16 s[4:19], s[0:1], 0
    s_load_dwordx16 s[20:35], s[0:1], 64
    s_load_dwordx2 s[36:37], s[0:1], 128
    v_mov_b32 v1, v0
    v_lshrrev_b32 v3, 6, v0
    v_and_b32 v0, 63, v0
    v_readfirstlane_b32 s{sWave}, v3
    v_lshlrev_b32 v2, 4, v0
    s_and_b32 s{sXcd}, s2, 7
    s_lshr_b32 s{sI}, s2, 3
    s_lshl_b32 s{sA}, s{sXcd}, 5
    s_add_u32 s{sTB}, s{sA}, s{sI}
    s_lshl_b32 s{sT0}, s{sTB}, 3
    s_lshr_b32 s{sA}, s{sXcd}, 1
    s_lshl_b32 s{sA}, s{sA}, 2
    s_and_b32 s{sB}, s{sI}, 3
    s_add_u32 s{sA}, s{sA}, s{sB}
    s_lshl_b32 s{sR0}, s{sA}, 7
    s_and_b32 s{sA}, s{sXcd}, 1
    s_lshl_b32 s{sA}, s{sA}, 3
    s_lshr_b32 s{sC}, s{sI}, 2
    s_add_u32 s{sA}, s{sA}, s{sC}
    s_mul_i32 s{sF0}, s{sA}, 96
    s_cmp_lt_u32 s{sA}, 15
    s_cselect_b32 s{sG1ok}, 1, 0
    s_lshl_b32 s{sD0}, s{sTB}, 1
    s_lshl_b32 s{sA}, s{sXcd}, 8
    s_lshl_b32 s{sB}, s{sB}, 6
    s_add_u32 s{sR2}, s{sA}, s{sB}
    s_lshl_b32 s{sC2}, s{sC}, 6
    s_waitcnt lgkmcnt(0)
    s_mov_b32 s40, s{sU}
    s_mov_b32 s41, s{sU+1}
    s_mov_b32 s42, {2048*512*2}
    s_mov_b32 s43, 0x20000
    s_mov_b32 s44, s{sW1}
    s_mov_b32 s45, s{sW1+1}
    s_mov_b32 s46, {512*1376*2}
    s_mov_b32 s47, 0x20000
    s_mov_b32 s48, s{sW2}
    s_mov_b32 s49, s{sW2+1}
    s_mov_b32 s50, {512*1376*2}
    s_mov_b32 s51, 0x20000
    s_mov_b32 s52, s{sWs}
    s_mov_b32 s53, s{sWs+1}
    s_mov_b32 s54, {WS_SIZE}
    s_mov_b32 s55, 0x20000
    s_mov_b32 s56, s{sOut}
    s_mov_b32 s57, s{sOut+1}
    s_mov_b32 s58, {2048*512*2}
    s_mov_b32 s59, 0x20000
    """)

def first_loads(S):
    S.vmem(f"buffer_load_dword v3, off, {SWS}, 0 sc1", "nonce")
    S(f"s_add_u32 s{sA}, s{sT0}, s{sWave}")
    S(f"s_lshl_b32 s{sA}, s{sA}, 10")
    S.vmem(f"buffer_load_dwordx4 v[4:7], v2, {SU}, s{sA} offen", "xrow")

def dma_setup(S):
    S(f"""
    v_lshrrev_b32 v33, 3, v0
    v_lshlrev_b32 v33, 10, v33
    v_and_b32 v34, 7, v0
    v_lshrrev_b32 v35, 4, v0
    v_xor_b32 v36, v34, v35
    v_lshl_add_u32 v240, v36, 4, v33
    v_xor_b32 v36, 4, v36
    v_lshl_add_u32 v241, v36, 4, v33
    s_mov_b32 s{sA}, 0x15555556
    s_movk_i32 s{sB}, 2752
    """)
    for b in range(3):
        S(f"""
        v_add_u32 v33, {64*b}, v0
        v_mul_hi_u32 v34, v33, s{sA}
        v_mul_u32_u24 v35, 12, v34
        v_sub_u32 v35, v33, v35
        v_bfe_u32 v36, v34, 3, 1
        v_lshlrev_b32 v36, 1, v36
        v_xor_b32 v35, v35, v36
        v_lshlrev_b32 v35, 4, v35
        v_mad_u32_u24 v{242+b}, v34, s{sB}, v35
        """)
    S(f"""
    s_lshl_b32 s{sA}, s{sR0}, 10
    s_lshl_b32 s{sB}, s{sF0}, 1
    s_cmp_eq_u32 s{sG1ok}, 1
    s_cselect_b32 s{sXoff}, s{sA}, {OOB}
    s_cselect_b32 s{sWoff}, s{sB}, {OOB}
    """)

def dma_x(S, c, j_sreg_mul, joff, tag):
    slot = (c % 4)*SLOT1
    S(f"s_add_u32 s{sA}, s{j_sreg_mul}, {joff}")
    S(f"s_lshl_b32 s{sB}, s{sA}, 10")
    S(f"s_add_u32 m0, s{sB}, {slot}")
    S(f"s_lshl_b32 s{sA}, s{sA}, 13")
    S(f"s_add_u32 s{sA}, s{sA}, {c*128}")
    S(f"s_add_u32 s{sA}, s{sA}, s{sXoff}")
    S.vmem(f"buffer_load_dwordx4 v{240 + (joff & 1)}, {SU}, s{sA} offen lds", tag)

def dma_w(S, csreg, cconst, asreg, tag):
    if csreg is None: S(f"s_mov_b32 s{sC}, {cconst}")
    else: S(f"s_add_u32 s{sC}, s{csreg}, {cconst}")
    S(f"s_lshl_b32 s{sD}, s{sC}, 2")
    S(f"s_add_u32 s{sD}, s{sD}, s{asreg}")
    S(f"s_mul_i32 s{sD}, s{sD}, {16*2752}")
    S(f"s_add_u32 s{sD}, s{sD}, s{sWoff}")
    S(f"s_and_b32 s{sC}, s{sC}, 3")
    S(f"s_mul_i32 s{sC}, s{sC}, {SLOT1}")
    S(f"s_mul_i32 s{sE}, s{asreg}, 3072")
    S(f"s_add_u32 s{sC}, s{sC}, s{sE}")
    S(f"s_add_u32 s{sC}, s{sC}, 16384")
    for b in range(3):
        S(f"s_add_u32 m0, s{sC}, {b*1024}")
        S.vmem(f"buffer_load_dwordx4 v{242+b}, {SW1}, s{sD} offen lds", tag)

def initial_dma(S, role):
    S(f"s_lshl_b32 s{sF}, s{sWave}, 1")
    S(f"s_lshr_b32 s{sG}, s{sWave}, 2")
    S(f"s_and_b32 s{sH}, s{sWave}, 3")
    wt = lambda m: f"w{2*m + (0 if role == 'C' else 1)}"
    for c in range(4):
        dma_x(S, c, sF, 0, f"x{c}"); dma_x(S, c, sF, 1, f"x{c}")
        if c in (0, 2):
            dma_w(S, sG, c, sH, wt(c//2))

def nonce_setup(S):
    S.wait_vm("nonce")
    S(f"""
    v_readfirstlane_b32 s{sN}, v3
    s_mul_i32 s{sN}, s{sN}, 1664525
    s_add_u32 s{sN}, s{sN}, 1013904223
    s_and_b32 s{sTagLo}, s{sN}, 0xffff
    s_lshl_b32 s{sTagHi}, s{sN}, 16
    """)

def wave_sum(S, v, sdst):
    for m in ("row_shr:1", "row_shr:2", "row_shr:4", "row_shr:8"):
        S(f"v_add_f32_dpp v{v}, v{v}, v{v} {m} row_mask:0xf bank_mask:0xf")
    S(f"v_add_f32_dpp v{v}, v{v}, v{v} row_bcast:15 row_mask:0xa bank_mask:0xf")
    S(f"v_add_f32_dpp v{v}, v{v}, v{v} row_bcast:31 row_mask:0xc bank_mask:0xf")
    S(f"v_readlane_b32 s{sdst}, v{v}, 63")

def wave_max(S, v, sdst):
    for m in ("row_shr:1", "row_shr:2", "row_shr:4", "row_shr:8"):
        S(f"v_max_f32_dpp v{v}, v{v}, v{v} {m} row_mask:0xf bank_mask:0xf")
    S(f"v_max_f32_dpp v{v}, v{v}, v{v} row_bcast:15 row_mask:0xa bank_mask:0xf")
    S(f"v_max_f32_dpp v{v}, v{v}, v{v} row_bcast:31 row_mask:0xc bank_mask:0xf")
    S(f"v_readlane_b32 s{sdst}, v{v}, 63")

def p1_part1(S, last_tag):
    S.wait_vm(last_tag)
    for j in range(4):
        S(f"v_lshlrev_b32 v{8+2*j}, 16, v{4+j}")
        S(f"v_and_b32 v{9+2*j}, 0xffff0000, v{4+j}")
    S("""
    v_add_f32 v16, v8, v9
    v_add_f32 v17, v10, v11
    v_add_f32 v18, v12, v13
    v_add_f32 v19, v14, v15
    v_add_f32 v16, v16, v17
    v_add_f32 v18, v18, v19
    v_add_f32 v16, v16, v18
    """)
    wave_sum(S, 16, sA)
    S(f"v_mov_b32 v17, {f32(1/512)}")
    S(f"v_mul_f32 v17, s{sA}, v17")
    for j in range(8):
        S(f"v_sub_f32 v{24+j}, v{8+j}, v17")
    S("v_mul_f32 v16, v24, v24")
    for j in range(1, 8):
        S(f"v_fmac_f32 v16, v{24+j}, v{24+j}")
    wave_sum(S, 16, sA)
    S(f"""
    v_cvt_pk_bf16_f32 v20, v17, v17
    v_and_b32 v20, 0xffff0000, v20
    v_mov_b32 v18, {f32(1/512)}
    v_mul_f32 v18, s{sA}, v18
    v_cvt_pk_bf16_f32 v18, v18, v18
    v_and_b32 v18, 0xffff0000, v18
    v_add_f32 v18, {f32(1e-5)}, v18
    v_cvt_pk_bf16_f32 v18, v18, v18
    v_and_b32 v18, 0xffff0000, v18
    v_sqrt_f32 v19, v18
    v_rcp_f32 v21, v19
    v_fma_f32 v23, -v19, v19, v18
    v_mul_f32 v21, 0.5, v21
    v_fmac_f32 v19, v23, v21
    v_cvt_pk_bf16_f32 v19, v19, v19
    v_and_b32 v19, 0xffff0000, v19
    v_rcp_f32 v22, v19
    v_fma_f32 v23, -v19, v22, 1.0
    v_fmac_f32 v22, v23, v22
    v_mul_f32 v23, v20, v22
    """)
    for j in range(8):
        S(f"v_fma_f32 v{24+j}, v{8+j}, v22, -v23")
    for j in range(4):
        S(f"v_cvt_pk_f16_f32 v{4+j}, v{24+2*j}, v{25+2*j}")
    S(f"s_mul_i32 s{sA}, s{sWave}, {P1ROW}")
    S(f"s_add_u32 s{sA}, s{sA}, {P1BUF}")
    S(f"v_add_u32 v16, s{sA}, v2")
    S.lds("ds_write_b128 v16, v[4:7]", "p1w")
    S.wait_lg_all()

def p1_part2(S):
    S(f"""
    v_mov_b32 v4, v20
    v_mov_b32 v5, s{sN}
    v_mov_b32 v6, v22
    v_mov_b32 v7, s{sN}
    s_add_u32 s{sA}, s{sT0}, s{sWave}
    s_lshl_b32 s{sA}, s{sA}, 4
    s_add_u32 s{sA}, s{sA}, {WS_STATS}
    s_mov_b64 exec, 1
    """)
    S.vmem(f"buffer_store_dwordx4 v[4:7], off, {SWS}, s{sA} sc1", "statst")
    S("s_mov_b64 exec, -1")
    S(f"""
    v_and_b32 v8, 1, v1
    v_mul_u32_u24 v8, {4*P1ROW}, v8
    v_and_b32 v9, 0x1fe, v1
    v_add_u32 v8, v8, v9
    v_add_u32 v8, {P1BUF}, v8
    """)
    for k in range(2):
        for j in range(4):
            S.lds(f"ds_read_u16 v{12+4*k+j}, v8 offset:{j*P1ROW + 512*k}", f"p1r{k}")
    S(f"v_lshlrev_b32 v9, 4, v1")
    S(f"s_lshl_b32 s{sA}, s{sTB}, 14")
    S(f"s_add_u32 s{sA}, s{sA}, {WS_XNT}")
    S(f"s_add_u32 s{sB}, s{sA}, 8192")
    for k in range(2):
        S.wait_lg(f"p1r{k}")
        for j in range(4):
            S(f"v_or_b32 v{12+4*k+j}, s{sTagHi}, v{12+4*k+j}")
        S.vmem(f"buffer_store_dwordx4 v[{12+4*k}:{15+4*k}], v9, {SWS}, s{sA if k == 0 else sB} offen sc1", "xntst")

ACC1 = 64
S1A  = 112
ONES = 124
XF = (128, 160); WF = (144, 176)

def h_offsets(S):
    S(f"""
    s_and_b32 s{sA}, s{sWave}, 1
    s_lshr_b32 s{sB}, s{sWave}, 1
    s_lshr_b32 s{sC}, s{sR0}, 5
    s_lshl_b32 s{sA}, s{sA}, 1
    s_add_u32 s{sC}, s{sC}, s{sA}
    s_mul_i32 s{sC}, s{sC}, 86
    s_lshr_b32 s{sD}, s{sF0}, 4
    s_mul_i32 s{sB}, s{sB}, 3
    s_add_u32 s{sD}, s{sD}, s{sB}
    s_add_u32 s{sC}, s{sC}, s{sD}
    s_lshl_b32 s{sC}, s{sC}, 10
    s_add_u32 s{sH0}, s{sC}, {WS_H}
    s_add_u32 s{sH1}, s{sH0}, {86*1024}
    s_mov_b32 s{sM}, s{sD}
    """)

def h_soff(S, alpha, pp, dst):
    S(f"s_add_u32 s{dst}, s{sM}, {alpha}")
    S(f"s_cmp_lt_u32 s{dst}, 86")
    S(f"s_cselect_b32 s{dst}, s{sH1 if pp else sH0}, {OOB}")

def h_clear(S):
    for j in range(4): S(f"v_mov_b32 v{8+j}, 0x80008000")
    for a in range(3):
        for pp in range(2):
            h_soff(S, a, pp, sA)
            S.vmem(f"buffer_store_dwordx4 v[8:11], v2, {SWS}, s{sA} offen offset:{a*1024} sc1", "clear")

def g1_addr(S):
    S(f"""
    s_and_b32 s{sA}, s{sWave}, 1
    s_lshr_b32 s{sB}, s{sWave}, 1
    v_and_b32 v33, 15, v0
    v_lshrrev_b32 v34, 4, v0
    v_lshrrev_b32 v35, 1, v33
    v_xor_b32 v35, v35, v34
    v_lshlrev_b32 v35, 4, v35
    v_lshl_add_u32 v35, v33, 7, v35
    s_lshl_b32 s{sC}, s{sA}, 13
    v_add_u32 v24, s{sC}, v35
    v_xor_b32 v25, 64, v24
    v_lshrrev_b32 v35, 2, v33
    v_lshl_add_u32 v35, v34, 3, v35
    v_mul_u32_u24 v35, 192, v35
    v_bfe_u32 v36, v0, 1, 1
    v_lshl_add_u32 v35, v36, 4, v35
    v_and_b32 v36, 1, v0
    v_lshl_add_u32 v35, v36, 3, v35
    s_mul_i32 s{sC}, s{sB}, 96
    s_add_u32 s{sC}, s{sC}, 16384
    v_add_u32 v35, s{sC}, v35
    v_and_b32 v36, 1, v34
    v_lshlrev_b32 v36, 5, v36
    v_add_u32 v26, v35, v36
    v_sub_u32 v27, v35, v36
    """)
    S(f"""
    s_cmp_eq_u32 s{sB}, 1
    s_cselect_b64 vcc, -1, 0
    v_cndmask_b32 v35, v26, v27, vcc
    v_cndmask_b32 v27, v27, v26, vcc
    v_mov_b32 v26, v35
    """)

def g1_reads(S, c, s, st, tag):
    slot = (c % 4)*SLOT1
    xa = 37 + s; wa = (39, 40)
    if s == 0:
        S(f"v_add_u32 v37, {slot}, v24")
        S(f"v_add_u32 v38, {slot}, v25")
        S(f"v_add_u32 v39, {slot}, v26")
        S(f"v_add_u32 v40, {slot}, v27")
    for a in range(3):
        for h in range(2):
            off = (32*s + 4*h)*192 + 32*a
            S.lds(f"ds_read_b64_tr_b16 {vr(WF[st]+4*a+2*h, 2)}, v{wa[a & 1]} offset:{off}", tag)
    for tt in range(4):
        S.lds(f"ds_read_b128 {vr(XF[st]+4*tt, 4)}, v{xa} offset:{tt*2048}", tag)

def g1_mfmas(S, st, first):
    for a in range(3):
        for tt in range(4):
            acc = ACC1 + 16*a + 4*tt
            c = "0" if first else vr(acc, 4)
            S(f"v_mfma_f32_16x16x32_bf16 {vr(acc,4)}, {vr(WF[st]+4*a,4)}, {vr(XF[st]+4*tt,4)}, {c}")
        acc = S1A + 4*a
        c = "0" if first else vr(acc, 4)
        S(f"v_mfma_f32_16x16x32_bf16 {vr(acc,4)}, {vr(WF[st]+4*a,4)}, {vr(ONES,4)}, {c}")

def gemm1(S):
    g1_addr(S)
    for j in range(4): S(f"v_mov_b32 v{ONES+j}, 0x3f803f80")
    S.wait_vm("x0"); S.wait_vm("w0")
    S.barrier("G0")
    g1_reads(S, 0, 0, 0, "r0_0")
    for c in range(8):
        g1_reads(S, c, 1, 1, f"r{c}_1")
        S.wait_lg(f"r{c}_0")
        g1_mfmas(S, 0, c == 0)
        if c == 4:
            g1_epi_loads(S)
        S.wait_lg(f"r{c}_1")
        if c < 3:
            S.wait_vm(f"x{c+1}")
            if c+1 == 2: S.wait_vm("w2")
        S.barrier(f"G{c+1}")
        if c < 7:
            g1_reads(S, c+1, 0, 0, f"r{c+1}_0")
        g1_mfmas(S, 1, False)

STAT = 188; B1R = 204; B1F = 210
def g1_epi_loads(S):
    S(f"""
    s_and_b32 s{sA}, s{sWave}, 1
    s_lshl_b32 s{sA}, s{sA}, 6
    s_add_u32 s{sA}, s{sA}, s{sR0}
    s_lshl_b32 s{sA}, s{sA}, 4
    s_add_u32 s{sE}, s{sA}, {WS_STATS}
    v_and_b32 v41, 15, v0
    v_lshlrev_b32 v41, 4, v41
    """)
    for tt in range(4):
        S.vmem(f"buffer_load_dwordx4 {vr(STAT+4*tt,4)}, v41, {SWS}, s{sE} offen offset:{tt*256} sc1", "stat")
    S(f"""
    s_lshr_b32 s{sB}, s{sWave}, 1
    s_mul_i32 s{sB}, s{sB}, 48
    s_add_u32 s{sB}, s{sB}, s{sF0}
    v_lshrrev_b32 v42, 4, v0
    v_lshlrev_b32 v42, 2, v42
    v_add_u32 v42, s{sB}, v42
    """)
    for a in range(3):
        S(f"v_add_u32 v43, {16*a}, v42")
        S(f"v_min_u32 v43, 1372, v43")
        S(f"v_lshlrev_b32 v43, 1, v43")
        S.vmem(f"global_load_dwordx2 {vr(B1R+2*a,2)}, v43, {sp(sB1)}", "b1")

def check_stats(S, lab):
    S(f"s_mov_b32 s{sRetry}, 0")
    S.wait_vm("stat")
    S(f"{lab}_chk:")
    for tt in range(4):
        b = STAT + 4*tt
        S(f"v_xor_b32 v44, s{sN}, v{b+1}")
        S(f"v_xor_b32 v45, s{sN}, v{b+3}")
        if tt == 0: S(f"v_or_b32 v46, v44, v45")
        else: S(f"v_or3_b32 v46, v46, v44, v45")
    S(f"""
    v_cmp_ne_u32 vcc, 0, v46
    s_cbranch_vccz {lab}_ok
    s_add_u32 s{sRetry}, s{sRetry}, 1
    s_cmp_ge_u32 s{sRetry}, 4096
    s_cbranch_scc1 {lab}_ok
    """)
    for tt in range(4):
        S(f"buffer_load_dwordx4 {vr(STAT+4*tt,4)}, v41, {SWS}, s{sE} offen offset:{tt*256} sc1")
    S("s_waitcnt vmcnt(0)")
    S(f"s_branch {lab}_chk")
    S(f"{lab}_ok:")

def g1_epilogue(S):
    check_stats(S, "L_st")
    S.wait_vm("b1")
    for a in range(3):
        for h in range(2):
            S(f"v_lshlrev_b32 v{B1F+4*a+2*h}, 16, v{B1R+2*a+h}")
            S(f"v_and_b32 v{B1F+4*a+2*h+1}, 0xffff0000, v{B1R+2*a+h}")
    for a in range(3):
        for pp in range(2):
            for q in range(2):
                tt = 2*pp + q
                acc = ACC1 + 16*a + 4*tt
                m = STAT + 4*tt; r = m + 2
                for h in range(2):
                    A = vr(acc+2*h, 2)
                    S(f"v_pk_fma_f32 {A}, {vr(S1A+4*a+2*h,2)}, {vr(m,2)}, {A} op_sel_hi:[1,0,1] neg_lo:[0,1,0] neg_hi:[0,1,0]")
                    S(f"v_pk_fma_f32 {A}, {A}, {vr(r,2)}, {vr(B1F+4*a+2*h,2)} op_sel_hi:[1,0,1]")
                for j in range(4):
                    S(f"v_max_f32 v{acc+j}, 0, v{acc+j}")
                for h in range(2):
                    A = vr(acc+2*h, 2)
                    S(f"v_pk_mul_f32 {A}, {A}, {A}")
                base = 48 + 4*((2*a+pp) & 1)
                S(f"v_cvt_pk_bf16_f32 v{base+2*q}, v{acc}, v{acc+1}")
                S(f"v_cvt_pk_bf16_f32 v{base+2*q+1}, v{acc+2}, v{acc+3}")
            base = 48 + 4*((2*a+pp) & 1)
            S(f"v_permlane16_swap_b32 v{base}, v{base+2}")
            S(f"v_permlane16_swap_b32 v{base+1}, v{base+3}")
            h_soff(S, a, pp, sA)
            S.vmem(f"buffer_store_dwordx4 {vr(base,4)}, v2, {SWS}, s{sA} offen offset:{a*1024} sc1", "hst")

FK = 64; CACC = 196; BRING = 216; GF = 232
VF = 32; DW = 48; BANDE = 56; BANDO = 60

def conv_setup(S):
    S(f"""
    s_lshr_b32 s{sA}, s{sWave}, 1
    v_and_b32 v33, 15, v0
    v_lshrrev_b32 v34, 4, v0
    s_mul_i32 s{sB}, s{sA}, {UTSZ}
    s_add_u32 s{sB}, s{sB}, {UT+16}
    v_lshlrev_b32 v35, 5, v33
    v_lshl_add_u32 v35, v34, 4, v35
    v_add_u32 v24, s{sB}, v35
    v_sub_u32 v35, 3, v33
    v_and_b32 v35, 3, v35
    s_mul_i32 s{sB}, s{sA}, {KCSZ}
    s_add_u32 s{sB}, s{sB}, {KC}
    v_mul_u32_u24 v36, {KCOPY}, v35
    v_add_u32 v36, s{sB}, v36
    v_add_u32 v35, v35, v33
    v_lshlrev_b32 v37, 3, v34
    v_sub_u32 v37, v37, v35
    v_add_u32 v37, 27, v37
    v_lshl_add_u32 v25, v37, 1, v36
    v_lshlrev_b32 v37, 2, v34
    v_sub_u32 v37, v37, v35
    v_add_u32 v37, 19, v37
    v_lshl_add_u32 v26, v37, 1, v36
    s_lshl_b32 s{sB}, s{sA}, 2
    s_add_u32 s{sB}, s{sB}, {MISC}
    v_mov_b32 v27, s{sB}
    """)
    for (dst, h) in ((BANDE, 4), (BANDO, 3)):
        S(f"v_add_u32 v35, {8-h}, v33")
        S(f"v_mov_b32 v36, {(1 << (2*h+1)) - 1}")
        S(f"v_lshlrev_b32 v36, v35, v36")
        S(f"v_lshlrev_b32 v35, 3, v34")
        S(f"v_lshrrev_b32 v36, v35, v36")
        for j in range(4):
            S(f"v_bfe_u32 v35, v36, {2*j}, 1")
            S(f"v_bfe_u32 v37, v36, {2*j+1}, 1")
            S(f"v_lshl_or_b32 v35, v37, 16, v35")
            S(f"v_mul_u32_u24 v{dst+j}, 0x3c00, v35")

def conv_far(S, svals, pairs):
    S.lds(f"ds_read_b32 v28, v27", "sig")
    taus = [t for s in svals for t in (2*s, 2*s+1)]
    first = set()
    for s in svals:
        for (name, Z, band, vf, sec) in (("E", 24, BANDE, VF + 4*s, SEC_E), ("O", 16, BANDO, VF + 8 + 4*s, SEC_O)):
            for q in range(2):
                tau = 2*s + q
                S.lds(f"ds_read_b128 {vr(BRING+4*q,4)}, v24 offset:{528 + 512*tau - 2*Z}", f"U{name}{tau}")
            for q in range(2):
                S.wait_lg(f"U{name}{2*s+q}")
                S(f"v_mfma_f32_16x16x32_f16 {vr(DW+4*q,4)}, {vr(BRING+4*q,4)}, {vr(band,4)}, 0")
            for q in range(2):
                S(f"v_cvt_pk_f16_f32 v{vf+2*q}, v{DW+4*q}, v{DW+4*q+1}")
                S(f"v_cvt_pk_f16_f32 v{vf+2*q+1}, v{DW+4*q+2}, v{DW+4*q+3}")
    n = 0
    for (cl, s, delta) in pairs:
        for (name, vf, sec) in (("E", VF + 4*s, SEC_E), ("O", VF + 8 + 4*s, SEC_O)):
            g = GF + 4*(n % 4); n += 1
            off = sec + 32*(7 - delta)
            S.lds(f"ds_read_b64 {vr(g,2)}, v26 offset:{off}", f"G{n}")
            S.lds(f"ds_read_b64 {vr(g+2,2)}, v26 offset:{off+32}", f"G{n}")
            S.wait_lg(f"G{n}")
            acc = CACC + 4*cl
            c = vr(acc, 4) if cl in first else "0"
            first.add(cl)
            S(f"v_mfma_f32_16x16x32_f16 {vr(acc,4)}, {vr(vf,4)}, {vr(g,4)}, {c}")
    return first

def conv_near(S, tiles, first):
    kmax = lambda c: min(32, 8*c + 8)
    xi_hi = 8*tiles[-1]; xi_lo = min(8*c - kmax(c) for c in tiles)
    steps = list(range(xi_hi, xi_lo - 1, -1))
    D = 2
    def issue(i):
        xi = steps[i]
        kn = xi_hi - xi
        if kn <= 32:
            S.lds(f"ds_read_b64 {vr(FK+4*kn,2)}, v25 offset:{64*(32-kn)}", f"s{i}")
            S.lds(f"ds_read_b64 {vr(FK+4*kn+2,2)}, v25 offset:{64*(32-kn)+8}", f"s{i}")
        S.lds(f"ds_read_b128 {vr(BRING+4*(i % 4),4)}, v24 offset:{64*(xi+8)}", f"s{i}")
    for i in range(min(D, len(steps))): issue(i)
    first = set(first)
    for i, xi in enumerate(steps):
        if i + D < len(steps): issue(i + D)
        S.wait_lg(f"s{i}")
        for cl, c in enumerate(tiles):
            k = 8*c - xi
            if 0 <= k <= kmax(c):
                acc = CACC + 4*cl
                cc = vr(acc, 4) if cl in first else "0"
                first.add(cl)
                S(f"v_mfma_f32_16x16x32_f16 {vr(acc,4)}, {vr(FK+4*k,4)}, {vr(BRING+4*(i % 4),4)}, {cc}")

def conv_store(S, tiles):
    S(f"""
    s_lshr_b32 s{sA}, s{sWave}, 1
    s_add_u32 s{sA}, s{sA}, s{sD0}
    s_lshl_b32 s{sA}, s{sA}, 13
    s_add_u32 s{sA}, s{sA}, {WS_Y}
    v_and_b32 v33, 15, v0
    v_lshrrev_b32 v34, 4, v0
    v_lshlrev_b32 v33, 6, v33
    v_lshl_add_u32 v33, v34, 4, v33
    v_mov_b32 v34, 0xffff0000
    """)
    for cl, c in enumerate(tiles):
        acc = CACC + 4*cl
        for j in range(4): S(f"v_mul_f32 v{acc+j}, v28, v{acc+j}")
        S(f"v_cvt_pk_bf16_f32 v35, v{acc}, v{acc+1}")
        S(f"v_cvt_pk_bf16_f32 v36, v{acc+2}, v{acc+3}")
        S(f"v_lshl_or_b32 v{acc}, v35, 16, s{sTagLo}")
        S(f"v_and_b32 v35, v34, v35")
        S(f"v_or_b32 v{acc+1}, s{sTagLo}, v35")
        S(f"v_lshl_or_b32 v{acc+2}, v36, 16, s{sTagLo}")
        S(f"v_and_b32 v36, v34, v36")
        S(f"v_or_b32 v{acc+3}, s{sTagLo}, v36")
        S(f"s_add_u32 s{sB}, s{sA}, {c*1024}")
        S.vmem(f"buffer_store_dwordx4 {vr(acc,4)}, v33, {SWS}, s{sB} offen sc1", "yst")

def conv(S):
    conv_setup(S)
    S(f"s_bitcmp1_b32 s{sWave}, 0")
    S(f"s_cbranch_scc1 L_convB")
    save_lg = (list(S.lg), S.lg_done); save_vm = (list(S.vm), S.vm_done)
    first = conv_far(S, [0], [(4, 0, 4)])
    conv_near(S, [0, 1, 2, 3, 4], first)
    conv_store(S, [0, 1, 2, 3, 4])
    S.wait_lg_all()
    S("s_branch L_convE")
    S("L_convB:")
    vmA = list(S.vm)
    S.lg, S.lg_done = save_lg; S.vm, S.vm_done = save_vm
    first = conv_far(S, [0, 1], [(0, 0, 5), (1, 0, 6), (1, 1, 4), (2, 0, 7), (2, 1, 5)])
    conv_near(S, [5, 6, 7], first)
    conv_store(S, [5, 6, 7])
    S(f"s_mov_b32 s{sB}, {OOB}")
    for _ in range(2):
        S.vmem(f"buffer_store_dwordx4 {vr(CACC,4)}, v33, {SWS}, s{sB} offen sc1", "yst")
    S.wait_lg_all()
    assert len(S.vm) == len(vmA)
    S("L_convE:")

ACC2 = 64; HR = 96; BF2 = (160, 168); XT = 176; B2R = 180; YR = 184; PR = 200
RD = 16
def gemm2_setup(S):
    S(f"""
    s_lshr_b32 s{sA}, s{sWave}, 1
    s_and_b32 s{sB}, s{sWave}, 1
    s_lshr_b32 s{sC}, s{sR2}, 5
    s_add_u32 s{sC}, s{sC}, s{sB}
    s_mul_i32 s{sC}, s{sC}, 86
    s_mul_i32 s{sD}, s{sA}, 43
    s_add_u32 s{sC}, s{sC}, s{sD}
    s_lshl_b32 s{sC}, s{sC}, 10
    s_add_u32 s{sH0}, s{sC}, {WS_H}
    v_lshrrev_b32 v33, 5, v0
    v_lshlrev_b32 v33, 3, v33
    v_bfe_u32 v34, v0, 2, 2
    v_add_u32 v33, v33, v34
    v_lshlrev_b32 v33, 7, v33
    v_bfe_u32 v34, v0, 4, 1
    v_lshlrev_b32 v34, 1, v34
    v_bfe_u32 v35, v0, 1, 1
    v_add_u32 v34, v34, v35
    s_lshl_b32 s{sD}, s{sA}, 2
    v_or_b32 v34, s{sD}, v34
    v_bfe_u32 v35, v0, 3, 1
    v_lshlrev_b32 v35, 2, v35
    v_xor_b32 v34, v34, v35
    v_lshl_add_u32 v33, v34, 4, v33
    v_and_b32 v34, 1, v0
    v_lshl_add_u32 v33, v34, 3, v33
    s_lshl_b32 s{sD}, s{sA}, 13
    v_add_u32 v24, s{sD}, v33
    v_xor_b32 v25, 64, v24
    """)

def xtile_load(S):
    S(f"""
    v_lshrrev_b32 v30, 3, v1
    v_add_u32 v30, s{sR2}, v30
    v_lshlrev_b32 v30, 10, v30
    v_and_b32 v31, 7, v1
    v_lshlrev_b32 v31, 4, v31
    s_lshl_b32 s{sA}, s{sC2}, 1
    v_add3_u32 v30, v30, v31, s{sA}
    """)
    S.vmem(f"buffer_load_dwordx4 {vr(XT,4)}, v30, {SU}, 0 offen", "xt")

def h_load(S, f, tag=True):
    r = HR + 4*(f % RD)
    if f % 4 == 0 or not tag:
        S(f"s_add_u32 s{sE}, s{sH0}, {(f//4)*4096}")
    txt = f"buffer_load_dwordx4 {vr(r,4)}, v2, {SWS}, s{sE} offen offset:{(f % 4)*1024} sc1"
    if tag: S.vmem(txt, f"h{f}")
    else: S(txt)

def g2_reads(S, j, s, st, tag):
    if s == 0:
        S(f"v_add_u32 v26, {slot2(j)}, v24")
        S(f"v_add_u32 v27, {slot2(j)}, v25")
    for lc in range(2):
        for h in range(2):
            S.lds(f"ds_read_b64_tr_b16 {vr(BF2[st]+4*lc+2*h,2)}, v{26+lc} offset:{(16*s+4*h)*128}", tag)

def y_loads(S, tag=True):
    for q in range(4):
        txt = f"buffer_load_dwordx4 {vr(YR+4*q,4)}, v28, {SWS}, s{sG} offen offset:{q*32} sc1"
        if tag: S.vmem(txt, "y")
        else: S(txt)

def gemm2(S):
    gemm2_setup(S)
    xtile_load(S)
    S(f"""
    s_lshr_b32 s{sA}, s{sWave}, 1
    s_lshl_b32 s{sA}, s{sA}, 5
    s_add_u32 s{sA}, s{sA}, s{sC2}
    v_and_b32 v28, 31, v0
    v_add_u32 v28, s{sA}, v28
    v_lshlrev_b32 v29, 1, v28
    """)
    S.vmem(f"global_load_ushort v{B2R}, v29, {sp(sB2)}", "b2")
    S(f"""
    v_lshlrev_b32 v28, 13, v28
    v_lshrrev_b32 v29, 5, v0
    v_lshl_add_u32 v28, v29, 4, v28
    s_and_b32 s{sB}, s{sWave}, 1
    s_lshl_b32 s{sB}, s{sB}, 5
    s_add_u32 s{sB}, s{sB}, s{sR2}
    s_lshl_b32 s{sB}, s{sB}, 2
    s_add_u32 s{sG}, s{sB}, {WS_Y}
    """)
    for f in range(RD): h_load(S, f)
    S.barrier("W0")
    g2_reads(S, 0, 0, 0, "b0_0")
    f = 0; st = 0
    for j in range(11):
        ns = 4 if j < 10 else 3
        S.wait_vm(f"h{f+ns-1}")
        lab = f"L_h{j}"
        S(f"s_mov_b32 s{sRetry}, 0")
        S(f"{lab}_chk:")
        regs = [HR + 4*((f+k) % RD) + e for k in range(ns) for e in range(4)]
        S(f"v_or3_b32 v33, v{regs[0]}, v{regs[1]}, v{regs[2]}")
        k = 3
        while k < len(regs):
            if k + 1 < len(regs):
                S(f"v_or3_b32 v33, v33, v{regs[k]}, v{regs[k+1]}"); k += 2
            else:
                S(f"v_or_b32 v33, v33, v{regs[k]}"); k += 1
        S(f"""
        v_and_b32 v33, 0x80008000, v33
        v_cmp_ne_u32 vcc, 0, v33
        s_cbranch_vccz {lab}_ok
        s_add_u32 s{sRetry}, s{sRetry}, 1
        s_cmp_ge_u32 s{sRetry}, 4096
        s_cbranch_scc1 {lab}_ok
        """)
        S(f"s_add_u32 s{sF}, s{sH0}, {f*1024}")
        for k in range(ns):
            S(f"buffer_load_dwordx4 {vr(HR+4*((f+k) % RD),4)}, v2, {SWS}, s{sF} offen offset:{k*1024} sc1")
        S("s_waitcnt vmcnt(0)")
        S(f"s_branch {lab}_chk")
        S(f"{lab}_ok:")
        for s in range(ns):
            if s < ns - 1:
                g2_reads(S, j, s+1, st ^ 1, f"b{j}_{s+1}")
                S.wait_lg(f"b{j}_{s}")
            else:
                S.wait_lg(f"b{j}_{s}")
                S.barrier(f"W{j+1}")
                if j < 10: g2_reads(S, j+1, 0, st ^ 1, f"b{j+1}_0")
            for lc in range(2):
                acc = ACC2 + 16*lc
                c = "0" if f == 0 else vr(acc, 16)
                S(f"v_mfma_f32_32x32x16_bf16 {vr(acc,16)}, {vr(HR+4*(f % RD),4)}, {vr(BF2[st]+4*lc,4)}, {c}")
            if f + RD < 43: h_load(S, f + RD)
            if f + RD == 43: y_loads(S)
            f += 1; st ^= 1

def final_C(S):
    S(f"s_lshl_b32 s{sA}, s{sWave}, 12")
    S(f"s_add_u32 s{sA}, s{sA}, {XCH}")
    S(f"v_add_u32 v33, s{sA}, v2")
    for q in range(4):
        S.lds(f"ds_write_b128 v33, {vr(ACC2+16+4*q,4)} offset:{q*1024}", "xw")
    S.wait_lg_all()
    S.barrier("FX")
    S(f"s_xor_b32 s{sA}, s{sWave}, 2")
    S(f"s_lshl_b32 s{sA}, s{sA}, 12")
    S(f"s_add_u32 s{sA}, s{sA}, {XCH}")
    S(f"v_add_u32 v33, s{sA}, v2")
    for q in range(4):
        S.lds(f"ds_read_b128 {vr(PR+4*q,4)}, v33 offset:{q*1024}", "xr")
    S.wait_vm("y")
    S(f"s_mov_b32 s{sRetry}, 0")
    S("L_y_chk:")
    for k in range(16):
        S(f"v_xor_b32 v34, s{sTagLo}, v{YR+k}")
        if k == 0: S("v_mov_b32 v35, v34")
        else: S("v_or_b32 v35, v35, v34")
    S(f"""
    v_and_b32 v35, 0xffff, v35
    v_cmp_ne_u32 vcc, 0, v35
    s_cbranch_vccz L_y_ok
    s_add_u32 s{sRetry}, s{sRetry}, 1
    s_cmp_ge_u32 s{sRetry}, 4096
    s_cbranch_scc1 L_y_ok
    """)
    y_loads(S, tag=False)
    S("s_waitcnt vmcnt(0)")
    S("s_branch L_y_chk")
    S("L_y_ok:")
    S.wait_vm("b2")
    S(f"v_lshlrev_b32 v{B2R}, 16, v{B2R}")
    S.wait_lg("xr")
    for k in range(16):
        S(f"v_and_b32 v{YR+k}, 0xffff0000, v{YR+k}")
        S(f"v_add_f32 v{ACC2+k}, v{ACC2+k}, v{PR+k}")
        S(f"v_add_f32 v{YR+k}, v{YR+k}, v{B2R}")
        S(f"v_add_f32 v{ACC2+k}, v{ACC2+k}, v{YR+k}")
    S(f"""
    s_and_b32 s{sA}, s{sWave}, 1
    s_mul_i32 s{sA}, s{sA}, {32*TTROW}
    s_lshr_b32 s{sB}, s{sWave}, 1
    s_lshl_b32 s{sB}, s{sB}, 7
    s_add_u32 s{sA}, s{sA}, s{sB}
    s_add_u32 s{sA}, s{sA}, {TT}
    v_lshrrev_b32 v33, 5, v0
    v_mul_u32_u24 v33, {4*TTROW}, v33
    v_and_b32 v34, 31, v0
    v_lshl_add_u32 v33, v34, 2, v33
    v_add_u32 v33, s{sA}, v33
    """)
    for k in range(16):
        S.lds(f"ds_write_b32 v33, v{ACC2+k} offset:{(8*(k >> 2) + (k & 3))*TTROW}", "tw")
    S.wait_lg_all()

def final_all(S):
    S.barrier("FT")
    S(f"""
    v_lshrrev_b32 v33, 3, v1
    v_mul_u32_u24 v33, {TTROW}, v33
    v_and_b32 v34, 7, v1
    v_lshl_add_u32 v33, v34, 5, v33
    v_add_u32 v33, {TT}, v33
    """)
    S.lds("ds_read_b128 v[40:43], v33", "tr")
    S.lds("ds_read_b128 v[44:47], v33 offset:16", "tr")
    S.wait_vm("xt")
    for j in range(4):
        S(f"v_lshlrev_b32 v{48+2*j}, 16, v{XT+j}")
        S(f"v_and_b32 v{49+2*j}, 0xffff0000, v{XT+j}")
    S.wait_lg_all()
    for j in range(8): S(f"v_add_f32 v{40+j}, v{40+j}, v{48+j}")
    for j in range(4): S(f"v_cvt_pk_bf16_f32 v{48+j}, v{40+2*j}, v{41+2*j}")
    S.vmem(f"buffer_store_dwordx4 v[48:51], v30, {SOUT}, 0 offen", "out")

LOG2E = 1.4426950408889634
L_HI = struct.unpack("<f", struct.pack("<I", 0x3FB8AA00))[0]
L_LO = LOG2E - L_HI
CC, Z1, Z2, Z4, Z8, Z128 = 16, 18, 20, 22, 24, 26
PA, PB = 28, 30
RR = 40
CV = 80
BE = 96
AE = 112
DD = 128
WA = 144
RA = 152
DP = 172
SIGH = 95

def cmul(S, d, a, b):
    S(f"v_pk_mul_f32 {vr(d,2)}, {vr(a,2)}, {vr(b,2)} op_sel_hi:[0,1]")
    S(f"v_pk_fma_f32 {vr(d,2)}, {vr(a,2)}, {vr(b,2)}, {vr(d,2)} op_sel:[1,1,0] op_sel_hi:[1,0,1] neg_lo:[1,0,0]")

def zpow(S, d, p):
    S(f"v_mul_f32 v34, {f32(p)}, v14")
    S(f"v_mul_f32 v35, {f32(p)}, v15")
    S("v_exp_f32 v34, v34")
    S("v_fract_f32 v35, v35")
    S("v_cos_f32 v36, v35")
    S("v_sin_f32 v37, v35")
    S(f"v_mul_f32 v{d}, v34, v36")
    S(f"v_mul_f32 v{d+1}, v34, v37")

def param_loads(S):
    S(f"""
    s_sub_u32 s{sHW}, s{sWave}, 4
    s_lshr_b32 s{sCH}, s{sHW}, 1
    s_and_b32 s{sNH}, s{sHW}, 1
    s_add_u32 s{sA}, s{sD0}, s{sCH}
    s_lshl_b32 s{sB}, s{sA}, 7
    s_lshl_b32 s{sC}, s{sNH}, 6
    s_add_u32 s{sB}, s{sB}, s{sC}
    v_add_u32 v33, s{sB}, v0
    v_lshlrev_b32 v33, 1, v33
    s_lshl_b32 s{sA}, s{sA}, 1
    v_mov_b32 v34, s{sA}
    """)
    for k, s in enumerate((sAre, sAim, sBre, sBim, sCre, sCim)):
        S.vmem(f"global_load_ushort v{160+k}, v33, {sp(s)}", "par")
    S.vmem(f"global_load_ushort v166, v34, {sp(sLdt)}", "par")
    S.vmem(f"global_load_ushort v167, v34, {sp(sDsk)}", "par")

def code_prefetch(S):
    S(f"""
    s_lshl_b32 s{sA}, s{sI}, 2
    s_add_u32 s{sA}, s{sA}, s{sHW}
    s_and_b32 s{sA}, s{sA}, 31
    s_lshl_b32 s{sA}, s{sA}, 10
    s_min_u32 s{sA}, s{sA}, L_end-{KNAME}-1024
    s_getpc_b64 {sp(sP0)}
    L_pc:
    s_sub_u32 s{sP0}, s{sP0}, L_pc-{KNAME}
    s_subb_u32 s{sP0+1}, s{sP0+1}, 0
    v_add_u32 v35, s{sA}, v2
    """)
    S.vmem(f"global_load_dwordx4 v[168:171], v35, {sp(sP0)}", "pref")

def write_tile(S):
    for i in range(8):
        S.lds(f"ds_write2st64_b32 v{WA+i}, v{CV+i}, v{CV+8+i} offset0:{i} offset1:{i+8}", "ew")

def read_frags(S, dst, tag):
    for s in range(4):
        S.lds(f"ds_read_b128 {vr(dst+4*s,4)}, v{RA+s}", tag)

def kgen_atoms(S):
    S.wait_vm("par")
    for k in range(8): S(f"v_lshlrev_b32 v{160+k}, 16, v{160+k}")
    S(f"""
    v_mul_f32 v34, {f32(L_HI)}, v166
    v_mul_f32 v35, {f32(L_LO*0.6931471805599453)}, v166
    v_exp_f32 v34, v34
    s_nop 0
    v_fmac_f32 v34, v34, v35
    v_cvt_pk_bf16_f32 v34, v34, v34
    v_and_b32 v34, 0xffff0000, v34
    v_mul_f32 v14, v34, v160
    v_mul_f32 v15, v34, v161
    v_mul_f32 v14, {f32(LOG2E)}, v14
    v_mul_f32 v15, {f32(0.15915494309189535)}, v15
    v_mul_f32 v162, v34, v162
    v_mul_f32 v163, v34, v163
    """)
    cmul(S, CC, 164, 162)
    S(f"v_mul_f32 v38, v{CC}, v{CC}")
    S(f"v_fmac_f32 v38, v{CC+1}, v{CC+1}")
    wave_max(S, 38, sA)
    S(f"""
    v_mov_b32 v38, {f32(1e-36)}
    v_max_f32 v38, s{sA}, v38
    v_rsq_f32 v39, v38
    s_nop 0
    v_mul_f32 v38, v38, v39
    v_readfirstlane_b32 s{SIGH}, v38
    v_mul_f32 v{RR}, v{CC}, v39
    v_mul_f32 v{RR+1}, v{CC+1}, v39
    """)
    yield
    S(f"""
    s_lshl_b32 s{sA}, s{sHW}, 12
    s_add_u32 s{sA}, s{sA}, {ESCR}
    v_lshlrev_b32 v33, 2, v0
    """)
    for i in range(8):
        S(f"v_xor_b32 v{WA+i}, {32*i}, v33")
        S(f"v_add_u32 v{WA+i}, s{sA}, v{WA+i}")
    S(f"""
    v_and_b32 v33, 15, v0
    v_lshrrev_b32 v34, 4, v0
    v_and_b32 v35, 7, v33
    v_lshlrev_b32 v35, 1, v35
    v_xor_b32 v35, v35, v34
    v_lshlrev_b32 v35, 4, v35
    v_lshl_add_u32 v35, v33, 8, v35
    """)
    for s in range(4):
        S(f"v_xor_b32 v{RA+s}, {64*s}, v35")
        S(f"v_add_u32 v{RA+s}, s{sA}, v{RA+s}")
    yield
    zpow(S, Z1, 1); zpow(S, Z8, 8)
    yield
    zpow(S, Z128, 128)
    cmul(S, Z2, Z1, Z1); cmul(S, Z4, Z2, Z2)
    yield
    S(f"v_mov_b32 v{CV}, 0x00003c00")
    S(f"v_cvt_pk_f16_f32 v{CV+1}, v{Z8}, v{Z8+1}")
    cur = Z8
    for j in range(2, 16):
        nxt = PA if cur != PA else PB
        cmul(S, nxt, cur, Z8)
        S(f"v_cvt_pk_f16_f32 v{CV+j}, v{nxt}, v{nxt+1}")
        cur = nxt
        if j == 8: yield
    write_tile(S)
    read_frags(S, BE, "be")
    yield
    for i in range(1, 17):
        cmul(S, RR+2*i, RR+2*(i-1), Z128)
        if i == 8: yield
    yield
    def put(row, reg):
        S(f"v_cvt_pk_f16_f32 v{CV+row}, v{reg}, -v{reg+1}")
    def chain(row0, start, mult, n):
        put(row0, start)
        cur = start
        for j in range(1, n):
            nxt = PA if cur != PA else PB
            cmul(S, nxt, cur, mult)
            put(row0+j, nxt)
            cur = nxt
    def tile_mfma(t):
        write_tile(S)
        read_frags(S, AE, f"ae{t}")
        S.wait_lg(f"ae{t}")
        for s in range(4):
            c = "0" if s == 0 else vr(DD+4*t, 4)
            S(f"v_mfma_f32_16x16x32_f16 {vr(DD+4*t,4)}, {vr(AE+4*s,4)}, {vr(BE+4*s,4)}, {c}")
    chain(0, RR, Z1, 8); yield
    chain(8, RR+2, Z1, 8)
    S.wait_lg("be")
    tile_mfma(0); yield
    chain(0, RR+4, Z2, 4); chain(4, RR+6, Z2, 4); yield
    for k in range(4): chain(8+2*k, RR+8+2*k, Z4, 2)
    tile_mfma(1); yield
    for i in range(8): put(i, RR+16+2*i)
    put(8, RR+32)
    for i in range(9, 16): S(f"v_mov_b32 v{CV+i}, 0")
    tile_mfma(2); yield
    S(f"s_cmp_eq_u32 s{sNH}, 1")
    S(f"s_cbranch_scc0 L_kx")
    S(f"v_mov_b32 v34, s{SIGH}")
    S(f"s_mul_i32 s{sA}, s{sCH}, 8192")
    S(f"s_add_u32 s{sA}, s{sA}, {ESCR + 4096}")
    S(f"v_add_u32 v33, s{sA}, v2")
    S(f"v_mov_b32 v35, s{sA}")
    save = (list(S.lg), S.lg_done)
    for t in range(3):
        S(f"ds_write_b128 v33, {vr(DD+4*t,4)} offset:{t*1024}")
    S(f"ds_write_b32 v35, v34 offset:3072")
    S("L_kx:")
    S("s_waitcnt lgkmcnt(0)"); S.lg_done = len(S.lg)
    yield "DX"

def kgen_zero(S):
    S(f"""
    s_mul_i32 s{sA}, s{sCH}, {KCSZ}
    s_add_u32 s{sA}, s{sA}, {KC}
    v_mov_b32 v34, 0
    v_mov_b32 v35, 0
    v_mov_b32 v36, 0
    v_mov_b32 v37, 0
    v_add_u32 v33, s{sA}, v2
    """)
    S(f"s_lshl_b32 s{sB}, s{sNH}, 10")
    S(f"v_add_u32 v33, s{sB}, v33")
    S.lds("ds_write_b128 v33, v[34:37]", "z")
    S(f"v_cmp_gt_u32 vcc, {164-128}, v0")
    S(f"s_cmp_eq_u32 s{sNH}, 0")
    S(f"s_cselect_b64 {sp(sP0)}, -1, 0")
    S(f"s_and_b64 exec, vcc, {sp(sP0)}")
    S.lds("ds_write_b128 v33, v[34:37] offset:2048", "z")
    S("s_mov_b64 exec, -1")

def ut_zero(S):
    S(f"""
    s_mul_i32 s{sA}, s{sCH}, {UTSZ}
    s_add_u32 s{sA}, s{sA}, {UT}
    v_mov_b32 v34, 0
    v_mov_b32 v35, 0
    v_mov_b32 v36, 0
    v_mov_b32 v37, 0
    v_add_u32 v33, s{sA}, v2
    v_cmp_gt_u32 vcc, 34, v0
    s_mov_b64 exec, vcc
    """)
    S.lds("ds_write_b128 v33, v[34:37]", "z")
    S(f"v_cmp_gt_u32 vcc, 2, v0")
    S("s_mov_b64 exec, vcc")
    S.lds(f"ds_write_b128 v33, v[34:37] offset:{(272+2048)*2}", "z")
    S("s_mov_b64 exec, -1")

def kgen_combine(S):
    S(f"s_cmp_eq_u32 s{sNH}, 0")
    S(f"s_cbranch_scc0 L_kc")
    save = (list(S.lg), S.lg_done)
    S(f"""
    s_mul_i32 s{sA}, s{sCH}, 8192
    s_add_u32 s{sA}, s{sA}, {ESCR + 4096}
    v_add_u32 v33, s{sA}, v2
    v_mov_b32 v35, s{sA}
    """)
    for t in range(3):
        S(f"ds_read_b128 {vr(DP+4*t,4)}, v33 offset:{t*1024}")
    S("ds_read_b32 v38, v35 offset:3072")
    S("s_waitcnt lgkmcnt(0)")
    S(f"""
    v_mov_b32 v39, s{SIGH}
    v_and_b32 v34, 0x7fffffff, v167
    v_mul_f32 v34, {f32(1/1024)}, v34
    v_max3_f32 v34, v34, v38, v39
    v_rcp_f32 v35, v34
    s_nop 0
    v_mul_f32 v38, v38, v35
    v_mul_f32 v39, v39, v35
    v_mul_f32 v36, v167, v35
    s_lshl_b32 s{sA}, s{sCH}, 2
    s_add_u32 s{sA}, s{sA}, {MISC}
    v_mov_b32 v37, s{sA}
    ds_write_b32 v37, v34
    """)
    for k in range(12):
        S(f"v_mul_f32 v{DD+k}, v39, v{DD+k}")
        S(f"v_fmac_f32 v{DD+k}, v38, v{DP+k}")
    S(f"""
    v_cmp_eq_u32 vcc, 0, v0
    s_nop 1
    v_cndmask_b32 v36, 0, v36, vcc
    v_add_f32 v{DD}, v{DD}, v36
    s_mul_i32 s{sA}, s{sCH}, {KCSZ}
    s_add_u32 s{sA}, s{sA}, {KC}
    v_and_b32 v33, 15, v0
    v_lshrrev_b32 v34, 4, v0
    """)
    T0, T1, T2 = DD, DD+4, DD+8
    S(f"v_cvt_pk_f16_f32 v40, v{T1}, v{T1+1}")
    S(f"v_cvt_pk_f16_f32 v41, v{T1+2}, v{T1+3}")
    S(f"v_cvt_pk_f16_f32 v42, v{T2}, v{T2+1}")
    S(f"v_cvt_pk_f16_f32 v43, v{T2+2}, v{T2+3}")
    S(f"v_cvt_pk_f16_f32 v44, v{T0+3}, v{T0+2}")
    S(f"v_cvt_pk_f16_f32 v45, v{T0+1}, v{T0}")
    def w16(addr, reg, hi, off):
        S(f"ds_write_b16{'_d16_hi' if hi else ''} v{addr}, v{reg} offset:{off}")
    S(f"""
    v_lshlrev_b32 v35, 8, v34
    v_lshl_add_u32 v35, v33, 3, v35
    v_sub_u32 v35, {1059 - 5 - 128}, v35
    v_lshlrev_b32 v35, 1, v35
    v_add_u32 v35, s{sA}, v35
    v_cmp_le_u32 vcc, 32, v0
    s_mov_b64 exec, vcc
    """)
    for pair, (reg) in enumerate((40, 41)):
        o = 256*(1 - pair)
        for e in range(8):
            w16(35, reg, e < 3, o + 2*e)
    S(f"""
    s_mov_b64 exec, -1
    v_lshlrev_b32 v35, 7, v34
    v_lshl_add_u32 v35, v33, 3, v35
    v_sub_u32 v35, {1059 - 6 - 256}, v35
    v_lshlrev_b32 v35, 1, v35
    v_add_u32 v35, s{sA}, v35
    s_mov_b32 exec_hi, 0
    """)
    seq = [(41, True), (41, False), (41, False), (41, False), (40, True), (40, False), (40, False), (40, False)]
    for e, (reg, hi) in enumerate(seq): w16(35, reg, hi, 2*e)
    S(f"""
    v_lshrrev_b32 v36, 1, v33
    v_lshl_add_u32 v36, v34, 5, v36
    v_and_b32 v37, 1, v33
    v_mul_u32_u24 v38, {SEC_O - SEC_E - 2}, v37
    v_sub_u32 v36, {68 - 24}, v36
    v_lshlrev_b32 v36, 1, v36
    v_add3_u32 v36, v36, v38, s{sA}
    """)
    for r, (reg, hi) in enumerate(((42, False), (42, True), (43, False), (43, True))):
        w16(36, reg, hi, SEC_E + 2*(24 - 8*r))
    S("s_mov_b64 exec, -1")
    S(f"""
    v_readlane_b32 s{sB}, v42, 0
    v_readlane_b32 s{sC}, v42, 32
    v_lshlrev_b32 v35, 1, v0
    v_add_u32 v35, s{sA}, v35
    v_mov_b32 v36, s{sB}
    v_mov_b32 v37, 0
    v_mov_b32 v38, s{sC}
    s_mov_b64 exec, 0x7f
    ds_write_b16 v35, v36 offset:{2*(1059-1028)}
    s_mov_b64 exec, 1
    ds_write_b16 v35, v37 offset:{SEC_E + 2*68}
    ds_write_b16 v35, v38 offset:{SEC_E + 2*4}
    s_mov_b64 exec, -1
    """)
    S(f"""
    v_lshrrev_b32 v35, 1, v34
    v_lshlrev_b32 v35, 7, v35
    v_lshl_add_u32 v35, v33, 3, v35
    v_and_b32 v36, 1, v34
    v_lshl_add_u32 v35, v36, 2, v35
    v_sub_u32 v35, 1056, v35
    v_lshlrev_b32 v35, 1, v35
    v_add_u32 v35, s{sA}, v35
    ds_write_b64 v35, v[44:45]
    L_kc:
    s_waitcnt lgkmcnt(0)
    """)
    S.lg_done = len(S.lg)

def kgen_build(S):
    S(f"""
    s_mul_i32 s{sA}, s{sCH}, {KCSZ}
    s_add_u32 s{sA}, s{sA}, {KC}
    s_lshl_b32 s{sB}, s{sNH}, 10
    s_add_u32 s{sA}, s{sA}, s{sB}
    v_add_u32 v33, s{sA}, v2
    """)
    def rnd(off, tag):
        S.lds(f"ds_read_b128 v[40:43], v33 offset:{off}", tag)
        S.lds(f"ds_read_b64 v[44:45], v33 offset:{off+16}", tag)
        S.wait_lg(tag)
        for i in range(4): S(f"v_alignbit_b32 v{48+i}, v{41+i}, v{40+i}, 16")
        for i in range(4): S(f"v_alignbit_b32 v{52+i}, v{42+i}, v{41+i}, 16")
        S.lds(f"ds_write_b128 v33, v[48:51] offset:{off+KCOPY}", "bw")
        S.lds(f"ds_write2_b32 v56, v41, v42 offset0:0 offset1:1", "bw")
        S.lds(f"ds_write2_b32 v56, v43, v44 offset0:2 offset1:3", "bw")
        S.lds(f"ds_write_b128 v33, v[52:55] offset:{off+3*KCOPY}", "bw")
    S(f"v_add_u32 v56, {2*KCOPY}, v33")
    rnd(0, "br0")
    S(f"v_cmp_gt_u32 vcc, {162-128}, v0")
    S(f"s_cmp_eq_u32 s{sNH}, 0")
    S(f"s_cselect_b64 {sp(sP0)}, -1, 0")
    S(f"s_and_b64 exec, vcc, {sp(sP0)}")
    S(f"s_cbranch_execz L_kb")
    S(f"v_add_u32 v56, 2048, v56")
    save = (list(S.lg), S.lg_done)
    S("ds_read_b128 v[40:43], v33 offset:2048")
    S("ds_read_b64 v[44:45], v33 offset:2064")
    S("s_waitcnt lgkmcnt(0)")
    for i in range(4): S(f"v_alignbit_b32 v{48+i}, v{41+i}, v{40+i}, 16")
    for i in range(4): S(f"v_alignbit_b32 v{52+i}, v{42+i}, v{41+i}, 16")
    S(f"ds_write_b128 v33, v[48:51] offset:{2048+KCOPY}")
    S("ds_write2_b32 v56, v41, v42 offset0:0 offset1:1")
    S("ds_write2_b32 v56, v43, v44 offset0:2 offset1:3")
    S(f"ds_write_b128 v33, v[52:55] offset:{2048+3*KCOPY}")
    S("L_kb:")
    S("s_mov_b64 exec, -1")
    S.wait_lg_all()

XN = 192
def xnt_addr(S):
    S(f"""
    v_subrev_u32 v190, 256, v1
    v_lshrrev_b32 v33, 2, v190
    v_lshlrev_b32 v33, 14, v33
    v_and_b32 v34, 3, v190
    v_lshl_add_u32 v191, v34, 4, v33
    s_lshl_b32 s{sA}, s{sD0}, 5
    s_add_u32 s{sXoff}, s{sA}, {WS_XNT}
    """)
def xnt_loads(S, tag=True):
    for k in range(4):
        S(f"s_add_u32 s{sA}, s{sXoff}, {k*64*16384}")
        txt = f"buffer_load_dwordx4 {vr(XN+4*k,4)}, v191, {SWS}, s{sA} offen sc1"
        if tag: S.vmem(txt, "xnt")
        else: S(txt)

def xnt_finish(S):
    S.wait_vm("xnt")
    S(f"s_mov_b32 s{sRetry}, 0")
    S("L_u_chk:")
    for k in range(16):
        S(f"v_xor_b32 v34, s{sTagHi}, v{XN+k}")
        if k == 0: S("v_mov_b32 v35, v34")
        else: S("v_or_b32 v35, v35, v34")
    S(f"""
    v_and_b32 v35, 0xffff0000, v35
    v_cmp_ne_u32 vcc, 0, v35
    s_cbranch_vccz L_u_ok
    s_add_u32 s{sRetry}, s{sRetry}, 1
    s_cmp_ge_u32 s{sRetry}, 4096
    s_cbranch_scc1 L_u_ok
    """)
    xnt_loads(S, tag=False)
    S("s_waitcnt vmcnt(0)")
    S("s_branch L_u_chk")
    S("L_u_ok:")
    S(f"""
    v_lshrrev_b32 v33, 2, v190
    v_lshlrev_b32 v33, 4, v33
    v_and_b32 v34, 1, v190
    v_lshl_add_u32 v33, v34, 3, v33
    v_bfe_u32 v34, v190, 1, 1
    v_mul_u32_u24 v34, {UTSZ}, v34
    v_add3_u32 v33, v33, v34, s{sWoff}
    s_mov_b32 s{sA}, 0x05040100
    """)
    for k in range(4):
        b = XN + 4*k
        S(f"v_perm_b32 v{b}, v{b+1}, v{b}, s{sA}")
        S(f"v_perm_b32 v{b+1}, v{b+3}, v{b+2}, s{sA}")
        S.lds(f"ds_write_b64 v33, {vr(b,2)} offset:{k*1024}", "uw")
    S.wait_lg_all()

def w2_setup(S):
    S(f"""
    v_lshrrev_b32 v33, 3, v0
    v_lshlrev_b32 v33, 10, v33
    v_and_b32 v34, 7, v0
    v_bfe_u32 v35, v0, 4, 1
    v_lshlrev_b32 v35, 2, v35
    v_xor_b32 v34, v34, v35
    v_lshl_add_u32 v189, v34, 4, v33
    s_lshr_b32 s{sA}, s{sHW}, 1
    s_and_b32 s{sB}, s{sHW}, 1
    s_mul_i32 s{sC}, s{sA}, {688*1024}
    s_lshl_b32 s{sD}, s{sB}, 15
    s_add_u32 s{sC}, s{sC}, s{sD}
    s_lshl_b32 s{sD}, s{sC2}, 1
    s_add_u32 s{sH0}, s{sC}, s{sD}
    s_lshl_b32 s{sA}, s{sA}, 13
    s_lshl_b32 s{sB}, s{sB}, 12
    s_add_u32 s{sH1}, s{sA}, s{sB}
    """)
def w2_dma(S, j):
    S(f"s_add_u32 s{sA}, s{sH0}, {j*65536}")
    for q in range(4):
        S(f"s_add_u32 m0, s{sH1}, {slot2(j) + q*1024}")
        S(f"s_add_u32 s{sB}, s{sA}, {q*8192}")
        S.vmem(f"buffer_load_dwordx4 v189, {SW2}, s{sB} offen lds", f"c{j}")

def mid_dma(S, c):
    S(f"s_lshl_b32 s{sF}, s{sHW}, 2")
    for q in range(4): dma_x(S, c, sF, q, f"x{c}")
    dma_w(S, None, c, sHW, f"x{c}")

def dump_lds(S, off, nbytes, wsoff, stride):
    S(f"s_mul_i32 s{sA}, s2, {stride}")
    S(f"s_add_u32 s{sA}, s{sA}, {wsoff}")
    S(f"v_lshlrev_b32 v33, 4, v1")
    for k in range((nbytes + 4095)//4096):
        S(f"v_add_u32 v34, {off + 4096*k}, v33")
        S(f"ds_read_b128 v[36:39], v34")
        S("s_waitcnt lgkmcnt(0)")
        S(f"s_add_u32 s{sB}, s{sA}, {4096*k}")
        S.vmem(f"buffer_store_dwordx4 v[36:39], v33, {SWS}, s{sB} offen", "dump")
        S("s_waitcnt vmcnt(0)")
    S.vm_done = len(S.vm)

def build_C():
    S = Stream("C")
    S("L_roleC:")
    first_loads(S)
    h_offsets(S)
    S(f"s_cmp_eq_u32 s{sG1ok}, 1")
    S(f"s_cselect_b32 s{sM}, s{sM}, 1000")
    h_clear(S)
    dma_setup(S)
    initial_dma(S, "C")
    nonce_setup(S)
    p1_part1(S, "clear")
    S.barrier("P1")
    p1_part2(S)
    stamp(S, 0)
    gemm1(S)
    stamp(S, 1)
    g1_epilogue(S)
    stamp(S, 2)
    S.barrier("CONV")
    stamp(S, 3)
    if OPT.dumpK: dump_lds(S, KC, 2*KCSZ + 0, 0x1000000, 32768); dump_lds(S, UT, 2*UTSZ, 0x1000000 + 21504, 32768)
    conv(S)
    stamp(S, 4)
    gemm2(S)
    stamp(S, 5)
    final_C(S)
    final_all(S)
    stamp(S, 6)
    S(f"s_or_b32 s{sA}, s2, s{sWave}")
    S(f"s_cmp_eq_u32 s{sA}, 0")
    S("s_cbranch_scc0 L_end")
    S(f"v_mov_b32 v33, s{sN}")
    S("s_mov_b64 exec, 1")
    S(f"buffer_store_dword v33, off, {SWS}, 0 sc1")
    S("s_branch L_end")
    return S

def build_H():
    S = Stream("H")
    S("L_roleH:")
    first_loads(S)
    param_loads(S)
    code_prefetch(S)
    dma_setup(S)
    initial_dma(S, "H")
    nonce_setup(S)
    p1_part1(S, "xrow")
    S.barrier("P1")
    p1_part2(S)
    kgen_zero(S)
    atoms = kgen_atoms(S)
    done = False
    def run(n):
        nonlocal done
        for _ in range(n):
            if done: return
            r = next(atoms)
            if r == "DX": done = True
    S.wait_vm("x0")
    S.barrier("G0")
    plan = {0: 3, 1: 3, 2: 3, 3: 3, 4: 99}
    for c in range(8):
        if 1 <= c <= 4: mid_dma(S, c + 3)
        if c in plan: run(plan[c])
        if c == 5:
            kgen_combine(S)
            xnt_addr(S)
            xnt_loads(S)
        if c == 6:
            kgen_build(S)
        if c == 7:
            S(f"s_mov_b32 s{sWoff}, {UT + 272*2}")
            ut_zero(S)
        if c + 1 <= 7:
            S.wait_vm(f"x{c+1}")
            if c + 1 in (1, 3): S.wait_vm(f"w{c+1}")
        S.wait_lg_all()
        S.barrier(f"G{c+1}")
    assert done
    w2_setup(S)
    xnt_finish(S)
    for j in range(3): w2_dma(S, j)
    S.barrier("CONV")
    for j in range(3, 7): w2_dma(S, j)
    xtile_load(S)
    S.wait_vm("c0")
    S.barrier("W0")
    for j in range(11):
        if j == 0:
            w2_dma(S, 7); w2_dma(S, 8)
        if j == 1: w2_dma(S, 9)
        if j == 2: w2_dma(S, 10)
        if j < 10: S.wait_vm(f"c{j+1}")
        S.barrier(f"W{j+1}")
    S.barrier("FX")
    final_all(S)
    S("s_branch L_end")
    return S

def generate():
    P = Stream("P")
    prologue(P)
    P(f"s_cmp_ge_u32 s{sWave}, 4")
    P("s_cbranch_scc1 L_roleH")
    C = build_C(); H = build_H()
    assert C.bars == H.bars, (C.bars, H.bars)
    lines = P.L + C.L + H.L + ["L_end:", "    s_endpgm"]
    lines, nn = hazard_pass(lines)
    head = open("cdna_kernels/" + KNAME[:-7] + ".s.ref").read().split("; Override launch")[0]
    txt = head + f"; @launch grid=(256,1,1) block=(512,1,1) lds={LDS_BYTES}\n"
    txt += f""".amdgcn_target "amdgcn-amd-amdhsa--gfx950"
.text
.globl {KNAME}
.p2align 8
.type {KNAME},@function
{KNAME}:
""" + "\n".join(lines) + f"""
.section .rodata,"a"
.p2align 6
.amdhsa_kernel {KNAME}
  .amdhsa_next_free_vgpr 256
  .amdhsa_next_free_sgpr 102
  .amdhsa_accum_offset 256
  .amdhsa_group_segment_fixed_size 0
  .amdhsa_kernarg_size 136
  .amdhsa_user_sgpr_count 2
  .amdhsa_user_sgpr_kernarg_segment_ptr 1
  .amdhsa_system_sgpr_workgroup_id_x 1
.end_amdhsa_kernel
"""
    return txt, nn

if __name__ == "__main__":
    out = sys.argv[1] if len(sys.argv) > 1 else "k.s"
    if "stamps" in sys.argv: OPT.stamps = True
    if "dumpK" in sys.argv: OPT.dumpK = True
    txt, nn = generate()
    open(out, "w").write(txt)
    print("written", out, "lines", txt.count("\n"), "nops inserted", nn)
```

```python
import sys, struct
from asmlib import Stream, hazard_pass

KNAME = "parallel_sum__ssm_conv_s4__dense_activation_squared_relu__prompt_kernel"

WS_NONCE = 0
WS_STATS = 0x1000
WS_XNT   = 0x10000
WS_Y     = 0x500000
WS_H     = 0x900000
WS_DBG   = 0xF00000
WS_SIZE  = 0x1000000 + 0x1000000
OOB      = 0x7fff0000

SLOT1 = 28672
KC    = 114688; KCOPY = 2624; KCSZ = 4*KCOPY
SEC_E = 2176; SEC_O = 2384
ESCR  = 135680
P1BUF = 152064; P1ROW = 1040
UT    = 152064; UTSZ = (272 + 2048 + 16)*2
MISC  = 161408
LDS_BYTES = 163840
SLOT2 = 16384
def slot2(j):
    if j <= 6: return j*SLOT2
    if j == 7: return KC
    if j == 8: return KC + SLOT2
    return (j-9)*SLOT2
XCH = 2*SLOT2
TT  = 3*SLOT2
TTROW = 272

sU, sAre, sAim, sBre, sBim, sCre, sCim, sLdt = 4, 6, 8, 10, 12, 14, 16, 18
sDsk, sW1, sB1, sW2, sB2, sOut, sDbg, sWs = 20, 24, 26, 28, 30, 32, 34, 36
SU, SW1, SW2, SWS, SOUT = "s[40:43]", "s[44:47]", "s[48:51]", "s[52:55]", "s[56:59]"
sWave, sXcd, sI, sN, sTagHi, sTagLo = 60, 61, 62, 63, 64, 65
sT0, sTB, sR0, sF0, sG1ok, sD0, sR2, sC2 = 66, 67, 68, 69, 70, 71, 72, 73
sA, sB, sC, sD, sE, sF, sG, sH = 74, 75, 76, 77, 78, 79, 80, 81
sXoff, sWoff, sM = 82, 83, 84
sH0, sH1 = 85, 86
sRetry = 87
sP0, sP1 = 88, 90
sHW, sCH, sNH = 92, 93, 94
sStamp = 96

def f32(x): return "0x%08x" % struct.unpack("<I", struct.pack("<f", x))[0]
def sp(n): return f"s[{n}:{n+1}]"
def vr(a, n): return f"v[{a}:{a+n-1}]" if n > 1 else f"v{a}"

class Opt:
    skipC = False
    skipH = False
    norot = False
    dumpK = False
    stop = None
    stamps = False
    s1split = False
OPT = Opt()

def stamp(S, idx):
    if not OPT.stamps: return
    prev = getattr(S, "last_stamp", None)
    if prev is not None:
        S(f"v_writelane_b32 v255, s{sStamp}, {prev}")
    else:
        S("v_mov_b32 v255, 0")
        S("s_memrealtime s[22:23]")
    S(f"s_memtime {sp(sStamp)}")
    S.last_stamp = idx

def stamp_flush(S):
    if not OPT.stamps: return
    S("s_memrealtime s[34:35]")
    S("s_memtime s[38:39]")
    S("s_waitcnt lgkmcnt(0)")
    S(f"v_writelane_b32 v255, s{sStamp}, {S.last_stamp}")
    S(f"v_writelane_b32 v255, s22, 30")
    S(f"v_writelane_b32 v255, s34, 31")
    S(f"v_writelane_b32 v255, s38, 29")
    S(f"s_lshl_b32 s98, s2, 3")
    S(f"s_add_u32 s98, s98, s{sWave}")
    S(f"s_lshl_b32 s98, s98, 7")
    S(f"s_add_u32 s98, s98, {WS_DBG}")
    S(f"v_lshlrev_b32 v254, 2, v0")
    S(f"s_mov_b32 exec_lo, -1")
    S(f"s_mov_b32 exec_hi, 0")
    S(f"buffer_store_dword v255, v254, {SWS}, s98 offen")
    S(f"s_mov_b64 exec, -1")

def prologue(S):
    S(f"""
    s_cmp_ge_u32 s2, 256
    s_cbranch_scc1 L_end
    s_load_dwordx16 s[4:19], s[0:1], 0
    s_load_dwordx16 s[20:35], s[0:1], 64
    s_load_dwordx2 s[36:37], s[0:1], 128
    v_xor_b32 v0, 256, v0
    v_mov_b32 v1, v0
    v_lshrrev_b32 v3, 6, v0
    v_and_b32 v0, 63, v0
    v_readfirstlane_b32 s{sWave}, v3
    v_lshlrev_b32 v2, 4, v0
    s_and_b32 s{sXcd}, s2, 7
    s_lshr_b32 s{sI}, s2, 3
    s_lshl_b32 s{sA}, s{sXcd}, 5
    s_add_u32 s{sTB}, s{sA}, s{sI}
    s_lshl_b32 s{sT0}, s{sTB}, 3
    s_lshr_b32 s{sA}, s{sXcd}, 1
    s_lshl_b32 s{sA}, s{sA}, 2
    s_and_b32 s{sB}, s{sI}, 3
    s_add_u32 s{sA}, s{sA}, s{sB}
    s_lshl_b32 s{sR0}, s{sA}, 7
    s_and_b32 s{sA}, s{sXcd}, 1
    s_lshl_b32 s{sA}, s{sA}, 3
    s_lshr_b32 s{sC}, s{sI}, 2
    s_add_u32 s{sA}, s{sA}, s{sC}
    s_mul_i32 s{sF0}, s{sA}, 96
    s_cmp_lt_u32 s{sA}, 15
    s_cselect_b32 s{sG1ok}, 1, 0
    s_lshl_b32 s{sD0}, s{sTB}, 1
    s_lshl_b32 s{sA}, s{sXcd}, 8
    s_lshl_b32 s{sB}, s{sB}, 6
    s_add_u32 s{sR2}, s{sA}, s{sB}
    s_lshl_b32 s{sC2}, s{sC}, 6
    s_waitcnt lgkmcnt(0)
    s_mov_b32 s40, s{sU}
    s_mov_b32 s41, s{sU+1}
    s_mov_b32 s42, {2048*512*2}
    s_mov_b32 s43, 0x20000
    s_mov_b32 s44, s{sW1}
    s_mov_b32 s45, s{sW1+1}
    s_mov_b32 s46, {512*1376*2}
    s_mov_b32 s47, 0x20000
    s_mov_b32 s48, s{sW2}
    s_mov_b32 s49, s{sW2+1}
    s_mov_b32 s50, {512*1376*2}
    s_mov_b32 s51, 0x20000
    s_mov_b32 s52, s{sWs}
    s_mov_b32 s53, s{sWs+1}
    s_mov_b32 s54, {WS_SIZE}
    s_mov_b32 s55, 0x20000
    s_mov_b32 s56, s{sOut}
    s_mov_b32 s57, s{sOut+1}
    s_mov_b32 s58, {2048*512*2}
    s_mov_b32 s59, 0x20000
    """)

def first_loads(S):
    S.vmem(f"buffer_load_dword v3, off, {SWS}, 0 sc1", "nonce")
    S(f"s_add_u32 s{sA}, s{sT0}, s{sWave}")
    S(f"s_lshl_b32 s{sA}, s{sA}, 10")
    S.vmem(f"buffer_load_dwordx4 v[4:7], v2, {SU}, s{sA} offen", "xrow")

def dma_setup(S):
    S(f"""
    v_lshrrev_b32 v33, 3, v0
    v_lshlrev_b32 v33, 10, v33
    v_and_b32 v34, 7, v0
    v_lshrrev_b32 v35, 4, v0
    v_xor_b32 v36, v34, v35
    v_lshl_add_u32 v240, v36, 4, v33
    v_xor_b32 v36, 4, v36
    v_lshl_add_u32 v241, v36, 4, v33
    s_mov_b32 s{sA}, 0x15555556
    s_movk_i32 s{sB}, 2752
    """)
    for b in range(3):
        S(f"""
        v_add_u32 v33, {64*b}, v0
        v_mul_hi_u32 v34, v33, s{sA}
        v_mul_u32_u24 v35, 12, v34
        v_sub_u32 v35, v33, v35
        v_bfe_u32 v36, v34, 3, 1
        v_lshlrev_b32 v36, 1, v36
        v_xor_b32 v35, v35, v36
        v_lshlrev_b32 v35, 4, v35
        v_mad_u32_u24 v{242+b}, v34, s{sB}, v35
        """)
    S(f"""
    s_lshl_b32 s{sA}, s{sR0}, 10
    s_lshl_b32 s{sB}, s{sF0}, 1
    s_cmp_eq_u32 s{sG1ok}, 1
    s_cselect_b32 s{sXoff}, s{sA}, {OOB}
    s_cselect_b32 s{sWoff}, s{sB}, {OOB}
    """)

def dma_x(S, c, j_sreg_mul, joff, tag):
    slot = (c % 4)*SLOT1
    S(f"s_add_u32 s{sA}, s{j_sreg_mul}, {joff}")
    S(f"s_lshl_b32 s{sB}, s{sA}, 10")
    S(f"s_add_u32 m0, s{sB}, {slot}")
    S(f"s_lshl_b32 s{sA}, s{sA}, 13")
    S(f"s_add_u32 s{sA}, s{sA}, {c*128}")
    S(f"s_add_u32 s{sA}, s{sA}, s{sXoff}")
    S.vmem(f"buffer_load_dwordx4 v{240 + (joff & 1)}, {SU}, s{sA} offen lds", tag)

def dma_w(S, csreg, cconst, asreg, tag):
    if csreg is None: S(f"s_mov_b32 s{sC}, {cconst}")
    else: S(f"s_add_u32 s{sC}, s{csreg}, {cconst}")
    S(f"s_lshl_b32 s{sD}, s{sC}, 2")
    S(f"s_add_u32 s{sD}, s{sD}, s{asreg}")
    S(f"s_mul_i32 s{sD}, s{sD}, {16*2752}")
    S(f"s_add_u32 s{sD}, s{sD}, s{sWoff}")
    S(f"s_and_b32 s{sC}, s{sC}, 3")
    S(f"s_mul_i32 s{sC}, s{sC}, {SLOT1}")
    S(f"s_mul_i32 s{sE}, s{asreg}, 3072")
    S(f"s_add_u32 s{sC}, s{sC}, s{sE}")
    S(f"s_add_u32 s{sC}, s{sC}, 16384")
    for b in range(3):
        S(f"s_add_u32 m0, s{sC}, {b*1024}")
        S.vmem(f"buffer_load_dwordx4 v{242+b}, {SW1}, s{sD} offen lds", tag)

def initial_dma(S, role):
    S(f"s_lshl_b32 s{sF}, s{sWave}, 1")
    S(f"s_lshr_b32 s{sG}, s{sWave}, 2")
    S(f"s_and_b32 s{sH}, s{sWave}, 3")
    wt = lambda m: f"w{2*m + (0 if role == 'C' else 1)}"
    for c in range(4):
        dma_x(S, c, sF, 0, f"x{c}"); dma_x(S, c, sF, 1, f"x{c}")
        if c in (0, 2):
            dma_w(S, sG, c, sH, wt(c//2))

def nonce_setup(S):
    S.wait_vm("nonce")
    S(f"""
    v_readfirstlane_b32 s{sN}, v3
    s_mul_i32 s{sN}, s{sN}, 1664525
    s_add_u32 s{sN}, s{sN}, 1013904223
    s_and_b32 s{sTagLo}, s{sN}, 0xffff
    s_lshl_b32 s{sTagHi}, s{sN}, 16
    """)

def wave_sum(S, v, sdst):
    for m in ("row_shr:1", "row_shr:2", "row_shr:4", "row_shr:8"):
        S(f"v_add_f32_dpp v{v}, v{v}, v{v} {m} row_mask:0xf bank_mask:0xf")
    S(f"v_add_f32_dpp v{v}, v{v}, v{v} row_bcast:15 row_mask:0xa bank_mask:0xf")
    S(f"v_add_f32_dpp v{v}, v{v}, v{v} row_bcast:31 row_mask:0xc bank_mask:0xf")
    S(f"v_readlane_b32 s{sdst}, v{v}, 63")

def wave_max(S, v, sdst):
    for m in ("row_shr:1", "row_shr:2", "row_shr:4", "row_shr:8"):
        S(f"v_max_f32_dpp v{v}, v{v}, v{v} {m} row_mask:0xf bank_mask:0xf")
    S(f"v_max_f32_dpp v{v}, v{v}, v{v} row_bcast:15 row_mask:0xa bank_mask:0xf")
    S(f"v_max_f32_dpp v{v}, v{v}, v{v} row_bcast:31 row_mask:0xc bank_mask:0xf")
    S(f"v_readlane_b32 s{sdst}, v{v}, 63")

def p1_part1(S, last_tag):
    S.wait_vm(last_tag)
    stamp(S, 13)
    for j in range(4):
        S(f"v_lshlrev_b32 v{8+2*j}, 16, v{4+j}")
        S(f"v_and_b32 v{9+2*j}, 0xffff0000, v{4+j}")
    S("""
    v_add_f32 v16, v8, v9
    v_add_f32 v17, v10, v11
    v_add_f32 v18, v12, v13
    v_add_f32 v19, v14, v15
    v_add_f32 v16, v16, v17
    v_add_f32 v18, v18, v19
    v_add_f32 v16, v16, v18
    """)
    wave_sum(S, 16, sA)
    S(f"v_mov_b32 v17, {f32(1/512)}")
    S(f"v_mul_f32 v17, s{sA}, v17")
    for j in range(8):
        S(f"v_sub_f32 v{24+j}, v{8+j}, v17")
    S("v_mul_f32 v16, v24, v24")
    for j in range(1, 8):
        S(f"v_fmac_f32 v16, v{24+j}, v{24+j}")
    wave_sum(S, 16, sA)
    S(f"""
    v_cvt_pk_bf16_f32 v20, v17, v17
    v_and_b32 v20, 0xffff0000, v20
    v_mov_b32 v18, {f32(1/512)}
    v_mul_f32 v18, s{sA}, v18
    v_cvt_pk_bf16_f32 v18, v18, v18
    v_and_b32 v18, 0xffff0000, v18
    v_add_f32 v18, {f32(1e-5)}, v18
    v_cvt_pk_bf16_f32 v18, v18, v18
    v_and_b32 v18, 0xffff0000, v18
    v_sqrt_f32 v19, v18
    v_rcp_f32 v21, v19
    v_fma_f32 v23, -v19, v19, v18
    v_mul_f32 v21, 0.5, v21
    v_fmac_f32 v19, v23, v21
    v_cvt_pk_bf16_f32 v19, v19, v19
    v_and_b32 v19, 0xffff0000, v19
    v_rcp_f32 v22, v19
    v_fma_f32 v23, -v19, v22, 1.0
    v_fmac_f32 v22, v23, v22
    v_mul_f32 v23, v20, v22
    """)
    for j in range(8):
        S(f"v_fma_f32 v{24+j}, v{8+j}, v22, -v23")
    for j in range(4):
        S(f"v_cvt_pk_f16_f32 v{4+j}, v{24+2*j}, v{25+2*j}")
    S(f"s_mul_i32 s{sA}, s{sWave}, {P1ROW}")
    S(f"s_add_u32 s{sA}, s{sA}, {P1BUF}")
    S(f"v_add_u32 v16, s{sA}, v2")
    S.lds("ds_write_b128 v16, v[4:7]", "p1w")
    S.wait_lg_all()

def p1_part2(S):
    S(f"""
    v_mov_b32 v4, v20
    v_mov_b32 v5, s{sN}
    v_mov_b32 v6, v22
    v_mov_b32 v7, s{sN}
    s_add_u32 s{sA}, s{sT0}, s{sWave}
    s_lshl_b32 s{sA}, s{sA}, 4
    s_add_u32 s{sA}, s{sA}, {WS_STATS}
    s_mov_b64 exec, 1
    """)
    S.vmem(f"buffer_store_dwordx4 v[4:7], off, {SWS}, s{sA} sc1", "statst")
    S("s_mov_b64 exec, -1")
    S(f"""
    v_and_b32 v8, 1, v1
    v_mul_u32_u24 v8, {4*P1ROW}, v8
    v_and_b32 v9, 0x1fe, v1
    v_add_u32 v8, v8, v9
    v_add_u32 v8, {P1BUF}, v8
    """)
    for k in range(2):
        for j in range(4):
            S.lds(f"ds_read_u16 v{12+4*k+j}, v8 offset:{j*P1ROW + 512*k}", f"p1r{k}")
    S(f"v_lshlrev_b32 v9, 4, v1")
    S(f"s_lshl_b32 s{sA}, s{sTB}, 14")
    S(f"s_add_u32 s{sA}, s{sA}, {WS_XNT}")
    S(f"s_add_u32 s{sB}, s{sA}, 8192")
    for k in range(2):
        S.wait_lg(f"p1r{k}")
        for j in range(4):
            S(f"v_or_b32 v{12+4*k+j}, s{sTagHi}, v{12+4*k+j}")
        S.vmem(f"buffer_store_dwordx4 v[{12+4*k}:{15+4*k}], v9, {SWS}, s{sA if k == 0 else sB} offen sc1", "xntst")

ACC1 = 64
S1A  = 112
ONES = 124
XF = (128, 160); WF = (144, 176)

def h_offsets(S):
    S(f"""
    s_and_b32 s{sA}, s{sWave}, 1
    s_lshr_b32 s{sB}, s{sWave}, 1
    s_lshr_b32 s{sC}, s{sR0}, 5
    s_lshl_b32 s{sA}, s{sA}, 1
    s_add_u32 s{sC}, s{sC}, s{sA}
    s_mul_i32 s{sC}, s{sC}, 86
    s_lshr_b32 s{sD}, s{sF0}, 4
    s_mul_i32 s{sB}, s{sB}, 3
    s_add_u32 s{sD}, s{sD}, s{sB}
    s_add_u32 s{sC}, s{sC}, s{sD}
    s_lshl_b32 s{sC}, s{sC}, 10
    s_add_u32 s{sH0}, s{sC}, {WS_H}
    s_add_u32 s{sH1}, s{sH0}, {86*1024}
    s_mov_b32 s{sM}, s{sD}
    """)

def h_soff(S, alpha, pp, dst):
    S(f"s_add_u32 s{dst}, s{sM}, {alpha}")
    S(f"s_cmp_lt_u32 s{dst}, 86")
    S(f"s_cselect_b32 s{dst}, s{sH1 if pp else sH0}, {OOB}")

def h_clear(S):
    for j in range(4): S(f"v_mov_b32 v{8+j}, 0x80008000")
    for a in range(3):
        for pp in range(2):
            h_soff(S, a, pp, sA)
            S.vmem(f"buffer_store_dwordx4 v[8:11], v2, {SWS}, s{sA} offen offset:{a*1024} sc1", "clear")

def g1_addr(S):
    S(f"""
    s_and_b32 s{sA}, s{sWave}, 1
    s_lshr_b32 s{sB}, s{sWave}, 1
    v_and_b32 v33, 15, v0
    v_lshrrev_b32 v34, 4, v0
    v_lshrrev_b32 v35, 1, v33
    v_xor_b32 v35, v35, v34
    v_lshlrev_b32 v35, 4, v35
    v_lshl_add_u32 v35, v33, 7, v35
    s_lshl_b32 s{sC}, s{sA}, 13
    v_add_u32 v24, s{sC}, v35
    v_xor_b32 v25, 64, v24
    v_lshrrev_b32 v35, 2, v33
    v_lshl_add_u32 v35, v34, 3, v35
    v_mul_u32_u24 v35, 192, v35
    v_bfe_u32 v36, v0, 1, 1
    v_lshl_add_u32 v35, v36, 4, v35
    v_and_b32 v36, 1, v0
    v_lshl_add_u32 v35, v36, 3, v35
    s_mul_i32 s{sC}, s{sB}, 96
    s_add_u32 s{sC}, s{sC}, 16384
    v_add_u32 v35, s{sC}, v35
    v_and_b32 v36, 1, v34
    v_lshlrev_b32 v36, 5, v36
    v_add_u32 v26, v35, v36
    v_sub_u32 v27, v35, v36
    """)
    S(f"""
    s_cmp_eq_u32 s{sB}, 1
    s_cselect_b64 vcc, -1, 0
    v_cndmask_b32 v35, v26, v27, vcc
    v_cndmask_b32 v27, v27, v26, vcc
    v_mov_b32 v26, v35
    """)

def g1_reads(S, c, s, st, tag):
    slot = (c % 4)*SLOT1
    xa = 37 + s; wa = (39, 40)
    if s == 0:
        S(f"v_add_u32 v37, {slot}, v24")
        S(f"v_add_u32 v38, {slot}, v25")
        S(f"v_add_u32 v39, {slot}, v26")
        S(f"v_add_u32 v40, {slot}, v27")
    for a in range(3):
        for h in range(2):
            off = (32*s + 4*h)*192 + 32*a
            S.lds(f"ds_read_b64_tr_b16 {vr(WF[st]+4*a+2*h, 2)}, v{wa[a & 1]} offset:{off}", tag)
    for tt in range(4):
        S.lds(f"ds_read_b128 {vr(XF[st]+4*tt, 4)}, v{xa} offset:{tt*2048}", tag)

def g1_mfmas(S, st, first):
    for a in range(3):
        for tt in range(4):
            acc = ACC1 + 16*a + 4*tt
            c = "0" if first else vr(acc, 4)
            S(f"v_mfma_f32_16x16x32_bf16 {vr(acc,4)}, {vr(WF[st]+4*a,4)}, {vr(XF[st]+4*tt,4)}, {c}")
        acc = S1A + 4*a
        c = "0" if first else vr(acc, 4)
        S(f"v_mfma_f32_16x16x32_bf16 {vr(acc,4)}, {vr(WF[st]+4*a,4)}, {vr(ONES,4)}, {c}")

def gemm1(S):
    g1_addr(S)
    for j in range(4): S(f"v_mov_b32 v{ONES+j}, 0x3f803f80")
    S.wait_vm("x0"); S.wait_vm("w0")
    S.barrier("G0")
    stamp(S, 2)
    g1_reads(S, 0, 0, 0, "r0_0")
    for c in range(8):
        g1_reads(S, c, 1, 1, f"r{c}_1")
        S.wait_lg(f"r{c}_0")
        g1_mfmas(S, 0, c == 0)
        if c == 4:
            g1_epi_loads(S)
        S.wait_lg(f"r{c}_1")
        if c < 3:
            S.wait_vm(f"x{c+1}")
            if c+1 == 2: S.wait_vm("w2")
        S.barrier(f"G{c+1}")
        stamp(S, 16 + c)
        if c < 7:
            g1_reads(S, c+1, 0, 0, f"r{c+1}_0")
        g1_mfmas(S, 1, False)

STAT = 188; B1R = 204; B1F = 210
def g1_epi_loads(S):
    S(f"""
    s_and_b32 s{sA}, s{sWave}, 1
    s_lshl_b32 s{sA}, s{sA}, 6
    s_add_u32 s{sA}, s{sA}, s{sR0}
    s_lshl_b32 s{sA}, s{sA}, 4
    s_add_u32 s{sE}, s{sA}, {WS_STATS}
    v_and_b32 v41, 15, v0
    v_lshlrev_b32 v41, 4, v41
    """)
    for tt in range(4):
        S.vmem(f"buffer_load_dwordx4 {vr(STAT+4*tt,4)}, v41, {SWS}, s{sE} offen offset:{tt*256} sc1", "stat")
    S(f"""
    s_lshr_b32 s{sB}, s{sWave}, 1
    s_mul_i32 s{sB}, s{sB}, 48
    s_add_u32 s{sB}, s{sB}, s{sF0}
    v_lshrrev_b32 v42, 4, v0
    v_lshlrev_b32 v42, 2, v42
    v_add_u32 v42, s{sB}, v42
    """)
    for a in range(3):
        S(f"v_add_u32 v43, {16*a}, v42")
        S(f"v_min_u32 v43, 1372, v43")
        S(f"v_lshlrev_b32 v43, 1, v43")
        S.vmem(f"global_load_dwordx2 {vr(B1R+2*a,2)}, v43, {sp(sB1)}", "b1")

def check_stats(S, lab):
    S(f"s_mov_b32 s{sRetry}, 0")
    S.wait_vm("stat")
    S(f"{lab}_chk:")
    for tt in range(4):
        b = STAT + 4*tt
        S(f"v_xor_b32 v44, s{sN}, v{b+1}")
        S(f"v_xor_b32 v45, s{sN}, v{b+3}")
        if tt == 0: S(f"v_or_b32 v46, v44, v45")
        else: S(f"v_or3_b32 v46, v46, v44, v45")
    S(f"""
    v_cmp_ne_u32 vcc, 0, v46
    s_cbranch_vccz {lab}_ok
    s_add_u32 s{sRetry}, s{sRetry}, 1
    s_cmp_ge_u32 s{sRetry}, 4096
    s_cbranch_scc1 {lab}_ok
    """)
    for tt in range(4):
        S(f"buffer_load_dwordx4 {vr(STAT+4*tt,4)}, v41, {SWS}, s{sE} offen offset:{tt*256} sc1")
    S("s_waitcnt vmcnt(0)")
    S(f"s_branch {lab}_chk")
    S(f"{lab}_ok:")

def g1_epilogue(S):
    check_stats(S, "L_st")
    S.wait_vm("b1")
    for a in range(3):
        for h in range(2):
            S(f"v_lshlrev_b32 v{B1F+4*a+2*h}, 16, v{B1R+2*a+h}")
            S(f"v_and_b32 v{B1F+4*a+2*h+1}, 0xffff0000, v{B1R+2*a+h}")
    for a in range(3):
        for pp in range(2):
            for q in range(2):
                tt = 2*pp + q
                acc = ACC1 + 16*a + 4*tt
                m = STAT + 4*tt; r = m + 2
                for h in range(2):
                    A = vr(acc+2*h, 2)
                    S(f"v_pk_fma_f32 {A}, {vr(S1A+4*a+2*h,2)}, {vr(m,2)}, {A} op_sel_hi:[1,0,1] neg_lo:[0,1,0] neg_hi:[0,1,0]")
                    S(f"v_pk_fma_f32 {A}, {A}, {vr(r,2)}, {vr(B1F+4*a+2*h,2)} op_sel_hi:[1,0,1]")
                for j in range(4):
                    S(f"v_max_f32 v{acc+j}, 0, v{acc+j}")
                for h in range(2):
                    A = vr(acc+2*h, 2)
                    S(f"v_pk_mul_f32 {A}, {A}, {A}")
                base = 48 + 4*((2*a+pp) & 1)
                S(f"v_cvt_pk_bf16_f32 v{base+2*q}, v{acc}, v{acc+1}")
                S(f"v_cvt_pk_bf16_f32 v{base+2*q+1}, v{acc+2}, v{acc+3}")
            base = 48 + 4*((2*a+pp) & 1)
            S(f"v_permlane16_swap_b32 v{base}, v{base+2}")
            S(f"v_permlane16_swap_b32 v{base+1}, v{base+3}")
            h_soff(S, a, pp, sA)
            S.vmem(f"buffer_store_dwordx4 {vr(base,4)}, v2, {SWS}, s{sA} offen offset:{a*1024} sc1", "hst")

FK = 64; CACC = 196; BRING = 216; GF = 232
VF = 32; DW = 48; BANDE = 56; BANDO = 60

def conv_setup(S):
    S(f"""
    s_lshr_b32 s{sA}, s{sWave}, 1
    v_and_b32 v33, 15, v0
    v_lshrrev_b32 v34, 4, v0
    s_mul_i32 s{sB}, s{sA}, {UTSZ}
    s_add_u32 s{sB}, s{sB}, {UT+16}
    v_lshlrev_b32 v35, 5, v33
    v_lshl_add_u32 v35, v34, 4, v35
    v_add_u32 v24, s{sB}, v35
    v_sub_u32 v35, 3, v33
    v_and_b32 v35, 3, v35
    s_mul_i32 s{sB}, s{sA}, {KCSZ}
    s_add_u32 s{sB}, s{sB}, {KC}
    v_mul_u32_u24 v36, {KCOPY}, v35
    v_add_u32 v36, s{sB}, v36
    v_add_u32 v35, v35, v33
    v_lshlrev_b32 v37, 3, v34
    v_sub_u32 v37, v37, v35
    v_add_u32 v37, 27, v37
    v_lshl_add_u32 v25, v37, 1, v36
    v_lshlrev_b32 v37, 2, v34
    v_sub_u32 v37, v37, v35
    v_add_u32 v37, 19, v37
    v_lshl_add_u32 v26, v37, 1, v36
    s_lshl_b32 s{sB}, s{sA}, 2
    s_add_u32 s{sB}, s{sB}, {MISC}
    v_mov_b32 v27, s{sB}
    """)
    for (dst, h) in ((BANDE, 4), (BANDO, 3)):
        S(f"v_add_u32 v35, {8-h}, v33")
        S(f"v_mov_b32 v36, {(1 << (2*h+1)) - 1}")
        S(f"v_lshlrev_b32 v36, v35, v36")
        S(f"v_lshlrev_b32 v35, 3, v34")
        S(f"v_lshrrev_b32 v36, v35, v36")
        for j in range(4):
            S(f"v_bfe_u32 v35, v36, {2*j}, 1")
            S(f"v_bfe_u32 v37, v36, {2*j+1}, 1")
            S(f"v_lshl_or_b32 v35, v37, 16, v35")
            S(f"v_mul_u32_u24 v{dst+j}, 0x3c00, v35")

def conv_far(S, svals, pairs):
    S.lds(f"ds_read_b32 v28, v27", "sig")
    taus = [t for s in svals for t in (2*s, 2*s+1)]
    first = set()
    for s in svals:
        for (name, Z, band, vf, sec) in (("E", 24, BANDE, VF + 4*s, SEC_E), ("O", 16, BANDO, VF + 8 + 4*s, SEC_O)):
            for q in range(2):
                tau = 2*s + q
                S.lds(f"ds_read_b128 {vr(BRING+4*q,4)}, v24 offset:{528 + 512*tau - 2*Z}", f"U{name}{tau}")
            for q in range(2):
                S.wait_lg(f"U{name}{2*s+q}")
                S(f"v_mfma_f32_16x16x32_f16 {vr(DW+4*q,4)}, {vr(BRING+4*q,4)}, {vr(band,4)}, 0")
            for q in range(2):
                S(f"v_cvt_pk_f16_f32 v{vf+2*q}, v{DW+4*q}, v{DW+4*q+1}")
                S(f"v_cvt_pk_f16_f32 v{vf+2*q+1}, v{DW+4*q+2}, v{DW+4*q+3}")
    n = 0
    for (cl, s, delta) in pairs:
        for (name, vf, sec) in (("E", VF + 4*s, SEC_E), ("O", VF + 8 + 4*s, SEC_O)):
            g = GF + 4*(n % 4); n += 1
            off = sec + 32*(7 - delta)
            S.lds(f"ds_read_b64 {vr(g,2)}, v26 offset:{off}", f"G{n}")
            S.lds(f"ds_read_b64 {vr(g+2,2)}, v26 offset:{off+32}", f"G{n}")
            S.wait_lg(f"G{n}")
            acc = CACC + 4*cl
            c = vr(acc, 4) if cl in first else "0"
            first.add(cl)
            S(f"v_mfma_f32_16x16x32_f16 {vr(acc,4)}, {vr(vf,4)}, {vr(g,4)}, {c}")
    return first

def conv_near(S, tiles, first):
    kmax = lambda c: min(32, 8*c + 8)
    xi_hi = 8*tiles[-1]; xi_lo = min(8*c - kmax(c) for c in tiles)
    steps = list(range(xi_hi, xi_lo - 1, -1))
    D = 2
    def issue(i):
        xi = steps[i]
        kn = xi_hi - xi
        if kn <= 32:
            S.lds(f"ds_read_b64 {vr(FK+4*kn,2)}, v25 offset:{64*(32-kn)}", f"s{i}")
            S.lds(f"ds_read_b64 {vr(FK+4*kn+2,2)}, v25 offset:{64*(32-kn)+8}", f"s{i}")
        S.lds(f"ds_read_b128 {vr(BRING+4*(i % 4),4)}, v24 offset:{64*(xi+8)}", f"s{i}")
    for i in range(min(D, len(steps))): issue(i)
    first = set(first)
    for i, xi in enumerate(steps):
        if i + D < len(steps): issue(i + D)
        S.wait_lg(f"s{i}")
        for cl, c in enumerate(tiles):
            k = 8*c - xi
            if 0 <= k <= kmax(c):
                acc = CACC + 4*cl
                cc = vr(acc, 4) if cl in first else "0"
                first.add(cl)
                S(f"v_mfma_f32_16x16x32_f16 {vr(acc,4)}, {vr(FK+4*k,4)}, {vr(BRING+4*(i % 4),4)}, {cc}")

def conv_store(S, tiles):
    S(f"""
    s_lshr_b32 s{sA}, s{sWave}, 1
    s_add_u32 s{sA}, s{sA}, s{sD0}
    s_lshl_b32 s{sA}, s{sA}, 13
    s_add_u32 s{sA}, s{sA}, {WS_Y}
    v_and_b32 v33, 15, v0
    v_lshrrev_b32 v34, 4, v0
    v_lshlrev_b32 v33, 6, v33
    v_lshl_add_u32 v33, v34, 4, v33
    v_mov_b32 v34, 0xffff0000
    """)
    for cl, c in enumerate(tiles):
        acc = CACC + 4*cl
        for j in range(4): S(f"v_mul_f32 v{acc+j}, v28, v{acc+j}")
        S(f"v_cvt_pk_bf16_f32 v35, v{acc}, v{acc+1}")
        S(f"v_cvt_pk_bf16_f32 v36, v{acc+2}, v{acc+3}")
        S(f"v_lshl_or_b32 v{acc}, v35, 16, s{sTagLo}")
        S(f"v_and_b32 v35, v34, v35")
        S(f"v_or_b32 v{acc+1}, s{sTagLo}, v35")
        S(f"v_lshl_or_b32 v{acc+2}, v36, 16, s{sTagLo}")
        S(f"v_and_b32 v36, v34, v36")
        S(f"v_or_b32 v{acc+3}, s{sTagLo}, v36")
        S(f"s_add_u32 s{sB}, s{sA}, {c*1024}")
        S.vmem(f"buffer_store_dwordx4 {vr(acc,4)}, v33, {SWS}, s{sB} offen sc1", "yst")

def conv(S):
    conv_setup(S)
    S(f"s_bitcmp1_b32 s{sWave}, 0")
    S(f"s_cbranch_scc1 L_convB")
    save_lg = (list(S.lg), S.lg_done); save_vm = (list(S.vm), S.vm_done)
    first = conv_far(S, [0], [(4, 0, 4)])
    conv_near(S, [0, 1, 2, 3, 4], first)
    conv_store(S, [0, 1, 2, 3, 4])
    S.wait_lg_all()
    S("s_branch L_convE")
    S("L_convB:")
    vmA = list(S.vm)
    S.lg, S.lg_done = save_lg; S.vm, S.vm_done = save_vm
    first = conv_far(S, [0, 1], [(0, 0, 5), (1, 0, 6), (1, 1, 4), (2, 0, 7), (2, 1, 5)])
    conv_near(S, [5, 6, 7], first)
    conv_store(S, [5, 6, 7])
    S(f"s_mov_b32 s{sB}, {OOB}")
    for _ in range(2):
        S.vmem(f"buffer_store_dwordx4 {vr(CACC,4)}, v33, {SWS}, s{sB} offen sc1", "yst")
    S.wait_lg_all()
    assert len(S.vm) == len(vmA)
    S("L_convE:")

ACC2 = 64; HR = 96; BF2 = (160, 168); XT = 176; B2R = 180; YR = 184; PR = 200
RD = 16
def gemm2_setup(S):
    S(f"""
    s_lshr_b32 s{sA}, s{sWave}, 1
    s_and_b32 s{sB}, s{sWave}, 1
    s_lshr_b32 s{sC}, s{sR2}, 5
    s_add_u32 s{sC}, s{sC}, s{sB}
    s_mul_i32 s{sC}, s{sC}, 86
    s_mul_i32 s{sD}, s{sA}, 43
    s_add_u32 s{sC}, s{sC}, s{sD}
    s_lshl_b32 s{sC}, s{sC}, 10
    s_add_u32 s{sH0}, s{sC}, {WS_H}
    v_lshrrev_b32 v33, 5, v0
    v_lshlrev_b32 v33, 3, v33
    v_bfe_u32 v34, v0, 2, 2
    v_add_u32 v33, v33, v34
    v_lshlrev_b32 v33, 7, v33
    v_bfe_u32 v34, v0, 4, 1
    v_lshlrev_b32 v34, 1, v34
    v_bfe_u32 v35, v0, 1, 1
    v_add_u32 v34, v34, v35
    s_lshl_b32 s{sD}, s{sA}, 2
    v_or_b32 v34, s{sD}, v34
    v_bfe_u32 v35, v0, 3, 1
    v_lshlrev_b32 v35, 2, v35
    v_xor_b32 v34, v34, v35
    v_lshl_add_u32 v33, v34, 4, v33
    v_and_b32 v34, 1, v0
    v_lshl_add_u32 v33, v34, 3, v33
    s_lshl_b32 s{sD}, s{sA}, 13
    v_add_u32 v24, s{sD}, v33
    v_xor_b32 v25, 64, v24
    """)

def xtile_load(S):
    S(f"""
    v_lshrrev_b32 v30, 3, v1
    v_add_u32 v30, s{sR2}, v30
    v_lshlrev_b32 v30, 10, v30
    v_and_b32 v31, 7, v1
    v_lshlrev_b32 v31, 4, v31
    s_lshl_b32 s{sA}, s{sC2}, 1
    v_add3_u32 v30, v30, v31, s{sA}
    """)
    S.vmem(f"buffer_load_dwordx4 {vr(XT,4)}, v30, {SU}, 0 offen", "xt")

def h_load(S, f, tag=True):
    r = HR + 4*(f % RD)
    if f % 4 == 0 or not tag:
        S(f"s_add_u32 s{sE}, s{sH0}, {(f//4)*4096}")
    txt = f"buffer_load_dwordx4 {vr(r,4)}, v2, {SWS}, s{sE} offen offset:{(f % 4)*1024} sc1"
    if tag: S.vmem(txt, f"h{f}")
    else: S(txt)

def g2_reads(S, j, s, st, tag):
    if s == 0:
        S(f"v_add_u32 v26, {slot2(j)}, v24")
        S(f"v_add_u32 v27, {slot2(j)}, v25")
    for lc in range(2):
        for h in range(2):
            S.lds(f"ds_read_b64_tr_b16 {vr(BF2[st]+4*lc+2*h,2)}, v{26+lc} offset:{(16*s+4*h)*128}", tag)

def y_loads(S, tag=True):
    for q in range(4):
        txt = f"buffer_load_dwordx4 {vr(YR+4*q,4)}, v28, {SWS}, s{sG} offen offset:{q*32} sc1"
        if tag: S.vmem(txt, "y")
        else: S(txt)

def gemm2(S):
    gemm2_setup(S)
    xtile_load(S)
    S(f"""
    s_lshr_b32 s{sA}, s{sWave}, 1
    s_lshl_b32 s{sA}, s{sA}, 5
    s_add_u32 s{sA}, s{sA}, s{sC2}
    v_and_b32 v28, 31, v0
    v_add_u32 v28, s{sA}, v28
    v_lshlrev_b32 v29, 1, v28
    """)
    S.vmem(f"global_load_ushort v{B2R}, v29, {sp(sB2)}", "b2")
    S(f"""
    v_lshlrev_b32 v28, 13, v28
    v_lshrrev_b32 v29, 5, v0
    v_lshl_add_u32 v28, v29, 4, v28
    s_and_b32 s{sB}, s{sWave}, 1
    s_lshl_b32 s{sB}, s{sB}, 5
    s_add_u32 s{sB}, s{sB}, s{sR2}
    s_lshl_b32 s{sB}, s{sB}, 2
    s_add_u32 s{sG}, s{sB}, {WS_Y}
    """)
    for f in range(RD): h_load(S, f)
    S.barrier("W0")
    stamp(S, 7)
    g2_reads(S, 0, 0, 0, "b0_0")
    f = 0; st = 0
    for j in range(11):
        ns = 4 if j < 10 else 3
        S.wait_vm(f"h{f+ns-1}")
        lab = f"L_h{j}"
        S(f"s_mov_b32 s{sRetry}, 0")
        S(f"{lab}_chk:")
        regs = [HR + 4*((f+k) % RD) + e for k in range(ns) for e in range(4)]
        S(f"v_or3_b32 v33, v{regs[0]}, v{regs[1]}, v{regs[2]}")
        k = 3
        while k < len(regs):
            if k + 1 < len(regs):
                S(f"v_or3_b32 v33, v33, v{regs[k]}, v{regs[k+1]}"); k += 2
            else:
                S(f"v_or_b32 v33, v33, v{regs[k]}"); k += 1
        S(f"""
        v_and_b32 v33, 0x80008000, v33
        v_cmp_ne_u32 vcc, 0, v33
        s_cbranch_vccz {lab}_ok
        s_add_u32 s{sRetry}, s{sRetry}, 1
        s_cmp_ge_u32 s{sRetry}, 4096
        s_cbranch_scc1 {lab}_ok
        """)
        S(f"s_add_u32 s{sF}, s{sH0}, {f*1024}")
        for k in range(ns):
            S(f"buffer_load_dwordx4 {vr(HR+4*((f+k) % RD),4)}, v2, {SWS}, s{sF} offen offset:{k*1024} sc1")
        S("s_waitcnt vmcnt(0)")
        S(f"s_branch {lab}_chk")
        S(f"{lab}_ok:")
        for s in range(ns):
            if s < ns - 1:
                g2_reads(S, j, s+1, st ^ 1, f"b{j}_{s+1}")
                S.wait_lg(f"b{j}_{s}")
            else:
                S.wait_lg(f"b{j}_{s}")
                S.barrier(f"W{j+1}")
                if j < 10: g2_reads(S, j+1, 0, st ^ 1, f"b{j+1}_0")
            for lc in range(2):
                acc = ACC2 + 16*lc
                c = "0" if f == 0 else vr(acc, 16)
                S(f"v_mfma_f32_32x32x16_bf16 {vr(acc,16)}, {vr(HR+4*(f % RD),4)}, {vr(BF2[st]+4*lc,4)}, {c}")
            if f + RD < 43: h_load(S, f + RD)
            if f + RD == 43: y_loads(S)
            f += 1; st ^= 1

def final_C(S):
    S(f"s_lshl_b32 s{sA}, s{sWave}, 12")
    S(f"s_add_u32 s{sA}, s{sA}, {XCH}")
    S(f"v_add_u32 v33, s{sA}, v2")
    for q in range(4):
        S.lds(f"ds_write_b128 v33, {vr(ACC2+16+4*q,4)} offset:{q*1024}", "xw")
    S.wait_lg_all()
    S.barrier("FX")
    S(f"s_xor_b32 s{sA}, s{sWave}, 2")
    S(f"s_lshl_b32 s{sA}, s{sA}, 12")
    S(f"s_add_u32 s{sA}, s{sA}, {XCH}")
    S(f"v_add_u32 v33, s{sA}, v2")
    for q in range(4):
        S.lds(f"ds_read_b128 {vr(PR+4*q,4)}, v33 offset:{q*1024}", "xr")
    S.wait_vm("y")
    S(f"s_mov_b32 s{sRetry}, 0")
    S("L_y_chk:")
    for k in range(16):
        S(f"v_xor_b32 v34, s{sTagLo}, v{YR+k}")
        if k == 0: S("v_mov_b32 v35, v34")
        else: S("v_or_b32 v35, v35, v34")
    S(f"""
    v_and_b32 v35, 0xffff, v35
    v_cmp_ne_u32 vcc, 0, v35
    s_cbranch_vccz L_y_ok
    s_add_u32 s{sRetry}, s{sRetry}, 1
    s_cmp_ge_u32 s{sRetry}, 4096
    s_cbranch_scc1 L_y_ok
    """)
    y_loads(S, tag=False)
    S("s_waitcnt vmcnt(0)")
    S("s_branch L_y_chk")
    S("L_y_ok:")
    S.wait_vm("b2")
    S(f"v_lshlrev_b32 v{B2R}, 16, v{B2R}")
    S.wait_lg("xr")
    for k in range(16):
        S(f"v_and_b32 v{YR+k}, 0xffff0000, v{YR+k}")
        S(f"v_add_f32 v{ACC2+k}, v{ACC2+k}, v{PR+k}")
        S(f"v_add_f32 v{YR+k}, v{YR+k}, v{B2R}")
        S(f"v_add_f32 v{ACC2+k}, v{ACC2+k}, v{YR+k}")
    S(f"""
    s_and_b32 s{sA}, s{sWave}, 1
    s_mul_i32 s{sA}, s{sA}, {32*TTROW}
    s_lshr_b32 s{sB}, s{sWave}, 1
    s_lshl_b32 s{sB}, s{sB}, 7
    s_add_u32 s{sA}, s{sA}, s{sB}
    s_add_u32 s{sA}, s{sA}, {TT}
    v_lshrrev_b32 v33, 5, v0
    v_mul_u32_u24 v33, {4*TTROW}, v33
    v_and_b32 v34, 31, v0
    v_lshl_add_u32 v33, v34, 2, v33
    v_add_u32 v33, s{sA}, v33
    """)
    for k in range(16):
        S.lds(f"ds_write_b32 v33, v{ACC2+k} offset:{(8*(k >> 2) + (k & 3))*TTROW}", "tw")
    S.wait_lg_all()

def final_all(S):
    S.barrier("FT")
    S(f"""
    v_lshrrev_b32 v33, 3, v1
    v_mul_u32_u24 v33, {TTROW}, v33
    v_and_b32 v34, 7, v1
    v_lshl_add_u32 v33, v34, 5, v33
    v_add_u32 v33, {TT}, v33
    """)
    S.lds("ds_read_b128 v[40:43], v33", "tr")
    S.lds("ds_read_b128 v[44:47], v33 offset:16", "tr")
    S.wait_vm("xt")
    for j in range(4):
        S(f"v_lshlrev_b32 v{48+2*j}, 16, v{XT+j}")
        S(f"v_and_b32 v{49+2*j}, 0xffff0000, v{XT+j}")
    S.wait_lg_all()
    for j in range(8): S(f"v_add_f32 v{40+j}, v{40+j}, v{48+j}")
    for j in range(4): S(f"v_cvt_pk_bf16_f32 v{48+j}, v{40+2*j}, v{41+2*j}")
    S.vmem(f"buffer_store_dwordx4 v[48:51], v30, {SOUT}, 0 offen", "out")

LOG2E = 1.4426950408889634
L_HI = struct.unpack("<f", struct.pack("<I", 0x3FB8AA00))[0]
L_LO = LOG2E - L_HI
CC, Z1, Z2, Z4, Z8, Z128 = 16, 18, 20, 22, 24, 26
PA, PB = 28, 30
RR = 40
CV = 80
BE = 96
AE = 112
DD = 128
WA = 144
RA = 152
DP = 172
SIGH = 95

def cmul(S, d, a, b):
    S(f"v_pk_mul_f32 {vr(d,2)}, {vr(a,2)}, {vr(b,2)} op_sel_hi:[0,1]")
    S(f"v_pk_fma_f32 {vr(d,2)}, {vr(a,2)}, {vr(b,2)}, {vr(d,2)} op_sel:[1,1,0] op_sel_hi:[1,0,1] neg_lo:[1,0,0]")

def zpow(S, d, p):
    S(f"v_mul_f32 v34, {f32(p)}, v14")
    S(f"v_mul_f32 v35, {f32(p)}, v15")
    S("v_exp_f32 v34, v34")
    S("v_fract_f32 v35, v35")
    S("v_cos_f32 v36, v35")
    S("v_sin_f32 v37, v35")
    S(f"v_mul_f32 v{d}, v34, v36")
    S(f"v_mul_f32 v{d+1}, v34, v37")

def param_loads(S):
    S(f"""
    s_sub_u32 s{sHW}, s{sWave}, 4
    s_lshr_b32 s{sCH}, s{sHW}, 1
    s_and_b32 s{sNH}, s{sHW}, 1
    s_add_u32 s{sA}, s{sD0}, s{sCH}
    s_lshl_b32 s{sB}, s{sA}, 7
    s_lshl_b32 s{sC}, s{sNH}, 6
    s_add_u32 s{sB}, s{sB}, s{sC}
    v_add_u32 v33, s{sB}, v0
    v_lshlrev_b32 v33, 1, v33
    s_lshl_b32 s{sA}, s{sA}, 1
    v_mov_b32 v34, s{sA}
    """)
    for k, s in enumerate((sAre, sAim, sBre, sBim, sCre, sCim)):
        S.vmem(f"global_load_ushort v{160+k}, v33, {sp(s)}", "par")
    S.vmem(f"global_load_ushort v166, v34, {sp(sLdt)}", "par")
    S.vmem(f"global_load_ushort v167, v34, {sp(sDsk)}", "par")

def code_prefetch(S):
    S(f"""
    s_lshl_b32 s{sA}, s{sI}, 2
    s_add_u32 s{sA}, s{sA}, s{sHW}
    s_and_b32 s{sA}, s{sA}, 31
    s_lshl_b32 s{sA}, s{sA}, 10
    s_min_u32 s{sA}, s{sA}, L_end-{KNAME}-1024
    s_getpc_b64 {sp(sP0)}
    L_pc:
    s_sub_u32 s{sP0}, s{sP0}, L_pc-{KNAME}
    s_subb_u32 s{sP0+1}, s{sP0+1}, 0
    v_add_u32 v35, s{sA}, v2
    """)
    S.vmem(f"global_load_dwordx4 v[168:171], v35, {sp(sP0)}", "pref")

def write_tile(S):
    for i in range(8):
        S.lds(f"ds_write2st64_b32 v{WA+i}, v{CV+i}, v{CV+8+i} offset0:{i} offset1:{i+8}", "ew")

def read_frags(S, dst, tag):
    for s in range(4):
        S.lds(f"ds_read_b128 {vr(dst+4*s,4)}, v{RA+s}", tag)

def kgen_atoms(S):
    S.wait_vm("par")
    for k in range(8): S(f"v_lshlrev_b32 v{160+k}, 16, v{160+k}")
    S(f"""
    v_mul_f32 v34, {f32(L_HI)}, v166
    v_mul_f32 v35, {f32(L_LO*0.6931471805599453)}, v166
    v_exp_f32 v34, v34
    s_nop 0
    v_fmac_f32 v34, v34, v35
    v_cvt_pk_bf16_f32 v34, v34, v34
    v_and_b32 v34, 0xffff0000, v34
    v_mul_f32 v14, v34, v160
    v_mul_f32 v15, v34, v161
    v_mul_f32 v14, {f32(LOG2E)}, v14
    v_mul_f32 v15, {f32(0.15915494309189535)}, v15
    v_mul_f32 v162, v34, v162
    v_mul_f32 v163, v34, v163
    """)
    cmul(S, CC, 164, 162)
    S(f"v_mul_f32 v38, v{CC}, v{CC}")
    S(f"v_fmac_f32 v38, v{CC+1}, v{CC+1}")
    wave_max(S, 38, sA)
    S(f"""
    v_mov_b32 v38, {f32(1e-36)}
    v_max_f32 v38, s{sA}, v38
    v_rsq_f32 v39, v38
    s_nop 0
    v_mul_f32 v38, v38, v39
    v_readfirstlane_b32 s{SIGH}, v38
    v_mul_f32 v{RR}, v{CC}, v39
    v_mul_f32 v{RR+1}, v{CC+1}, v39
    """)
    yield
    S(f"""
    s_lshl_b32 s{sA}, s{sHW}, 12
    s_add_u32 s{sA}, s{sA}, {ESCR}
    v_lshlrev_b32 v33, 2, v0
    """)
    for i in range(8):
        S(f"v_xor_b32 v{WA+i}, {32*i}, v33")
        S(f"v_add_u32 v{WA+i}, s{sA}, v{WA+i}")
    S(f"""
    v_and_b32 v33, 15, v0
    v_lshrrev_b32 v34, 4, v0
    v_and_b32 v35, 7, v33
    v_lshlrev_b32 v35, 1, v35
    v_xor_b32 v35, v35, v34
    v_lshlrev_b32 v35, 4, v35
    v_lshl_add_u32 v35, v33, 8, v35
    """)
    for s in range(4):
        S(f"v_xor_b32 v{RA+s}, {64*s}, v35")
        S(f"v_add_u32 v{RA+s}, s{sA}, v{RA+s}")
    yield
    zpow(S, Z1, 1); zpow(S, Z8, 8)
    yield
    zpow(S, Z128, 128)
    cmul(S, Z2, Z1, Z1); cmul(S, Z4, Z2, Z2)
    yield
    S(f"v_mov_b32 v{CV}, 0x00003c00")
    S(f"v_cvt_pk_f16_f32 v{CV+1}, v{Z8}, v{Z8+1}")
    cur = Z8
    for j in range(2, 16):
        nxt = PA if cur != PA else PB
        cmul(S, nxt, cur, Z8)
        S(f"v_cvt_pk_f16_f32 v{CV+j}, v{nxt}, v{nxt+1}")
        cur = nxt
        if j == 8: yield
    write_tile(S)
    read_frags(S, BE, "be")
    yield
    for i in range(1, 17):
        cmul(S, RR+2*i, RR+2*(i-1), Z128)
        if i == 8: yield
    yield
    def put(row, reg):
        S(f"v_cvt_pk_f16_f32 v{CV+row}, v{reg}, -v{reg+1}")
    def chain(row0, start, mult, n):
        put(row0, start)
        cur = start
        for j in range(1, n):
            nxt = PA if cur != PA else PB
            cmul(S, nxt, cur, mult)
            put(row0+j, nxt)
            cur = nxt
    def tile_out(t):
        write_tile(S)
        read_frags(S, AE + 16*(t & 1)*0, f"ae{t}")
    def tile_mm(t):
        S.wait_lg(f"ae{t}")
        for s in range(4):
            c = "0" if s == 0 else vr(DD+4*t, 4)
            S(f"v_mfma_f32_16x16x32_f16 {vr(DD+4*t,4)}, {vr(AE+4*s,4)}, {vr(BE+4*s,4)}, {c}")
    chain(0, RR, Z1, 8); yield
    chain(8, RR+2, Z1, 8)
    tile_out(0); yield
    chain(0, RR+4, Z2, 4); chain(4, RR+6, Z2, 4); yield
    for k in range(4): chain(8+2*k, RR+8+2*k, Z4, 2)
    S.wait_lg("be")
    tile_mm(0)
    tile_out(1); yield
    for i in range(8): put(i, RR+16+2*i)
    put(8, RR+32)
    for i in range(9, 16): S(f"v_mov_b32 v{CV+i}, 0")
    tile_mm(1)
    tile_out(2); yield
    tile_mm(2)
    S(f"s_cmp_eq_u32 s{sNH}, 1")
    S(f"s_cbranch_scc0 L_kx")
    S(f"v_mov_b32 v34, s{SIGH}")
    S(f"s_mul_i32 s{sA}, s{sCH}, 8192")
    S(f"s_add_u32 s{sA}, s{sA}, {ESCR + 4096}")
    S(f"v_add_u32 v33, s{sA}, v2")
    S(f"v_mov_b32 v35, s{sA}")
    save = (list(S.lg), S.lg_done)
    for t in range(3):
        S(f"ds_write_b128 v33, {vr(DD+4*t,4)} offset:{t*1024}")
    S(f"ds_write_b32 v35, v34 offset:3072")
    S("L_kx:")
    S("s_waitcnt lgkmcnt(0)"); S.lg_done = len(S.lg)
    yield "DX"

def kgen_zero(S):
    S(f"""
    s_mul_i32 s{sA}, s{sCH}, {KCSZ}
    s_add_u32 s{sA}, s{sA}, {KC}
    v_mov_b32 v34, 0
    v_mov_b32 v35, 0
    v_mov_b32 v36, 0
    v_mov_b32 v37, 0
    v_add_u32 v33, s{sA}, v2
    """)
    S(f"s_lshl_b32 s{sB}, s{sNH}, 10")
    S(f"v_add_u32 v33, s{sB}, v33")
    S.lds("ds_write_b128 v33, v[34:37]", "z")
    S(f"v_cmp_gt_u32 vcc, {164-128}, v0")
    S(f"s_cmp_eq_u32 s{sNH}, 0")
    S(f"s_cselect_b64 {sp(sP0)}, -1, 0")
    S(f"s_and_b64 exec, vcc, {sp(sP0)}")
    S.lds("ds_write_b128 v33, v[34:37] offset:2048", "z")
    S("s_mov_b64 exec, -1")

def ut_zero(S):
    S(f"""
    s_mul_i32 s{sA}, s{sCH}, {UTSZ}
    s_add_u32 s{sA}, s{sA}, {UT}
    v_mov_b32 v34, 0
    v_mov_b32 v35, 0
    v_mov_b32 v36, 0
    v_mov_b32 v37, 0
    v_add_u32 v33, s{sA}, v2
    v_cmp_gt_u32 vcc, 34, v0
    s_mov_b64 exec, vcc
    """)
    S.lds("ds_write_b128 v33, v[34:37]", "z")
    S(f"v_cmp_gt_u32 vcc, 2, v0")
    S("s_mov_b64 exec, vcc")
    S.lds(f"ds_write_b128 v33, v[34:37] offset:{(272+2048)*2}", "z")
    S("s_mov_b64 exec, -1")

def kgen_combine(S):
    S(f"s_cmp_eq_u32 s{sNH}, 0")
    S(f"s_cbranch_scc0 L_kc")
    save = (list(S.lg), S.lg_done)
    S(f"""
    s_mul_i32 s{sA}, s{sCH}, 8192
    s_add_u32 s{sA}, s{sA}, {ESCR + 4096}
    v_add_u32 v33, s{sA}, v2
    v_mov_b32 v35, s{sA}
    """)
    for t in range(3):
        S(f"ds_read_b128 {vr(DP+4*t,4)}, v33 offset:{t*1024}")
    S("ds_read_b32 v38, v35 offset:3072")
    S("s_waitcnt lgkmcnt(0)")
    S(f"""
    v_mov_b32 v39, s{SIGH}
    v_and_b32 v34, 0x7fffffff, v167
    v_mul_f32 v34, {f32(1/1024)}, v34
    v_max3_f32 v34, v34, v38, v39
    v_rcp_f32 v35, v34
    s_nop 0
    v_mul_f32 v38, v38, v35
    v_mul_f32 v39, v39, v35
    v_mul_f32 v36, v167, v35
    s_lshl_b32 s{sA}, s{sCH}, 2
    s_add_u32 s{sA}, s{sA}, {MISC}
    v_mov_b32 v37, s{sA}
    ds_write_b32 v37, v34
    """)
    for k in range(12):
        S(f"v_mul_f32 v{DD+k}, v39, v{DD+k}")
        S(f"v_fmac_f32 v{DD+k}, v38, v{DP+k}")
    S(f"""
    v_cmp_eq_u32 vcc, 0, v0
    s_nop 1
    v_cndmask_b32 v36, 0, v36, vcc
    v_add_f32 v{DD}, v{DD}, v36
    s_mul_i32 s{sA}, s{sCH}, {KCSZ}
    s_add_u32 s{sA}, s{sA}, {KC}
    v_and_b32 v33, 15, v0
    v_lshrrev_b32 v34, 4, v0
    """)
    T0, T1, T2 = DD, DD+4, DD+8
    S(f"v_cvt_pk_f16_f32 v40, v{T1}, v{T1+1}")
    S(f"v_cvt_pk_f16_f32 v41, v{T1+2}, v{T1+3}")
    S(f"v_cvt_pk_f16_f32 v42, v{T2}, v{T2+1}")
    S(f"v_cvt_pk_f16_f32 v43, v{T2+2}, v{T2+3}")
    S(f"v_cvt_pk_f16_f32 v44, v{T0+3}, v{T0+2}")
    S(f"v_cvt_pk_f16_f32 v45, v{T0+1}, v{T0}")
    def w16(addr, reg, hi, off):
        S(f"ds_write_b16{'_d16_hi' if hi else ''} v{addr}, v{reg} offset:{off}")
    S(f"""
    v_lshlrev_b32 v35, 8, v34
    v_lshl_add_u32 v35, v33, 3, v35
    v_sub_u32 v35, {1059 - 5 - 128}, v35
    v_lshlrev_b32 v35, 1, v35
    v_add_u32 v35, s{sA}, v35
    v_cmp_le_u32 vcc, 32, v0
    s_mov_b64 exec, vcc
    """)
    for pair, (reg) in enumerate((40, 41)):
        o = 256*(1 - pair)
        for e in range(8):
            w16(35, reg, e < 3, o + 2*e)
    S(f"""
    s_mov_b64 exec, -1
    v_lshlrev_b32 v35, 7, v34
    v_lshl_add_u32 v35, v33, 3, v35
    v_sub_u32 v35, {1059 - 6 - 256}, v35
    v_lshlrev_b32 v35, 1, v35
    v_add_u32 v35, s{sA}, v35
    s_mov_b32 exec_hi, 0
    """)
    seq = [(41, True), (41, False), (41, False), (41, False), (40, True), (40, False), (40, False), (40, False)]
    for e, (reg, hi) in enumerate(seq): w16(35, reg, hi, 2*e)
    S(f"""
    v_lshrrev_b32 v36, 1, v33
    v_lshl_add_u32 v36, v34, 5, v36
    v_and_b32 v37, 1, v33
    v_mul_u32_u24 v38, {SEC_O - SEC_E - 2}, v37
    v_sub_u32 v36, {68 - 24}, v36
    v_lshlrev_b32 v36, 1, v36
    v_add3_u32 v36, v36, v38, s{sA}
    """)
    for r, (reg, hi) in enumerate(((42, False), (42, True), (43, False), (43, True))):
        w16(36, reg, hi, SEC_E + 2*(24 - 8*r))
    S("s_mov_b64 exec, -1")
    S(f"""
    v_readlane_b32 s{sB}, v42, 0
    v_readlane_b32 s{sC}, v42, 32
    v_lshlrev_b32 v35, 1, v0
    v_add_u32 v35, s{sA}, v35
    v_mov_b32 v36, s{sB}
    v_mov_b32 v37, 0
    v_mov_b32 v38, s{sC}
    s_mov_b64 exec, 0x7f
    ds_write_b16 v35, v36 offset:{2*(1059-1028)}
    s_mov_b64 exec, 1
    ds_write_b16 v35, v37 offset:{SEC_E + 2*68}
    ds_write_b16 v35, v38 offset:{SEC_E + 2*4}
    s_mov_b64 exec, -1
    """)
    S(f"""
    v_lshrrev_b32 v35, 1, v34
    v_lshlrev_b32 v35, 7, v35
    v_lshl_add_u32 v35, v33, 3, v35
    v_and_b32 v36, 1, v34
    v_lshl_add_u32 v35, v36, 2, v35
    v_sub_u32 v35, 1056, v35
    v_lshlrev_b32 v35, 1, v35
    v_add_u32 v35, s{sA}, v35
    ds_write_b64 v35, v[44:45]
    L_kc:
    s_waitcnt lgkmcnt(0)
    """)
    S.lg_done = len(S.lg)

def kgen_build(S):
    S(f"""
    s_mul_i32 s{sA}, s{sCH}, {KCSZ}
    s_add_u32 s{sA}, s{sA}, {KC}
    s_lshl_b32 s{sB}, s{sNH}, 10
    s_add_u32 s{sA}, s{sA}, s{sB}
    v_add_u32 v33, s{sA}, v2
    """)
    def rnd(off, tag):
        S.lds(f"ds_read_b128 v[40:43], v33 offset:{off}", tag)
        S.lds(f"ds_read_b64 v[44:45], v33 offset:{off+16}", tag)
        S.wait_lg(tag)
        for i in range(4): S(f"v_alignbit_b32 v{48+i}, v{41+i}, v{40+i}, 16")
        for i in range(4): S(f"v_alignbit_b32 v{52+i}, v{42+i}, v{41+i}, 16")
        S.lds(f"ds_write_b128 v33, v[48:51] offset:{off+KCOPY}", "bw")
        S.lds(f"ds_write2_b32 v56, v41, v42 offset0:0 offset1:1", "bw")
        S.lds(f"ds_write2_b32 v56, v43, v44 offset0:2 offset1:3", "bw")
        S.lds(f"ds_write_b128 v33, v[52:55] offset:{off+3*KCOPY}", "bw")
    S(f"v_add_u32 v56, {2*KCOPY}, v33")
    rnd(0, "br0")
    S(f"v_cmp_gt_u32 vcc, {162-128}, v0")
    S(f"s_cmp_eq_u32 s{sNH}, 0")
    S(f"s_cselect_b64 {sp(sP0)}, -1, 0")
    S(f"s_and_b64 exec, vcc, {sp(sP0)}")
    S(f"s_cbranch_execz L_kb")
    S(f"v_add_u32 v56, 2048, v56")
    save = (list(S.lg), S.lg_done)
    S("ds_read_b128 v[40:43], v33 offset:2048")
    S("ds_read_b64 v[44:45], v33 offset:2064")
    S("s_waitcnt lgkmcnt(0)")
    for i in range(4): S(f"v_alignbit_b32 v{48+i}, v{41+i}, v{40+i}, 16")
    for i in range(4): S(f"v_alignbit_b32 v{52+i}, v{42+i}, v{41+i}, 16")
    S(f"ds_write_b128 v33, v[48:51] offset:{2048+KCOPY}")
    S("ds_write2_b32 v56, v41, v42 offset0:0 offset1:1")
    S("ds_write2_b32 v56, v43, v44 offset0:2 offset1:3")
    S(f"ds_write_b128 v33, v[52:55] offset:{2048+3*KCOPY}")
    S("L_kb:")
    S("s_mov_b64 exec, -1")
    S.wait_lg_all()

XN = 192
def xnt_addr(S):
    S(f"""
    v_subrev_u32 v190, 256, v1
    v_lshrrev_b32 v33, 2, v190
    v_lshlrev_b32 v33, 14, v33
    v_and_b32 v34, 3, v190
    v_lshl_add_u32 v191, v34, 4, v33
    s_lshl_b32 s{sA}, s{sD0}, 5
    s_add_u32 s{sXoff}, s{sA}, {WS_XNT}
    """)
def xnt_loads(S, tag=True):
    for k in range(4):
        S(f"s_add_u32 s{sA}, s{sXoff}, {k*64*16384}")
        txt = f"buffer_load_dwordx4 {vr(XN+4*k,4)}, v191, {SWS}, s{sA} offen sc1"
        if tag: S.vmem(txt, "xnt")
        else: S(txt)

def xnt_finish(S):
    S.wait_vm("xnt")
    S(f"s_mov_b32 s{sRetry}, 0")
    S("L_u_chk:")
    for k in range(16):
        S(f"v_xor_b32 v34, s{sTagHi}, v{XN+k}")
        if k == 0: S("v_mov_b32 v35, v34")
        else: S("v_or_b32 v35, v35, v34")
    S(f"""
    v_and_b32 v35, 0xffff0000, v35
    v_cmp_ne_u32 vcc, 0, v35
    s_cbranch_vccz L_u_ok
    s_add_u32 s{sRetry}, s{sRetry}, 1
    s_cmp_ge_u32 s{sRetry}, 4096
    s_cbranch_scc1 L_u_ok
    """)
    xnt_loads(S, tag=False)
    S("s_waitcnt vmcnt(0)")
    S("s_branch L_u_chk")
    S("L_u_ok:")
    S(f"""
    v_lshrrev_b32 v33, 2, v190
    v_lshlrev_b32 v33, 4, v33
    v_and_b32 v34, 1, v190
    v_lshl_add_u32 v33, v34, 3, v33
    v_bfe_u32 v34, v190, 1, 1
    v_mul_u32_u24 v34, {UTSZ}, v34
    v_add3_u32 v33, v33, v34, s{sWoff}
    s_mov_b32 s{sA}, 0x05040100
    """)
    for k in range(4):
        b = XN + 4*k
        S(f"v_perm_b32 v{b}, v{b+1}, v{b}, s{sA}")
        S(f"v_perm_b32 v{b+1}, v{b+3}, v{b+2}, s{sA}")
        S.lds(f"ds_write_b64 v33, {vr(b,2)} offset:{k*1024}", "uw")
    S.wait_lg_all()

def w2_setup(S):
    S(f"""
    v_lshrrev_b32 v33, 3, v0
    v_lshlrev_b32 v33, 10, v33
    v_and_b32 v34, 7, v0
    v_bfe_u32 v35, v0, 4, 1
    v_lshlrev_b32 v35, 2, v35
    v_xor_b32 v34, v34, v35
    v_lshl_add_u32 v189, v34, 4, v33
    s_lshr_b32 s{sA}, s{sHW}, 1
    s_and_b32 s{sB}, s{sHW}, 1
    s_mul_i32 s{sC}, s{sA}, {688*1024}
    s_lshl_b32 s{sD}, s{sB}, 15
    s_add_u32 s{sC}, s{sC}, s{sD}
    s_lshl_b32 s{sD}, s{sC2}, 1
    s_add_u32 s{sH0}, s{sC}, s{sD}
    s_lshl_b32 s{sA}, s{sA}, 13
    s_lshl_b32 s{sB}, s{sB}, 12
    s_add_u32 s{sH1}, s{sA}, s{sB}
    """)
def w2_dma(S, j):
    S(f"s_add_u32 s{sA}, s{sH0}, {j*65536}")
    for q in range(4):
        S(f"s_add_u32 m0, s{sH1}, {slot2(j) + q*1024}")
        S(f"s_add_u32 s{sB}, s{sA}, {q*8192}")
        S.vmem(f"buffer_load_dwordx4 v189, {SW2}, s{sB} offen lds", f"c{j}")

def mid_dma(S, c):
    S(f"s_lshl_b32 s{sF}, s{sHW}, 2")
    for q in range(4): dma_x(S, c, sF, q, f"x{c}")
    dma_w(S, None, c, sHW, f"x{c}")

def dump_lds(S, off, nbytes, wsoff, stride):
    S(f"s_mul_i32 s{sA}, s2, {stride}")
    S(f"s_add_u32 s{sA}, s{sA}, {wsoff}")
    S(f"v_lshlrev_b32 v33, 4, v1")
    for k in range((nbytes + 4095)//4096):
        S(f"v_add_u32 v34, {off + 4096*k}, v33")
        S(f"ds_read_b128 v[36:39], v34")
        S("s_waitcnt lgkmcnt(0)")
        S(f"s_add_u32 s{sB}, s{sA}, {4096*k}")
        S.vmem(f"buffer_store_dwordx4 v[36:39], v33, {SWS}, s{sB} offen", "dump")
        S("s_waitcnt vmcnt(0)")
    S.vm_done = len(S.vm)

def build_C():
    S = Stream("C")
    S("L_roleC:")
    stamp(S, 0)
    first_loads(S)
    h_offsets(S)
    S(f"s_cmp_eq_u32 s{sG1ok}, 1")
    S(f"s_cselect_b32 s{sM}, s{sM}, 1000")
    h_clear(S)
    dma_setup(S)
    stamp(S, 10)
    initial_dma(S, "C")
    stamp(S, 11)
    nonce_setup(S)
    stamp(S, 12)
    p1_part1(S, "clear")
    stamp(S, 14)
    S.barrier("P1")
    stamp(S, 1)
    p1_part2(S)
    stamp(S, 15)
    gemm1(S)
    stamp(S, 3)
    g1_epilogue(S)
    stamp(S, 4)
    S.barrier("CONV")
    stamp(S, 5)
    if OPT.dumpK: dump_lds(S, KC, 2*KCSZ + 0, 0x1000000, 32768); dump_lds(S, UT, 2*UTSZ, 0x1000000 + 21504, 32768)
    conv(S)
    stamp(S, 6)
    gemm2(S)
    stamp(S, 8)
    final_C(S)
    final_all(S)
    stamp(S, 9)
    stamp_flush(S)
    S(f"s_or_b32 s{sA}, s2, s{sWave}")
    S(f"s_cmp_eq_u32 s{sA}, 0")
    S("s_cbranch_scc0 L_end")
    S(f"v_mov_b32 v33, s{sN}")
    S("s_mov_b64 exec, 1")
    S(f"buffer_store_dword v33, off, {SWS}, 0 sc1")
    S("s_branch L_end")
    return S

def build_H():
    S = Stream("H")
    S("L_roleH:")
    stamp(S, 0)
    first_loads(S)
    param_loads(S)
    code_prefetch(S)
    dma_setup(S)
    stamp(S, 10)
    initial_dma(S, "H")
    stamp(S, 11)
    nonce_setup(S)
    stamp(S, 12)
    p1_part1(S, "xrow")
    stamp(S, 14)
    S.barrier("P1")
    stamp(S, 1)
    p1_part2(S)
    kgen_zero(S)
    atoms = kgen_atoms(S)
    done = False
    def run(n):
        nonlocal done
        for _ in range(n):
            if done: return
            r = next(atoms)
            if r == "DX": done = True
    S.wait_vm("x0")
    S.barrier("G0")
    stamp(S, 2)
    plan = {0: 3, 1: 3, 2: 3, 3: 3, 4: 99}
    for c in range(8):
        if 1 <= c <= 4: mid_dma(S, c + 3)
        if c in plan: run(plan[c])
        if c == 4: stamp(S, 3)
        if c == 5:
            kgen_combine(S)
            xnt_addr(S)
            xnt_loads(S)
        if c == 6:
            kgen_build(S)
        if c == 7:
            S(f"s_mov_b32 s{sWoff}, {UT + 272*2}")
            ut_zero(S)
        if c + 1 <= 7:
            S.wait_vm(f"x{c+1}")
            if c + 1 in (1, 3): S.wait_vm(f"w{c+1}")
        S.wait_lg_all()
        stamp(S, 16 + c)
        S.barrier(f"G{c+1}")
    assert done
    stamp(S, 4)
    w2_setup(S)
    xnt_finish(S)
    stamp(S, 5)
    for j in range(3): w2_dma(S, j)
    S.barrier("CONV")
    for j in range(3, 7): w2_dma(S, j)
    xtile_load(S)
    stamp(S, 6)
    S.wait_vm("c0")
    S.barrier("W0")
    stamp(S, 7)
    for j in range(11):
        if j == 0:
            w2_dma(S, 7); w2_dma(S, 8)
        if j == 1: w2_dma(S, 9)
        if j == 2: w2_dma(S, 10)
        if j < 10: S.wait_vm(f"c{j+1}")
        S.barrier(f"W{j+1}")
    S.barrier("FX")
    final_all(S)
    stamp(S, 9)
    stamp_flush(S)
    S("s_branch L_end")
    return S

def generate():
    P = Stream("P")
    prologue(P)
    P(f"s_cmp_ge_u32 s{sWave}, 4")
    P("s_cbranch_scc1 L_roleH")
    C = build_C(); H = build_H()
    assert C.bars == H.bars, (C.bars, H.bars)
    lines = P.L + C.L + H.L + ["L_end:", "    s_endpgm"]
    lines, nn = hazard_pass(lines)
    head = open("cdna_kernels/" + KNAME[:-7] + ".s.ref").read().split("; Override launch")[0]
    txt = head + f"; @launch grid=(256,1,1) block=(512,1,1) lds={LDS_BYTES}\n"
    txt += f""".amdgcn_target "amdgcn-amd-amdhsa--gfx950"
.text
.globl {KNAME}
.p2align 8
.type {KNAME},@function
{KNAME}:
""" + "\n".join(lines) + f"""
.section .rodata,"a"
.p2align 6
.amdhsa_kernel {KNAME}
  .amdhsa_next_free_vgpr 256
  .amdhsa_next_free_sgpr 102
  .amdhsa_accum_offset 256
  .amdhsa_group_segment_fixed_size 0
  .amdhsa_kernarg_size 136
  .amdhsa_user_sgpr_count 2
  .amdhsa_user_sgpr_kernarg_segment_ptr 1
  .amdhsa_system_sgpr_workgroup_id_x 1
.end_amdhsa_kernel
"""
    return txt, nn

if __name__ == "__main__":
    out = sys.argv[1] if len(sys.argv) > 1 else "k.s"
    if "stamps" in sys.argv: OPT.stamps = True
    if "dumpK" in sys.argv: OPT.dumpK = True
    txt, nn = generate()
    open(out, "w").write(txt)
    print("written", out, "lines", txt.count("\n"), "nops inserted", nn)
```

```python
import sys
from gen import *
import gen as g1
from asmlib import Stream, hazard_pass

S1T = MISC + 64
B1T = S1T + 384
sXS, sWS, sXL, sWL = 82, 83, 98, 99
sHa = (85, 86, 95)

def weave(S, mains, fills, lead=0, per=None):
    def put(x):
        if callable(x): x()
        else: S(x)
    fills = list(fills)
    for _ in range(min(lead, len(fills))): put(fills.pop(0))
    n = len(mains)
    for i, m in enumerate(mains):
        put(m)
        k = per if per is not None else -(-len(fills) // (n - i))
        if i == n - 1: k = len(fills)
        for _ in range(min(k, len(fills))): put(fills.pop(0))

def dma_setup2(S):
    S(f"""
    v_lshrrev_b32 v33, 3, v0
    v_lshlrev_b32 v33, 10, v33
    v_and_b32 v34, 7, v0
    v_lshrrev_b32 v35, 4, v0
    v_xor_b32 v36, v34, v35
    v_lshl_add_u32 v240, v36, 4, v33
    v_xor_b32 v36, 4, v36
    v_lshl_add_u32 v241, v36, 4, v33
    v_add_u32 v241, {8192-1024}, v241
    v_add_u32 v242, {2*(8192-1024)}, v240
    v_add_u32 v243, {2*(8192-1024)}, v241
    s_mov_b32 s{sA}, 0x15555556
    s_movk_i32 s{sB}, 2752
    """)
    for b in range(3):
        S(f"""
        v_add_u32 v33, {64*b}, v0
        v_mul_hi_u32 v34, v33, s{sA}
        v_mul_u32_u24 v35, 12, v34
        v_sub_u32 v35, v33, v35
        v_lshlrev_b32 v35, 4, v35
        v_mad_u32_u24 v{244+b}, v34, s{sB}, v35
        """)
        if b: S(f"v_subrev_u32 v{244+b}, {1024*b}, v{244+b}")
    S(f"""
    s_lshl_b32 s{sA}, s{sR0}, 10
    s_lshl_b32 s{sB}, s{sF0}, 1
    s_cmp_eq_u32 s{sG1ok}, 1
    s_cselect_b32 s{sA}, s{sA}, {OOB}
    s_cselect_b32 s{sB}, s{sB}, {OOB}
    s_lshl_b32 s{sC}, s{sWave}, 15
    s_add_u32 s{sXS}, s{sA}, s{sC}
    s_mul_i32 s{sC}, s{sWave}, {16*2752}
    s_add_u32 s{sWS}, s{sB}, s{sC}
    s_lshl_b32 s{sXL}, s{sWave}, 12
    s_mul_i32 s{sWL}, s{sWave}, 3072
    s_add_u32 s{sWL}, s{sWL}, 16384
    """)

sRot1, sRot2, sKc = 100, 101, 84
def rot_setup(S):
    S(f"""
    s_lshr_b32 s{sA}, s{sI}, 2
    s_and_b32 s{sB}, s{sI}, 3
    s_lshl_b32 s{sB}, s{sB}, 1
    s_add_u32 s{sA}, s{sA}, s{sB}
    s_and_b32 s{sRot1}, s{sA}, 7
    s_cmp_ge_u32 s{sA}, 10
    s_cselect_b32 s{sB}, 10, 0
    s_sub_u32 s{sRot2}, s{sA}, s{sB}
    """)
    if OPT.norot:
        S(f"s_mov_b32 s{sRot1}, 0"); S(f"s_mov_b32 s{sRot2}, 0")

def kc2_ops(j, dst):
    if j == 10: return [f"s_mov_b32 s{dst}, 10"]
    return [f"s_add_u32 s{dst}, s{sRot2}, {j}", f"s_cmp_ge_u32 s{dst}, 10", f"s_cselect_b32 s{sP1+1}, 10, 0",
            f"s_sub_u32 s{dst}, s{dst}, s{sP1+1}"]

def dma_chunk_ops(S, c):
    slot = (c % 4)*SLOT1; tag = f"d{c}"
    ops = [f"s_add_u32 s{sKc}, s{sRot1}, {c}", f"s_and_b32 s{sKc}, s{sKc}, 7", f"s_lshl_b32 s{sA}, s{sKc}, 7",
           f"s_add_u32 m0, s{sXL}, {slot}", f"s_add_u32 s{sA}, s{sA}, s{sXS}"]
    for q in range(4):
        ops.append(lambda q=q: S.vmem(f"buffer_load_dwordx4 v{240+q}, {SU}, s{sA} offen offset:{1024*q} lds", tag))
    ops += [f"s_mul_i32 s{sB}, s{sKc}, {64*2752}", f"s_add_u32 m0, s{sWL}, {slot}", f"s_add_u32 s{sB}, s{sB}, s{sWS}"]
    for b in range(3):
        ops.append(lambda b=b: S.vmem(f"buffer_load_dwordx4 v{244+b}, {SW1}, s{sB} offen offset:{1024*b} lds", tag))
    return ops

def emit(S, ops):
    for x in ops:
        if callable(x): x()
        else: S(x)

ACC = 64; S1R = 112; SEL = 116
FS = (120, 136, 152)
WLO, XLO, WHI, XHI = 24, 27, 31, 34

def g1_addr2(S):
    S(f"""
    v_and_b32 v40, 31, v0
    v_lshrrev_b32 v41, 5, v0
    v_bfe_u32 v42, v0, 1, 3
    v_xor_b32 v42, v42, v41
    v_lshlrev_b32 v42, 4, v42
    v_lshl_add_u32 v42, v40, 7, v42
    s_lshl_b32 s{sA}, s{sWave}, 12
    v_add_u32 v{XLO}, s{sA}, v42
    """)
    for s in range(1, 4): S(f"v_xor_b32 v{XLO+s}, {32*s}, v{XLO}")
    S(f"""
    v_bfe_u32 v42, v0, 2, 2
    v_lshl_add_u32 v42, v41, 3, v42
    v_mul_u32_u24 v42, 192, v42
    v_bfe_u32 v43, v0, 4, 1
    v_lshl_add_u32 v42, v43, 5, v42
    v_bfe_u32 v43, v0, 1, 1
    v_lshl_add_u32 v42, v43, 4, v42
    v_and_b32 v43, 1, v0
    v_lshl_add_u32 v42, v43, 3, v42
    v_add_u32 v42, 16384, v42
    """)
    for a in range(3):
        S(f"s_add_u32 s{sA}, s{sWave}, {a}")
        S(f"s_cmp_ge_u32 s{sA}, 3")
        S(f"s_cselect_b32 s{sB}, 3, 0")
        S(f"s_sub_u32 s{sA}, s{sA}, s{sB}")
        S(f"s_cmp_ge_u32 s{sA}, 3")
        S(f"s_cselect_b32 s{sB}, 3, 0")
        S(f"s_sub_u32 s{sA}, s{sA}, s{sB}")
        S(f"s_lshl_b32 s{sB}, s{sA}, 6")
        S(f"v_add_u32 v{WLO+a}, s{sB}, v42")
        S(f"s_lshr_b32 s{sC}, s{sR0}, 5")
        S(f"s_add_u32 s{sC}, s{sC}, s{sWave}")
        S(f"s_mul_i32 s{sC}, s{sC}, 86")
        S(f"s_lshr_b32 s{sD}, s{sF0}, 4")
        S(f"s_lshl_b32 s{sE}, s{sA}, 1")
        S(f"s_add_u32 s{sD}, s{sD}, s{sE}")
        S(f"s_add_u32 s{sC}, s{sC}, s{sD}")
        S(f"s_lshl_b32 s{sC}, s{sC}, 10")
        S(f"s_add_u32 s{sC}, s{sC}, {WS_H}")
        S(f"s_cmp_lt_u32 s{sD}, 86")
        S(f"s_cselect_b32 s{sHa[a]}, s{sC}, {OOB}")
        S(f"s_lshl_b32 s{sB}, s{sA}, 7")
        S(f"s_add_u32 s{sB}, s{sB}, {S1T}")
        S(f"v_lshl_add_u32 v{44+a}, v41, 4, s{sB}")
    for k in range(3): S(f"v_add_u32 v{WHI+k}, {2*SLOT1}, v{WLO+k}")
    for k in range(4): S(f"v_add_u32 v{XHI+k}, {2*SLOT1}, v{XLO+k}")
    S(f"""
    v_and_b32 v40, 15, v0
    v_bfe_u32 v41, v0, 4, 1
    v_cmp_eq_u32 vcc, v40, v41
    v_mov_b32 v42, 0x3f803f80
    v_cndmask_b32 v{SEL}, 0, v42, vcc
    v_mov_b32 v{SEL+1}, v{SEL}
    v_mov_b32 v{SEL+2}, v{SEL}
    v_mov_b32 v{SEL+3}, v{SEL}
    """)

def g1_read_ops(S, sg):
    c, s = divmod(sg, 4); st = FS[sg % 3]
    slot = c % 4; hi = slot >= 2; base = (slot & 1)*SLOT1
    W = WHI if hi else WLO; X = XHI if hi else XLO
    tag = f"g{sg}"; ops = []
    ops.append(lambda: S.lds(f"ds_read_b128 {vr(st+12,4)}, v{X+s} offset:{base}", tag))
    for a in range(3):
        for h in range(2):
            off = base + (16*s + 4*h)*192
            ops.append(lambda a=a, h=h, off=off: S.lds(f"ds_read_b64_tr_b16 {vr(st+4*a+2*h,2)}, v{W+a} offset:{off}", tag))
    return ops

STATR = 216
def stat_load(S, tag=True):
    txt = f"buffer_load_dwordx4 {vr(STATR,4)}, v47, {SWS}, s{sE} offen sc1"
    if tag: S.vmem(txt, "stat")
    else: S(txt)

def gemm1_v2(S):
    g1_addr2(S)
    S.wait_vm("d0")
    S.barrier("G0"); stamp(S, 2)
    emit(S, g1_read_ops(S, 0)); emit(S, g1_read_ops(S, 1))
    pend = dma_chunk_ops(S, 3)
    for sg in range(32):
        c, s = divmod(sg, 4); st = FS[sg % 3]
        if s == 2 and c < 7:
            S.wait_vm(f"d{c+1}")
            S.barrier(f"G{c+1}"); stamp(S, 16 + c)
            if 4 <= c + 3 <= 7 and c >= 1: pend = dma_chunk_ops(S, c + 3)
        S.wait_lg(f"g{sg}")
        if sg == 31:
            S.barrier("G8")
        fills = []
        if sg + 2 < 32: fills += g1_read_ops(S, sg + 2)
        take = pend[:9]; pend = pend[9:]
        fills2 = list(take)
        if sg == 20:
            def ep():
                S(f"s_lshl_b32 s{sE}, s{sWave}, 5")
                S(f"s_add_u32 s{sE}, s{sE}, s{sR0}")
                S(f"s_lshl_b32 s{sE}, s{sE}, 4")
                S(f"s_add_u32 s{sE}, s{sE}, {WS_STATS}")
                S(f"v_and_b32 v47, 31, v0")
                S(f"v_lshlrev_b32 v47, 4, v47")
                stat_load(S)
            fills2.append(ep)
        mains = []
        for a in range(3):
            acc = ACC + 16*a
            cc = "0" if sg == 0 else vr(acc, 16)
            mains.append(f"v_mfma_f32_32x32x16_bf16 {vr(acc,16)}, {vr(st+4*a,4)}, {vr(st+12,4)}, {cc}")
        mains.insert(1, f"v_mfma_f32_16x16x32_bf16 {vr(S1R,4)}, {vr(st,4)}, {vr(SEL,4)}, {'0' if sg == 0 else vr(S1R,4)}")
        allf = fills + fills2
        weave(S, mains, allf)
    S(f"""
    v_lshrrev_b32 v42, 5, v0
    v_lshlrev_b32 v42, 4, v42
    v_sub_u32 v42, v44, v42
    v_and_b32 v41, 15, v0
    v_lshl_add_u32 v42, v41, 6, v42
    v_lshrrev_b32 v40, 4, v0
    v_lshl_add_u32 v42, v40, 4, v42
    v_cmp_gt_u32 vcc, 2, v41
    s_mov_b64 exec, vcc
    """)
    S.lds(f"ds_write_b128 v42, {vr(S1R,4)}", "s1w")
    S("s_mov_b64 exec, -1")
    S.wait_lg_all()
    S.barrier("G9")

def g1_epilogue2(S):
    SQ, BQ = 120, 168
    for a in range(3):
        for j in range(4):
            S.lds(f"ds_read_b128 {vr(SQ+16*a+4*j,4)}, v{44+a} offset:{32*j}", f"t{a}")
            S.lds(f"ds_read_b128 {vr(BQ+16*a+4*j,4)}, v{44+a} offset:{384+32*j}", f"t{a}")
    S.wait_vm("stat")
    S(f"s_mov_b32 s{sRetry}, 0")
    S("L_st_chk:")
    S(f"""
    v_xor_b32 v40, s{sN}, v{STATR+1}
    v_xor_b32 v41, s{sN}, v{STATR+3}
    v_or_b32 v40, v40, v41
    v_cmp_ne_u32 vcc, 0, v40
    s_cbranch_vccz L_st_ok
    s_add_u32 s{sRetry}, s{sRetry}, 1
    s_cmp_ge_u32 s{sRetry}, 4096
    s_cbranch_scc1 L_st_ok
    """)
    stat_load(S, tag=False)
    S("s_waitcnt vmcnt(0)")
    S("s_branch L_st_chk")
    S("L_st_ok:")
    m, r = STATR, STATR + 2
    n = 0
    for a in range(3):
        S.wait_lg(f"t{a}")
        for mm in range(2):
            base = 48 + 4*(n & 1); n += 1
            for q in range(2):
                j = 2*mm + q
                acc = ACC + 16*a + 4*j
                for h in range(2):
                    A = vr(acc+2*h, 2)
                    S(f"v_pk_fma_f32 {A}, {vr(SQ+16*a+4*j+2*h,2)}, {vr(m,2)}, {A} op_sel_hi:[1,0,1] neg_lo:[0,1,0] neg_hi:[0,1,0]")
                for h in range(2):
                    A = vr(acc+2*h, 2)
                    S(f"v_pk_fma_f32 {A}, {A}, {vr(r,2)}, {vr(BQ+16*a+4*j+2*h,2)} op_sel_hi:[1,0,1]")
                for e in range(4): S(f"v_max_f32 v{acc+e}, 0, v{acc+e}")
                for h in range(2):
                    A = vr(acc+2*h, 2)
                    S(f"v_pk_mul_f32 {A}, {A}, {A}")
                S(f"v_cvt_pk_bf16_f32 v{base+2*q}, v{acc}, v{acc+1}")
                S(f"v_cvt_pk_bf16_f32 v{base+2*q+1}, v{acc+2}, v{acc+3}")
            S(f"v_permlane32_swap_b32 v{base}, v{base+2}")
            S(f"v_permlane32_swap_b32 v{base+1}, v{base+3}")
            off = f" offset:1024" if mm else ""
            S.vmem(f"buffer_store_dwordx4 {vr(base,4)}, v2, {SWS}, s{sHa[a]} offen{off} sc1", "hst")

def h_first_loads(S):
    S(f"s_sub_u32 s{sHW}, s{sWave}, 4")
    S(f"s_lshl_b32 s{sA}, s{sHW}, 1")
    S(f"s_add_u32 s{sA}, s{sA}, s{sT0}")
    S(f"s_lshl_b32 s{sA}, s{sA}, 10")
    S.vmem(f"buffer_load_dwordx4 v[4:7], v2, {SU}, s{sA} offen", "xrow")
    S.vmem(f"buffer_load_dwordx4 v[8:11], v2, {SU}, s{sA} offen offset:1024", "xrow")
    S.vmem(f"buffer_load_dword v3, off, {SWS}, 0 sc1", "nonce")

def h_clear2(S):
    S(f"""
    s_lshr_b32 s{sC}, s{sR0}, 5
    s_add_u32 s{sC}, s{sC}, s{sHW}
    s_mul_i32 s{sC}, s{sC}, 86
    s_lshr_b32 s{sD}, s{sF0}, 4
    s_add_u32 s{sC}, s{sC}, s{sD}
    s_lshl_b32 s{sC}, s{sC}, 10
    s_add_u32 s{sC}, s{sC}, {WS_H}
    s_cmp_eq_u32 s{sG1ok}, 1
    s_cselect_b32 s{sD}, s{sD}, 1000
    """)
    for j in range(4): S(f"v_mov_b32 v{12+j}, 0x80008000")
    for k in range(6):
        S(f"s_add_u32 s{sA}, s{sD}, {k}")
        S(f"s_cmp_lt_u32 s{sA}, 86")
        S(f"s_cselect_b32 s{sA}, s{sC}, {OOB}")
        if k >= 4:
            S(f"s_add_u32 s{sA}, s{sA}, 4096")
        S.vmem(f"buffer_store_dwordx4 v[12:15], v2, {SWS}, s{sA} offen offset:{(k % 4)*1024} sc1", "clear")

def p1_row(raw, x, t, sreg):
    L = []
    for j in range(4):
        L.append(f"v_lshlrev_b32 v{x+2*j}, 16, v{raw+j}")
        L.append(f"v_and_b32 v{x+2*j+1}, 0xffff0000, v{raw+j}")
    L += [f"v_add_f32 v{t}, v{x}, v{x+1}", f"v_add_f32 v{t+1}, v{x+2}, v{x+3}", f"v_add_f32 v{t+2}, v{x+4}, v{x+5}",
          f"v_add_f32 v{t+3}, v{x+6}, v{x+7}", f"v_add_f32 v{t}, v{t}, v{t+1}", f"v_add_f32 v{t+2}, v{t+2}, v{t+3}",
          f"v_add_f32 v{t}, v{t}, v{t+2}"]
    def red():
        o = [f"v_add_f32_dpp v{t}, v{t}, v{t} {m} row_mask:0xf bank_mask:0xf" for m in ("row_shr:1", "row_shr:2", "row_shr:4", "row_shr:8")]
        o.append(f"v_add_f32_dpp v{t}, v{t}, v{t} row_bcast:15 row_mask:0xa bank_mask:0xf")
        o.append(f"v_add_f32_dpp v{t}, v{t}, v{t} row_bcast:31 row_mask:0xc bank_mask:0xf")
        o.append(f"v_readlane_b32 s{sreg}, v{t}, 63")
        return o
    L += red()
    L.append(f"v_mov_b32 v{t+1}, {f32(1/512)}")
    L.append(f"v_mul_f32 v{t+1}, s{sreg}, v{t+1}")
    L.append(f"v_sub_f32 v{t+2}, v{x}, v{t+1}")
    L.append(f"v_mul_f32 v{t}, v{t+2}, v{t+2}")
    for j in range(1, 8):
        L.append(f"v_sub_f32 v{t+2+(j & 1)}, v{x+j}, v{t+1}")
        L.append(f"v_fmac_f32 v{t}, v{t+2+(j & 1)}, v{t+2+(j & 1)}")
    L += red()
    L += [f"v_cvt_pk_bf16_f32 v{t+4}, v{t+1}, v{t+1}", f"v_and_b32 v{t+4}, 0xffff0000, v{t+4}",
          f"v_mov_b32 v{t+2}, {f32(1/512)}", f"v_mul_f32 v{t+2}, s{sreg}, v{t+2}",
          f"v_cvt_pk_bf16_f32 v{t+2}, v{t+2}, v{t+2}", f"v_and_b32 v{t+2}, 0xffff0000, v{t+2}",
          f"v_add_f32 v{t+2}, {f32(1e-5)}, v{t+2}",
          f"v_cvt_pk_bf16_f32 v{t+2}, v{t+2}, v{t+2}", f"v_and_b32 v{t+2}, 0xffff0000, v{t+2}",
          f"v_sqrt_f32 v{t+3}, v{t+2}", f"v_rcp_f32 v{t+5}, v{t+3}",
          f"v_fma_f32 v{t+7}, -v{t+3}, v{t+3}, v{t+2}", f"v_mul_f32 v{t+5}, 0.5, v{t+5}", f"v_fmac_f32 v{t+3}, v{t+7}, v{t+5}",
          f"v_cvt_pk_bf16_f32 v{t+3}, v{t+3}, v{t+3}", f"v_and_b32 v{t+3}, 0xffff0000, v{t+3}",
          f"v_rcp_f32 v{t+6}, v{t+3}", f"v_fma_f32 v{t+7}, -v{t+3}, v{t+6}, 1.0", f"v_fmac_f32 v{t+6}, v{t+7}, v{t+6}",
          f"v_mul_f32 v{t+7}, v{t+4}, v{t+6}"]
    for j in range(8): L.append(f"v_fma_f32 v{x+j}, v{x+j}, v{t+6}, -v{t+7}")
    for j in range(4): L.append(f"v_cvt_pk_f16_f32 v{raw+j}, v{x+2*j}, v{x+2*j+1}")
    return L

TA, TB_ = 56, 64
def p1a(S):
    S.wait_vm("xrow")
    stamp(S, 13)
    A = p1_row(4, 40, TA, sA); B = p1_row(8, 48, TB_, sB)
    n = len(A)
    for i, (a, b) in enumerate(zip(A, B)):
        S(a); S(b)
        if i in (n//4, n//2, 3*n//4): yield
    S(f"s_mul_i32 s{sA}, s{sHW}, {2*P1ROW}")
    S(f"s_add_u32 s{sA}, s{sA}, {P1BUF}")
    S(f"v_add_u32 v16, s{sA}, v2")
    S.lds("ds_write_b128 v16, v[4:7]", "p1w")
    S.lds(f"ds_write_b128 v16, v[8:11] offset:{P1ROW}", "p1w")
    S(f"v_mov_b32 v230, v{TA+4}")
    S(f"v_mov_b32 v231, v{TA+6}")
    S(f"v_mov_b32 v232, v{TB_+4}")
    S(f"v_mov_b32 v233, v{TB_+6}")
    yield

def p1b(S):
    S(f"""
    v_cmp_eq_u32 vcc, 0, v0
    v_mov_b32 v225, s{sN}
    v_mov_b32 v227, s{sN}
    v_cndmask_b32 v224, v232, v230, vcc
    v_cndmask_b32 v226, v233, v231, vcc
    s_lshl_b32 s{sA}, s{sHW}, 1
    s_add_u32 s{sA}, s{sA}, s{sT0}
    s_lshl_b32 s{sA}, s{sA}, 4
    s_add_u32 s{sA}, s{sA}, {WS_STATS}
    s_mov_b64 exec, 3
    """)
    S.vmem(f"buffer_store_dwordx4 v[224:227], v2, {SWS}, s{sA} offen sc1", "statst")
    S("s_mov_b64 exec, -1")
    S(f"""
    v_subrev_u32 v190, 256, v1
    v_and_b32 v228, 1, v190
    v_mul_u32_u24 v228, {4*P1ROW}, v228
    v_and_b32 v229, 0xfe, v190
    v_add3_u32 v228, v228, v229, s{sP1}
    """)
    for k in range(4):
        for j in range(4):
            S.lds(f"ds_read_u16 v{208+4*k+j}, v228 offset:{j*P1ROW + 256*k}", f"p1r{k}")
    S(f"v_lshlrev_b32 v229, 4, v190")
    S(f"s_lshl_b32 s{sA}, s{sTB}, 14")
    S(f"s_add_u32 s{sA}, s{sA}, {WS_XNT}")
    for k in range(4):
        S.wait_lg(f"p1r{k}")
        for j in range(4):
            S(f"v_or_b32 v{208+4*k+j}, s{sTagHi}, v{208+4*k+j}")
        S(f"s_add_u32 s{sB}, s{sA}, {4096*k}")
        S.vmem(f"buffer_store_dwordx4 v[{208+4*k}:{211+4*k}], v229, {SWS}, s{sB} offen sc1", "xntst")

def b1_table(S):
    S(f"""
    v_lshlrev_b32 v33, 1, v0
    v_add_u32 v33, s{sF0}, v33
    v_min_u32 v33, 1374, v33
    v_lshlrev_b32 v33, 1, v33
    """)
    S.vmem(f"global_load_dword v188, v33, {sp(sB1)}", "b1")
def b1_table_write(S):
    S.wait_vm("b1")
    S(f"""
    v_lshlrev_b32 v34, 16, v188
    v_and_b32 v35, 0xffff0000, v188
    v_lshlrev_b32 v33, 3, v0
    v_add_u32 v33, {B1T}, v33
    v_cmp_gt_u32 vcc, 48, v0
    s_mov_b64 exec, vcc
    """)
    S.lds("ds_write_b64 v33, v[34:35]", "b1w")
    S("s_mov_b64 exec, -1")

def conv_wave(S, tiles, svals, pairs):
    UF = 64; DWF = 96; GFR = 128
    S.lds(f"ds_read_b32 v28, v27", "sig")
    wins = []
    for s in svals:
        for (name, Z, band, vf) in (("E", 24, BANDE, VF + 4*s), ("O", 16, BANDO, VF + 8 + 4*s)):
            for q in range(2): wins.append((name, Z, band, vf, s, q))
    for n, (name, Z, band, vf, s, q) in enumerate(wins):
        S.lds(f"ds_read_b128 {vr(UF+4*n,4)}, v24 offset:{528 + 512*(2*s+q) - 2*Z}", f"U{n}")
    gl = []
    for (cl, s, delta) in pairs:
        for (name, vf, sec) in (("E", VF + 4*s, SEC_E), ("O", VF + 8 + 4*s, SEC_O)):
            gl.append((cl, vf, sec + 32*(7 - delta)))
    gops = []
    for n, (cl, vf, off) in enumerate(gl):
        gops.append(lambda n=n, off=off: S.lds(f"ds_read_b64 {vr(GFR+4*n,2)}, v26 offset:{off}", f"G{n}"))
        gops.append(lambda n=n, off=off: S.lds(f"ds_read_b64 {vr(GFR+4*n+2,2)}, v26 offset:{off+32}", f"G{n}"))
    mains = []
    for n, (name, Z, band, vf, s, q) in enumerate(wins):
        def m(n=n, band=band):
            S.wait_lg(f"U{n}")
            S(f"v_mfma_f32_16x16x32_f16 {vr(DWF+4*n,4)}, {vr(UF+4*n,4)}, {vr(band,4)}, 0")
        mains.append(m)
    weave(S, mains, gops)
    kmax = lambda c: min(32, 8*c + 8)
    xi_hi = 8*tiles[-1]; xi_lo = min(8*c - kmax(c) for c in tiles)
    steps = list(range(xi_hi, xi_lo - 1, -1))
    D = 3
    def bops(i):
        xi = steps[i]
        return [lambda: S.lds(f"ds_read_b128 {vr(BRING+4*(i % 4),4)}, v24 offset:{64*(xi+8)}", f"s{i}")]
    def fops(kn, tag):
        return [lambda: S.lds(f"ds_read_b64 {vr(FK+4*kn,2)}, v25 offset:{64*(32-kn)}", tag),
                lambda: S.lds(f"ds_read_b64 {vr(FK+4*kn+2,2)}, v25 offset:{64*(32-kn)+8}", tag)]
    for n, (name, Z, band, vf, s, q) in enumerate(wins):
        S(f"v_cvt_pk_f16_f32 v{vf+2*q}, v{DWF+4*n}, v{DWF+4*n+1}")
        S(f"v_cvt_pk_f16_f32 v{vf+2*q+1}, v{DWF+4*n+2}, v{DWF+4*n+3}")
    first = set(); mains = []
    for n, (cl, vf, off) in enumerate(gl):
        def m(n=n, cl=cl, vf=vf, c=(cl in first)):
            S.wait_lg(f"G{n}")
            acc = CACC + 4*cl
            S(f"v_mfma_f32_16x16x32_f16 {vr(acc,4)}, {vr(vf,4)}, {vr(GFR+4*n,4)}, {vr(acc,4) if c else '0'}")
        first.add(cl); mains.append(m)
    pre = []
    for i in range(D): pre += fops(i, f"s{i}") + bops(i)
    weave(S, mains, pre)
    for i, xi in enumerate(steps):
        fills = []
        if i + D < len(steps):
            kn = i + D
            if kn <= 32: fills += fops(kn, f"s{i+D}")
            fills += bops(i + D)
        S.wait_lg(f"s{i}")
        mains = []
        for cl, c in enumerate(tiles):
            k = 8*c - xi
            if 0 <= k <= kmax(c):
                acc = CACC + 4*cl
                cc = vr(acc, 4) if cl in first else "0"
                first.add(cl)
                mains.append(f"v_mfma_f32_16x16x32_f16 {vr(acc,4)}, {vr(FK+4*k,4)}, {vr(BRING+4*(i % 4),4)}, {cc}")
        weave(S, mains, fills)

def conv2(S):
    conv_setup(S)
    S(f"s_bitcmp1_b32 s{sWave}, 0")
    S(f"s_cbranch_scc1 L_convB")
    save_lg = (list(S.lg), S.lg_done); save_vm = (list(S.vm), S.vm_done)
    conv_wave(S, [0, 1, 2, 3, 4], [0], [(4, 0, 4)])
    conv_store(S, [0, 1, 2, 3, 4])
    S.wait_lg_all()
    S("s_branch L_convE")
    S("L_convB:")
    vmA = list(S.vm)
    S.lg, S.lg_done = save_lg; S.vm, S.vm_done = save_vm
    conv_wave(S, [5, 6, 7], [0, 1], [(0, 0, 5), (1, 0, 6), (1, 1, 4), (2, 0, 7), (2, 1, 5)])
    conv_store(S, [5, 6, 7])
    S(f"s_mov_b32 s{sB}, {OOB}")
    for _ in range(2):
        S.vmem(f"buffer_store_dwordx4 {vr(CACC,4)}, v33, {SWS}, s{sB} offen sc1", "yst")
    S.wait_lg_all()
    assert len(S.vm) == len(vmA)
    S("L_convE:")

BS = (160, 168, 176)
g1.XT = 184; g1.B2R = 188; g1.YR = 192; g1.PR = 208
XT, B2R, YR, PR = 184, 188, 192, 208

def h_load2(S, f):
    r = HR + 4*(f % RD)
    if f % 4 == 0:
        emit(S, kc2_ops(f // 4, sE))
        S(f"s_lshl_b32 s{sE}, s{sE}, 12")
        S(f"s_add_u32 s{sE}, s{sE}, s{sH0}")
    S.vmem(f"buffer_load_dwordx4 {vr(r,4)}, v2, {SWS}, s{sE} offen offset:{(f % 4)*1024} sc1", f"h{f}")

def w2_dma2(S, j):
    emit(S, kc2_ops(j, sA))
    S(f"s_lshl_b32 s{sA}, s{sA}, 16")
    S(f"s_add_u32 s{sA}, s{sA}, s{sH0}")
    for q in range(4):
        S(f"s_add_u32 m0, s{sH1}, {slot2(j) + q*1024}")
        S(f"s_add_u32 s{sB}, s{sA}, {q*8192}")
        S.vmem(f"buffer_load_dwordx4 v189, {SW2}, s{sB} offen lds", f"c{j}")

def g2_read_ops(S, f):
    j, s = divmod(f, 4); st = BS[f % 3]; tag = f"b{f}"; ops = []
    if s == 0:
        ops.append(f"v_add_u32 v26, {slot2(j)}, v24")
        ops.append(f"v_add_u32 v27, {slot2(j)}, v25")
    for lc in range(2):
        for h in range(2):
            ops.append(lambda lc=lc, h=h: S.lds(f"ds_read_b64_tr_b16 {vr(st+4*lc+2*h,2)}, v{26+lc} offset:{(16*s+4*h)*128}", tag))
    return ops

def h_check_ops(S, j, out_of_line):
    f0 = 4*j; ns = 4 if j < 10 else 3
    regs = [HR + 4*((f0+k) % RD) + e for k in range(ns) for e in range(4)]
    def body(T):
        o = [f"v_or3_b32 v33, v{regs[0]}, v{regs[1]}, v{regs[2]}"]
        k = 3
        while k < len(regs):
            if k + 1 < len(regs):
                o.append(f"v_or3_b32 v33, v33, v{regs[k]}, v{regs[k+1]}"); k += 2
            else:
                o.append(f"v_or_b32 v33, v33, v{regs[k]}"); k += 1
        o += ["v_and_b32 v33, 0x80008000, v33", "v_cmp_ne_u32 vcc, 0, v33"]
        return o
    ops = [lambda: S.wait_vm(f"h{f0+ns-1}")] + body(S)
    ops.append(f"s_cbranch_vccnz L_hr{j}")
    ops.append(f"L_hb{j}:")
    R = out_of_line
    R.append(f"L_hr{j}:")
    R.append(f"    s_mov_b32 s{sRetry}, 0")
    R.append(f"L_hr{j}_again:")
    R += ["    " + x for x in kc2_ops(j, sF)]
    R.append(f"    s_lshl_b32 s{sF}, s{sF}, 12")
    R.append(f"    s_add_u32 s{sF}, s{sF}, s{sH0}")
    for k in range(ns):
        R.append(f"    buffer_load_dwordx4 {vr(HR+4*((f0+k) % RD),4)}, v2, {SWS}, s{sF} offen offset:{k*1024} sc1")
    R.append("    s_waitcnt vmcnt(0)")
    R += ["    " + x for x in body(None)]
    R.append(f"    s_cbranch_vccz L_hb{j}")
    R.append(f"    s_add_u32 s{sRetry}, s{sRetry}, 1")
    R.append(f"    s_cmp_lt_u32 s{sRetry}, 4096")
    R.append(f"    s_cbranch_scc1 L_hr{j}_again")
    R.append(f"    s_branch L_hb{j}")
    return ops

def gemm2_v2(S, ool):
    gemm2_setup(S)
    g1.xtile_load(S)
    S(f"""
    s_lshr_b32 s{sA}, s{sWave}, 1
    s_lshl_b32 s{sA}, s{sA}, 5
    s_add_u32 s{sA}, s{sA}, s{sC2}
    v_and_b32 v28, 31, v0
    v_add_u32 v28, s{sA}, v28
    v_lshlrev_b32 v29, 1, v28
    """)
    S.vmem(f"global_load_ushort v{B2R}, v29, {sp(sB2)}", "b2")
    S(f"""
    v_lshlrev_b32 v28, 13, v28
    v_lshrrev_b32 v29, 5, v0
    v_lshl_add_u32 v28, v29, 4, v28
    s_and_b32 s{sB}, s{sWave}, 1
    s_lshl_b32 s{sB}, s{sB}, 5
    s_add_u32 s{sB}, s{sB}, s{sR2}
    s_lshl_b32 s{sB}, s{sB}, 2
    s_add_u32 s{sG}, s{sB}, {WS_Y}
    """)
    for f in range(RD): h_load2(S, f)
    S.barrier("W0"); stamp(S, 7)
    emit(S, g2_read_ops(S, 0)); emit(S, g2_read_ops(S, 1))
    emit(S, h_check_ops(S, 0, ool))
    for f in range(43):
        j, s = divmod(f, 4); st = BS[f % 3]
        if s == 2 and j < 10:
            S.barrier(f"W{j+1}")
        S.wait_lg(f"b{f}")
        fills = []
        if f + 2 < 43: fills += g2_read_ops(S, f + 2)
        after = []
        if f + RD < 43: after.append(lambda f=f: h_load2(S, f + RD))
        if f + RD == 43: after.append(lambda: g1.y_loads(S))
        mains = []
        for lc in range(2):
            acc = ACC2 + 16*lc
            c = "0" if f == 0 else vr(acc, 16)
            mains.append(f"v_mfma_f32_32x32x16_bf16 {vr(acc,16)}, {vr(HR+4*(f % RD),4)}, {vr(st+4*lc,4)}, {c}")
        weave(S, mains, fills)
        emit(S, after)
        if s == 3 and j < 10:
            emit(S, h_check_ops(S, j + 1, ool))

def build_C2(ool):
    S = Stream("C")
    S("L_roleC:")
    stamp(S, 0)
    rot_setup(S)
    dma_setup2(S)
    stamp(S, 10)
    for c in range(3): emit(S, dma_chunk_ops(S, c))
    S.vmem(f"buffer_load_dword v3, off, {SWS}, 0 sc1", "nonce")
    stamp(S, 11)
    gemm1_v2_pre = None
    if OPT.skipC:
        for c in range(10): S.barrier(f"G{c}"); stamp(S, {0: 2}.get(c, 15 + c))
    else:
        gemm1_v2(S)
    stamp(S, 3)
    if OPT.stop == "G9":
        stamp_flush(S); S("s_branch L_end"); return S
    nonce_setup(S)
    g1_epilogue2(S)
    stamp(S, 4)
    S.barrier("CONV")
    stamp(S, 5)
    if OPT.dumpK: dump_lds(S, KC, 2*KCSZ + 0, 0x1000000, 32768); dump_lds(S, UT, 2*UTSZ, 0x1000000 + 21504, 32768)
    conv2(S)
    stamp(S, 6)
    gemm2_v2(S, ool)
    stamp(S, 8)
    final_C(S)
    final_all(S)
    stamp(S, 9)
    stamp_flush(S)
    S(f"s_or_b32 s{sA}, s2, s{sWave}")
    S(f"s_cmp_eq_u32 s{sA}, 0")
    S("s_cbranch_scc0 L_end")
    S(f"v_mov_b32 v33, s{sN}")
    S("s_mov_b64 exec, 1")
    S(f"buffer_store_dword v33, off, {SWS}, 0 sc1")
    S("s_branch L_end")
    return S

def count_since(S, n0): return len(S.L) - n0

def build_H2():
    S = Stream("H")
    S("L_roleH:")
    stamp(S, 0)
    if OPT.skipH:
        for c in range(10): S.barrier(f"G{c}"); stamp(S, {0: 2}.get(c, 15 + c))
        stamp(S, 4); stamp_flush(S); S("s_branch L_end"); return S
    h_first_loads(S)
    rot_setup(S)
    param_loads(S)
    h_clear2(S)
    code_prefetch(S)
    b1_table(S)
    S(f"s_mov_b32 s{sP1}, {P1BUF}")
    kgen_zero(S)
    S.wait_lg_all()
    stamp(S, 12)
    S.barrier("G0"); stamp(S, 2)
    def runner(gen):
        state = {"done": False}
        def run(budget):
            n0 = len(S.L)
            while not state["done"] and len(S.L) - n0 < budget:
                try:
                    r = next(gen)
                    if r == "DX": state["done"] = True
                except StopIteration:
                    state["done"] = True
        return run, state
    p1run, p1st = runner(p1a(S))
    krun, kst = runner(kgen_atoms(S))
    B = OPT.budget
    for c in range(8):
        if c == 0:
            nonce_setup(S); p1run(80)
        if c == 1:
            p1run(10**6); S.wait_vm("clear"); stamp(S, 14)
        if c == 2:
            p1b(S); stamp(S, 15); krun(30)
        if c in (3, 4): krun(85)
        if c == 5:
            krun(10**6); stamp(S, 3)
        if c == 6:
            kgen_combine(S)
        if c == 7:
            kgen_build(S)
            xnt_addr(S)
            xnt_loads(S)
            S(f"s_mov_b32 s{sWoff}, {UT + 272*2}")
            ut_zero(S)
            b1_table_write(S)
        S.wait_lg_all()
        stamp(S, 16 + c)
        S.barrier(f"G{c+1}")
    assert kst["done"] and p1st["done"]
    w2_setup(S)
    for j in range(2): w2_dma2(S, j)
    S.barrier("G9")
    stamp(S, 4)
    if OPT.stop == "G9":
        stamp_flush(S); S("s_branch L_end"); return S
    xnt_finish(S)
    stamp(S, 5)
    S.barrier("CONV")
    for j in range(2, 7): w2_dma2(S, j)
    g1.xtile_load(S)
    stamp(S, 6)
    S.wait_vm("c0")
    S.barrier("W0")
    stamp(S, 7)
    for j in range(10):
        if j == 0:
            w2_dma2(S, 7); w2_dma2(S, 8)
        if j == 2: w2_dma2(S, 9)
        if j == 3: w2_dma2(S, 10)
        S.wait_vm(f"c{j+1}")
        S.barrier(f"W{j+1}")
    S.barrier("FX")
    final_all(S)
    stamp(S, 9)
    stamp_flush(S)
    S("s_branch L_end")
    return S

def generate2():
    P = Stream("P")
    prologue(P)
    P(f"s_cmp_ge_u32 s{sWave}, 4")
    P("s_cbranch_scc1 L_roleH")
    ool = []
    C = build_C2(ool); H = build_H2()
    assert C.bars == H.bars, (C.bars, H.bars)
    lines = P.L + C.L + ool + H.L + ["L_end:", "    s_endpgm"]
    lines, nn = hazard_pass(lines)
    head = open("cdna_kernels/" + KNAME[:-7] + ".s.ref").read().split("; Override launch")[0]
    txt = head + f"; @launch grid=(256,1,1) block=(512,1,1) lds={LDS_BYTES}\n"
    txt += f""".amdgcn_target "amdgcn-amd-amdhsa--gfx950"
.text
.globl {KNAME}
.p2align 8
.type {KNAME},@function
{KNAME}:
""" + "\n".join(lines) + f"""
.section .rodata,"a"
.p2align 6
.amdhsa_kernel {KNAME}
  .amdhsa_next_free_vgpr 256
  .amdhsa_next_free_sgpr 102
  .amdhsa_accum_offset 256
  .amdhsa_group_segment_fixed_size 0
  .amdhsa_kernarg_size 136
  .amdhsa_user_sgpr_count 2
  .amdhsa_user_sgpr_kernarg_segment_ptr 1
  .amdhsa_system_sgpr_workgroup_id_x 1
.end_amdhsa_kernel
"""
    return txt, nn

if __name__ == "__main__":
    out = sys.argv[1] if len(sys.argv) > 1 else "k.s"
    if "stamps" in sys.argv: OPT.stamps = True
    if "dumpK" in sys.argv: OPT.dumpK = True
    if "dbgst" in sys.argv: OPT.dbgst = True; OPT.stamps = True
    OPT.norot = "norot" in sys.argv
    OPT.budget = 110
    OPT.skipC = "skipC" in sys.argv; OPT.skipH = "skipH" in sys.argv
    if "stopG9" in sys.argv: OPT.stop = "G9"
    txt, nn = generate2()
    open(out, "w").write(txt)
    print("written", out, "lines", txt.count("\n"), "nops inserted", nn)
```

```python
import sys, struct
from asmlib import Stream, hazard_pass

KNAME = "parallel_sum__ssm_conv_s4__dense_activation_squared_relu__prompt_kernel"

WS_NONCE = 0
WS_STATS = 0x1000
WS_XNT   = 0x10000
WS_Y     = 0x500000
WS_H     = 0x900000
WS_DBG   = 0xF00000
WS_SIZE  = 0x1000000 + 0x1000000
OOB      = 0x7fff0000

SLOT1 = 28672
KC    = 114688; KCOPY = 2624; KCSZ = 4*KCOPY
SEC_E = 2176; SEC_O = 2384
ESCR  = 135680
P1BUF = 152064; P1ROW = 1040
UT    = 152064; UTSZ = (272 + 2048 + 16)*2
MISC  = 161408
LDS_BYTES = 163840
SLOT2 = 16384
def slot2(j):
    if j <= 6: return j*SLOT2
    if j == 7: return KC
    if j == 8: return KC + SLOT2
    return (j-9)*SLOT2
XCH = 2*SLOT2
TT  = 3*SLOT2
TTROW = 272

sU, sAre, sAim, sBre, sBim, sCre, sCim, sLdt = 4, 6, 8, 10, 12, 14, 16, 18
sDsk, sW1, sB1, sW2, sB2, sOut, sDbg, sWs = 20, 24, 26, 28, 30, 32, 34, 36
SU, SW1, SW2, SWS, SOUT = "s[40:43]", "s[44:47]", "s[48:51]", "s[52:55]", "s[56:59]"
sWave, sXcd, sI, sN, sTagHi, sTagLo = 60, 61, 62, 63, 64, 65
sT0, sTB, sR0, sF0, sG1ok, sD0, sR2, sC2 = 66, 67, 68, 69, 70, 71, 72, 73
sA, sB, sC, sD, sE, sF, sG, sH = 74, 75, 76, 77, 78, 79, 80, 81
sXoff, sWoff, sM = 82, 83, 84
sH0, sH1 = 85, 86
sRetry = 87
sP0, sP1 = 88, 90
sHW, sCH, sNH = 92, 93, 94
sStamp = 96

def f32(x): return "0x%08x" % struct.unpack("<I", struct.pack("<f", x))[0]
def sp(n): return f"s[{n}:{n+1}]"
def vr(a, n): return f"v[{a}:{a+n-1}]" if n > 1 else f"v{a}"

class Opt:
    skipC = False
    skipH = False
    norot = False
    dumpK = False
    stop = None
    stamps = False
    dbgst = False
    sDbgKeep = 34
    s1split = False
OPT = Opt()

def stamp(S, idx):
    if not OPT.stamps: return
    prev = getattr(S, "last_stamp", None)
    if prev is not None:
        S(f"v_writelane_b32 v255, s{sStamp}, {prev}")
    else:
        S("v_mov_b32 v255, 0")
        S("s_memrealtime s[22:23]")
    S(f"s_memtime {sp(sStamp)}")
    S.last_stamp = idx

def stamp_flush(S):
    if not OPT.stamps: return
    if OPT.dbgst:
        S(f"s_mov_b32 s88, s{OPT.sDbgKeep}")
        S(f"s_mov_b32 s89, s{OPT.sDbgKeep+1}")
        S("s_mov_b32 s90, 256")
        S("s_mov_b32 s91, 0x20000")
    S("s_memrealtime s[34:35]")
    S("s_memtime s[38:39]")
    S("s_waitcnt lgkmcnt(0)")
    S(f"v_writelane_b32 v255, s{sStamp}, {S.last_stamp}")
    S(f"v_writelane_b32 v255, s22, 30")
    S(f"v_writelane_b32 v255, s34, 31")
    S(f"v_writelane_b32 v255, s38, 29")
    if OPT.dbgst:
        S(f"s_cmp_lg_u32 s{sWave}, 0")
        S(f"s_cbranch_scc1 L_nodbg{S.name}{getattr(S,'ndbg',0)}")
        S("v_mov_b32 v253, 0")
        S("v_readlane_b32 s98, v255, 30"); S("s_not_b32 s99, s98"); S("v_writelane_b32 v253, s99, 0"); S("v_writelane_b32 v253, s98, 1")
        S("v_readlane_b32 s98, v255, 31"); S("v_writelane_b32 v253, s98, 2")
        S("v_readlane_b32 s97, v255, 0")
        for n, k in enumerate((2, 3, 4, 5, 6, 7, 8, 9)):
            S(f"v_readlane_b32 s98, v255, {k}"); S("s_sub_u32 s98, s98, s97"); S(f"v_writelane_b32 v253, s98, {3+n}")
        for n, k in enumerate((2, 3, 5, 7, 9)):
            S(f"v_readlane_b32 s98, v255, {k}"); S("s_sub_u32 s98, s98, s97"); S("s_not_b32 s98, s98"); S(f"v_writelane_b32 v253, s98, {11+n}")
        S("v_lshlrev_b32 v254, 2, v0")
        S("s_mov_b64 exec, 0xffff")
        S("buffer_atomic_umax v253, v254, s[88:91], 0 offen sc1")
        S("s_mov_b64 exec, -1")
        S(f"L_nodbg{S.name}{getattr(S,'ndbg',0)}:")
        S.ndbg = getattr(S,'ndbg',0) + 1
    S(f"s_lshl_b32 s98, s2, 3")
    S(f"s_add_u32 s98, s98, s{sWave}")
    S(f"s_lshl_b32 s98, s98, 7")
    S(f"s_add_u32 s98, s98, {WS_DBG}")
    S(f"v_lshlrev_b32 v254, 2, v0")
    S(f"s_mov_b32 exec_lo, -1")
    S(f"s_mov_b32 exec_hi, 0")
    S(f"buffer_store_dword v255, v254, {SWS}, s98 offen")
    S(f"s_mov_b64 exec, -1")

def prologue(S):
    S(f"""
    s_cmp_ge_u32 s2, 256
    s_cbranch_scc1 L_end
    s_load_dwordx16 s[4:19], s[0:1], 0
    s_load_dwordx16 s[20:35], s[0:1], 64
    s_load_dwordx2 s[36:37], s[0:1], 128
    v_xor_b32 v0, 256, v0
    v_mov_b32 v1, v0
    v_lshrrev_b32 v3, 6, v0
    v_and_b32 v0, 63, v0
    v_readfirstlane_b32 s{sWave}, v3
    v_lshlrev_b32 v2, 4, v0
    s_and_b32 s{sXcd}, s2, 7
    s_lshr_b32 s{sI}, s2, 3
    s_lshl_b32 s{sA}, s{sXcd}, 5
    s_add_u32 s{sTB}, s{sA}, s{sI}
    s_lshl_b32 s{sT0}, s{sTB}, 3
    s_lshr_b32 s{sA}, s{sXcd}, 1
    s_lshl_b32 s{sA}, s{sA}, 2
    s_and_b32 s{sB}, s{sI}, 3
    s_add_u32 s{sA}, s{sA}, s{sB}
    s_lshl_b32 s{sR0}, s{sA}, 7
    s_and_b32 s{sA}, s{sXcd}, 1
    s_lshl_b32 s{sA}, s{sA}, 3
    s_lshr_b32 s{sC}, s{sI}, 2
    s_add_u32 s{sA}, s{sA}, s{sC}
    s_mul_i32 s{sF0}, s{sA}, 96
    s_cmp_lt_u32 s{sA}, 15
    s_cselect_b32 s{sG1ok}, 1, 0
    s_lshl_b32 s{sD0}, s{sTB}, 1
    s_lshl_b32 s{sA}, s{sXcd}, 8
    s_lshl_b32 s{sB}, s{sB}, 6
    s_add_u32 s{sR2}, s{sA}, s{sB}
    s_lshl_b32 s{sC2}, s{sC}, 6
    s_waitcnt lgkmcnt(0)
    s_mov_b32 s40, s{sU}
    s_mov_b32 s41, s{sU+1}
    s_mov_b32 s42, {2048*512*2}
    s_mov_b32 s43, 0x20000
    s_mov_b32 s44, s{sW1}
    s_mov_b32 s45, s{sW1+1}
    s_mov_b32 s46, {512*1376*2}
    s_mov_b32 s47, 0x20000
    s_mov_b32 s48, s{sW2}
    s_mov_b32 s49, s{sW2+1}
    s_mov_b32 s50, {512*1376*2}
    s_mov_b32 s51, 0x20000
    s_mov_b32 s52, s{sWs}
    s_mov_b32 s53, s{sWs+1}
    s_mov_b32 s54, {WS_SIZE}
    s_mov_b32 s55, 0x20000
    s_mov_b32 s56, s{sOut}
    s_mov_b32 s57, s{sOut+1}
    s_mov_b32 s58, {2048*512*2}
    s_mov_b32 s59, 0x20000
    """)

def first_loads(S):
    S.vmem(f"buffer_load_dword v3, off, {SWS}, 0 sc1", "nonce")
    S(f"s_add_u32 s{sA}, s{sT0}, s{sWave}")
    S(f"s_lshl_b32 s{sA}, s{sA}, 10")
    S.vmem(f"buffer_load_dwordx4 v[4:7], v2, {SU}, s{sA} offen", "xrow")

def dma_setup(S):
    S(f"""
    v_lshrrev_b32 v33, 3, v0
    v_lshlrev_b32 v33, 10, v33
    v_and_b32 v34, 7, v0
    v_lshrrev_b32 v35, 4, v0
    v_xor_b32 v36, v34, v35
    v_lshl_add_u32 v240, v36, 4, v33
    v_xor_b32 v36, 4, v36
    v_lshl_add_u32 v241, v36, 4, v33
    s_mov_b32 s{sA}, 0x15555556
    s_movk_i32 s{sB}, 2752
    """)
    for b in range(3):
        S(f"""
        v_add_u32 v33, {64*b}, v0
        v_mul_hi_u32 v34, v33, s{sA}
        v_mul_u32_u24 v35, 12, v34
        v_sub_u32 v35, v33, v35
        v_bfe_u32 v36, v34, 3, 1
        v_lshlrev_b32 v36, 1, v36
        v_xor_b32 v35, v35, v36
        v_lshlrev_b32 v35, 4, v35
        v_mad_u32_u24 v{242+b}, v34, s{sB}, v35
        """)
    S(f"""
    s_lshl_b32 s{sA}, s{sR0}, 10
    s_lshl_b32 s{sB}, s{sF0}, 1
    s_cmp_eq_u32 s{sG1ok}, 1
    s_cselect_b32 s{sXoff}, s{sA}, {OOB}
    s_cselect_b32 s{sWoff}, s{sB}, {OOB}
    """)

def dma_x(S, c, j_sreg_mul, joff, tag):
    slot = (c % 4)*SLOT1
    S(f"s_add_u32 s{sA}, s{j_sreg_mul}, {joff}")
    S(f"s_lshl_b32 s{sB}, s{sA}, 10")
    S(f"s_add_u32 m0, s{sB}, {slot}")
    S(f"s_lshl_b32 s{sA}, s{sA}, 13")
    S(f"s_add_u32 s{sA}, s{sA}, {c*128}")
    S(f"s_add_u32 s{sA}, s{sA}, s{sXoff}")
    S.vmem(f"buffer_load_dwordx4 v{240 + (joff & 1)}, {SU}, s{sA} offen lds", tag)

def dma_w(S, csreg, cconst, asreg, tag):
    if csreg is None: S(f"s_mov_b32 s{sC}, {cconst}")
    else: S(f"s_add_u32 s{sC}, s{csreg}, {cconst}")
    S(f"s_lshl_b32 s{sD}, s{sC}, 2")
    S(f"s_add_u32 s{sD}, s{sD}, s{asreg}")
    S(f"s_mul_i32 s{sD}, s{sD}, {16*2752}")
    S(f"s_add_u32 s{sD}, s{sD}, s{sWoff}")
    S(f"s_and_b32 s{sC}, s{sC}, 3")
    S(f"s_mul_i32 s{sC}, s{sC}, {SLOT1}")
    S(f"s_mul_i32 s{sE}, s{asreg}, 3072")
    S(f"s_add_u32 s{sC}, s{sC}, s{sE}")
    S(f"s_add_u32 s{sC}, s{sC}, 16384")
    for b in range(3):
        S(f"s_add_u32 m0, s{sC}, {b*1024}")
        S.vmem(f"buffer_load_dwordx4 v{242+b}, {SW1}, s{sD} offen lds", tag)

def initial_dma(S, role):
    S(f"s_lshl_b32 s{sF}, s{sWave}, 1")
    S(f"s_lshr_b32 s{sG}, s{sWave}, 2")
    S(f"s_and_b32 s{sH}, s{sWave}, 3")
    wt = lambda m: f"w{2*m + (0 if role == 'C' else 1)}"
    for c in range(4):
        dma_x(S, c, sF, 0, f"x{c}"); dma_x(S, c, sF, 1, f"x{c}")
        if c in (0, 2):
            dma_w(S, sG, c, sH, wt(c//2))

def nonce_setup(S):
    S.wait_vm("nonce")
    S(f"""
    v_readfirstlane_b32 s{sN}, v3
    s_mul_i32 s{sN}, s{sN}, 1664525
    s_add_u32 s{sN}, s{sN}, 1013904223
    s_and_b32 s{sTagLo}, s{sN}, 0xffff
    s_lshl_b32 s{sTagHi}, s{sN}, 16
    """)

def wave_sum(S, v, sdst):
    for m in ("row_shr:1", "row_shr:2", "row_shr:4", "row_shr:8"):
        S(f"v_add_f32_dpp v{v}, v{v}, v{v} {m} row_mask:0xf bank_mask:0xf")
    S(f"v_add_f32_dpp v{v}, v{v}, v{v} row_bcast:15 row_mask:0xa bank_mask:0xf")
    S(f"v_add_f32_dpp v{v}, v{v}, v{v} row_bcast:31 row_mask:0xc bank_mask:0xf")
    S(f"v_readlane_b32 s{sdst}, v{v}, 63")

def wave_max(S, v, sdst):
    for m in ("row_shr:1", "row_shr:2", "row_shr:4", "row_shr:8"):
        S(f"v_max_f32_dpp v{v}, v{v}, v{v} {m} row_mask:0xf bank_mask:0xf")
    S(f"v_max_f32_dpp v{v}, v{v}, v{v} row_bcast:15 row_mask:0xa bank_mask:0xf")
    S(f"v_max_f32_dpp v{v}, v{v}, v{v} row_bcast:31 row_mask:0xc bank_mask:0xf")
    S(f"v_readlane_b32 s{sdst}, v{v}, 63")

def p1_part1(S, last_tag):
    S.wait_vm(last_tag)
    stamp(S, 13)
    for j in range(4):
        S(f"v_lshlrev_b32 v{8+2*j}, 16, v{4+j}")
        S(f"v_and_b32 v{9+2*j}, 0xffff0000, v{4+j}")
    S("""
    v_add_f32 v16, v8, v9
    v_add_f32 v17, v10, v11
    v_add_f32 v18, v12, v13
    v_add_f32 v19, v14, v15
    v_add_f32 v16, v16, v17
    v_add_f32 v18, v18, v19
    v_add_f32 v16, v16, v18
    """)
    wave_sum(S, 16, sA)
    S(f"v_mov_b32 v17, {f32(1/512)}")
    S(f"v_mul_f32 v17, s{sA}, v17")
    for j in range(8):
        S(f"v_sub_f32 v{24+j}, v{8+j}, v17")
    S("v_mul_f32 v16, v24, v24")
    for j in range(1, 8):
        S(f"v_fmac_f32 v16, v{24+j}, v{24+j}")
    wave_sum(S, 16, sA)
    S(f"""
    v_cvt_pk_bf16_f32 v20, v17, v17
    v_and_b32 v20, 0xffff0000, v20
    v_mov_b32 v18, {f32(1/512)}
    v_mul_f32 v18, s{sA}, v18
    v_cvt_pk_bf16_f32 v18, v18, v18
    v_and_b32 v18, 0xffff0000, v18
    v_add_f32 v18, {f32(1e-5)}, v18
    v_cvt_pk_bf16_f32 v18, v18, v18
    v_and_b32 v18, 0xffff0000, v18
    v_sqrt_f32 v19, v18
    v_rcp_f32 v21, v19
    v_fma_f32 v23, -v19, v19, v18
    v_mul_f32 v21, 0.5, v21
    v_fmac_f32 v19, v23, v21
    v_cvt_pk_bf16_f32 v19, v19, v19
    v_and_b32 v19, 0xffff0000, v19
    v_rcp_f32 v22, v19
    v_fma_f32 v23, -v19, v22, 1.0
    v_fmac_f32 v22, v23, v22
    v_mul_f32 v23, v20, v22
    """)
    for j in range(8):
        S(f"v_fma_f32 v{24+j}, v{8+j}, v22, -v23")
    for j in range(4):
        S(f"v_cvt_pk_f16_f32 v{4+j}, v{24+2*j}, v{25+2*j}")
    S(f"s_mul_i32 s{sA}, s{sWave}, {P1ROW}")
    S(f"s_add_u32 s{sA}, s{sA}, {P1BUF}")
    S(f"v_add_u32 v16, s{sA}, v2")
    S.lds("ds_write_b128 v16, v[4:7]", "p1w")
    S.wait_lg_all()

def p1_part2(S):
    S(f"""
    v_mov_b32 v4, v20
    v_mov_b32 v5, s{sN}
    v_mov_b32 v6, v22
    v_mov_b32 v7, s{sN}
    s_add_u32 s{sA}, s{sT0}, s{sWave}
    s_lshl_b32 s{sA}, s{sA}, 4
    s_add_u32 s{sA}, s{sA}, {WS_STATS}
    s_mov_b64 exec, 1
    """)
    S.vmem(f"buffer_store_dwordx4 v[4:7], off, {SWS}, s{sA} sc1", "statst")
    S("s_mov_b64 exec, -1")
    S(f"""
    v_and_b32 v8, 1, v1
    v_mul_u32_u24 v8, {4*P1ROW}, v8
    v_and_b32 v9, 0x1fe, v1
    v_add_u32 v8, v8, v9
    v_add_u32 v8, {P1BUF}, v8
    """)
    for k in range(2):
        for j in range(4):
            S.lds(f"ds_read_u16 v{12+4*k+j}, v8 offset:{j*P1ROW + 512*k}", f"p1r{k}")
    S(f"v_lshlrev_b32 v9, 4, v1")
    S(f"s_lshl_b32 s{sA}, s{sTB}, 14")
    S(f"s_add_u32 s{sA}, s{sA}, {WS_XNT}")
    S(f"s_add_u32 s{sB}, s{sA}, 8192")
    for k in range(2):
        S.wait_lg(f"p1r{k}")
        for j in range(4):
            S(f"v_or_b32 v{12+4*k+j}, s{sTagHi}, v{12+4*k+j}")
        S.vmem(f"buffer_store_dwordx4 v[{12+4*k}:{15+4*k}], v9, {SWS}, s{sA if k == 0 else sB} offen sc1", "xntst")

ACC1 = 64
S1A  = 112
ONES = 124
XF = (128, 160); WF = (144, 176)

def h_offsets(S):
    S(f"""
    s_and_b32 s{sA}, s{sWave}, 1
    s_lshr_b32 s{sB}, s{sWave}, 1
    s_lshr_b32 s{sC}, s{sR0}, 5
    s_lshl_b32 s{sA}, s{sA}, 1
    s_add_u32 s{sC}, s{sC}, s{sA}
    s_mul_i32 s{sC}, s{sC}, 86
    s_lshr_b32 s{sD}, s{sF0}, 4
    s_mul_i32 s{sB}, s{sB}, 3
    s_add_u32 s{sD}, s{sD}, s{sB}
    s_add_u32 s{sC}, s{sC}, s{sD}
    s_lshl_b32 s{sC}, s{sC}, 10
    s_add_u32 s{sH0}, s{sC}, {WS_H}
    s_add_u32 s{sH1}, s{sH0}, {86*1024}
    s_mov_b32 s{sM}, s{sD}
    """)

def h_soff(S, alpha, pp, dst):
    S(f"s_add_u32 s{dst}, s{sM}, {alpha}")
    S(f"s_cmp_lt_u32 s{dst}, 86")
    S(f"s_cselect_b32 s{dst}, s{sH1 if pp else sH0}, {OOB}")

def h_clear(S):
    for j in range(4): S(f"v_mov_b32 v{8+j}, 0x80008000")
    for a in range(3):
        for pp in range(2):
            h_soff(S, a, pp, sA)
            S.vmem(f"buffer_store_dwordx4 v[8:11], v2, {SWS}, s{sA} offen offset:{a*1024} sc1", "clear")

def g1_addr(S):
    S(f"""
    s_and_b32 s{sA}, s{sWave}, 1
    s_lshr_b32 s{sB}, s{sWave}, 1
    v_and_b32 v33, 15, v0
    v_lshrrev_b32 v34, 4, v0
    v_lshrrev_b32 v35, 1, v33
    v_xor_b32 v35, v35, v34
    v_lshlrev_b32 v35, 4, v35
    v_lshl_add_u32 v35, v33, 7, v35
    s_lshl_b32 s{sC}, s{sA}, 13
    v_add_u32 v24, s{sC}, v35
    v_xor_b32 v25, 64, v24
    v_lshrrev_b32 v35, 2, v33
    v_lshl_add_u32 v35, v34, 3, v35
    v_mul_u32_u24 v35, 192, v35
    v_bfe_u32 v36, v0, 1, 1
    v_lshl_add_u32 v35, v36, 4, v35
    v_and_b32 v36, 1, v0
    v_lshl_add_u32 v35, v36, 3, v35
    s_mul_i32 s{sC}, s{sB}, 96
    s_add_u32 s{sC}, s{sC}, 16384
    v_add_u32 v35, s{sC}, v35
    v_and_b32 v36, 1, v34
    v_lshlrev_b32 v36, 5, v36
    v_add_u32 v26, v35, v36
    v_sub_u32 v27, v35, v36
    """)
    S(f"""
    s_cmp_eq_u32 s{sB}, 1
    s_cselect_b64 vcc, -1, 0
    v_cndmask_b32 v35, v26, v27, vcc
    v_cndmask_b32 v27, v27, v26, vcc
    v_mov_b32 v26, v35
    """)

def g1_reads(S, c, s, st, tag):
    slot = (c % 4)*SLOT1
    xa = 37 + s; wa = (39, 40)
    if s == 0:
        S(f"v_add_u32 v37, {slot}, v24")
        S(f"v_add_u32 v38, {slot}, v25")
        S(f"v_add_u32 v39, {slot}, v26")
        S(f"v_add_u32 v40, {slot}, v27")
    for a in range(3):
        for h in range(2):
            off = (32*s + 4*h)*192 + 32*a
            S.lds(f"ds_read_b64_tr_b16 {vr(WF[st]+4*a+2*h, 2)}, v{wa[a & 1]} offset:{off}", tag)
    for tt in range(4):
        S.lds(f"ds_read_b128 {vr(XF[st]+4*tt, 4)}, v{xa} offset:{tt*2048}", tag)

def g1_mfmas(S, st, first):
    for a in range(3):
        for tt in range(4):
            acc = ACC1 + 16*a + 4*tt
            c = "0" if first else vr(acc, 4)
            S(f"v_mfma_f32_16x16x32_bf16 {vr(acc,4)}, {vr(WF[st]+4*a,4)}, {vr(XF[st]+4*tt,4)}, {c}")
        acc = S1A + 4*a
        c = "0" if first else vr(acc, 4)
        S(f"v_mfma_f32_16x16x32_bf16 {vr(acc,4)}, {vr(WF[st]+4*a,4)}, {vr(ONES,4)}, {c}")

def gemm1(S):
    g1_addr(S)
    for j in range(4): S(f"v_mov_b32 v{ONES+j}, 0x3f803f80")
    S.wait_vm("x0"); S.wait_vm("w0")
    S.barrier("G0")
    stamp(S, 2)
    g1_reads(S, 0, 0, 0, "r0_0")
    for c in range(8):
        g1_reads(S, c, 1, 1, f"r{c}_1")
        S.wait_lg(f"r{c}_0")
        g1_mfmas(S, 0, c == 0)
        if c == 4:
            g1_epi_loads(S)
        S.wait_lg(f"r{c}_1")
        if c < 3:
            S.wait_vm(f"x{c+1}")
            if c+1 == 2: S.wait_vm("w2")
        S.barrier(f"G{c+1}")
        stamp(S, 16 + c)
        if c < 7:
            g1_reads(S, c+1, 0, 0, f"r{c+1}_0")
        g1_mfmas(S, 1, False)

STAT = 188; B1R = 204; B1F = 210
def g1_epi_loads(S):
    S(f"""
    s_and_b32 s{sA}, s{sWave}, 1
    s_lshl_b32 s{sA}, s{sA}, 6
    s_add_u32 s{sA}, s{sA}, s{sR0}
    s_lshl_b32 s{sA}, s{sA}, 4
    s_add_u32 s{sE}, s{sA}, {WS_STATS}
    v_and_b32 v41, 15, v0
    v_lshlrev_b32 v41, 4, v41
    """)
    for tt in range(4):
        S.vmem(f"buffer_load_dwordx4 {vr(STAT+4*tt,4)}, v41, {SWS}, s{sE} offen offset:{tt*256} sc1", "stat")
    S(f"""
    s_lshr_b32 s{sB}, s{sWave}, 1
    s_mul_i32 s{sB}, s{sB}, 48
    s_add_u32 s{sB}, s{sB}, s{sF0}
    v_lshrrev_b32 v42, 4, v0
    v_lshlrev_b32 v42, 2, v42
    v_add_u32 v42, s{sB}, v42
    """)
    for a in range(3):
        S(f"v_add_u32 v43, {16*a}, v42")
        S(f"v_min_u32 v43, 1372, v43")
        S(f"v_lshlrev_b32 v43, 1, v43")
        S.vmem(f"global_load_dwordx2 {vr(B1R+2*a,2)}, v43, {sp(sB1)}", "b1")

def check_stats(S, lab):
    S(f"s_mov_b32 s{sRetry}, 0")
    S.wait_vm("stat")
    S(f"{lab}_chk:")
    for tt in range(4):
        b = STAT + 4*tt
        S(f"v_xor_b32 v44, s{sN}, v{b+1}")
        S(f"v_xor_b32 v45, s{sN}, v{b+3}")
        if tt == 0: S(f"v_or_b32 v46, v44, v45")
        else: S(f"v_or3_b32 v46, v46, v44, v45")
    S(f"""
    v_cmp_ne_u32 vcc, 0, v46
    s_cbranch_vccz {lab}_ok
    s_add_u32 s{sRetry}, s{sRetry}, 1
    s_cmp_ge_u32 s{sRetry}, 4096
    s_cbranch_scc1 {lab}_ok
    """)
    for tt in range(4):
        S(f"buffer_load_dwordx4 {vr(STAT+4*tt,4)}, v41, {SWS}, s{sE} offen offset:{tt*256} sc1")
    S("s_waitcnt vmcnt(0)")
    S(f"s_branch {lab}_chk")
    S(f"{lab}_ok:")

def g1_epilogue(S):
    check_stats(S, "L_st")
    S.wait_vm("b1")
    for a in range(3):
        for h in range(2):
            S(f"v_lshlrev_b32 v{B1F+4*a+2*h}, 16, v{B1R+2*a+h}")
            S(f"v_and_b32 v{B1F+4*a+2*h+1}, 0xffff0000, v{B1R+2*a+h}")
    for a in range(3):
        for pp in range(2):
            for q in range(2):
                tt = 2*pp + q
                acc = ACC1 + 16*a + 4*tt
                m = STAT + 4*tt; r = m + 2
                for h in range(2):
                    A = vr(acc+2*h, 2)
                    S(f"v_pk_fma_f32 {A}, {vr(S1A+4*a+2*h,2)}, {vr(m,2)}, {A} op_sel_hi:[1,0,1] neg_lo:[0,1,0] neg_hi:[0,1,0]")
                    S(f"v_pk_fma_f32 {A}, {A}, {vr(r,2)}, {vr(B1F+4*a+2*h,2)} op_sel_hi:[1,0,1]")
                for j in range(4):
                    S(f"v_max_f32 v{acc+j}, 0, v{acc+j}")
                for h in range(2):
                    A = vr(acc+2*h, 2)
                    S(f"v_pk_mul_f32 {A}, {A}, {A}")
                base = 48 + 4*((2*a+pp) & 1)
                S(f"v_cvt_pk_bf16_f32 v{base+2*q}, v{acc}, v{acc+1}")
                S(f"v_cvt_pk_bf16_f32 v{base+2*q+1}, v{acc+2}, v{acc+3}")
            base = 48 + 4*((2*a+pp) & 1)
            S(f"v_permlane16_swap_b32 v{base}, v{base+2}")
            S(f"v_permlane16_swap_b32 v{base+1}, v{base+3}")
            h_soff(S, a, pp, sA)
            S.vmem(f"buffer_store_dwordx4 {vr(base,4)}, v2, {SWS}, s{sA} offen offset:{a*1024} sc1", "hst")

FK = 64; CACC = 196; BRING = 216; GF = 232
VF = 32; DW = 48; BANDE = 56; BANDO = 60

def conv_setup(S):
    S(f"""
    s_lshr_b32 s{sA}, s{sWave}, 1
    v_and_b32 v33, 15, v0
    v_lshrrev_b32 v34, 4, v0
    s_mul_i32 s{sB}, s{sA}, {UTSZ}
    s_add_u32 s{sB}, s{sB}, {UT+16}
    v_lshlrev_b32 v35, 5, v33
    v_lshl_add_u32 v35, v34, 4, v35
    v_add_u32 v24, s{sB}, v35
    v_sub_u32 v35, 3, v33
    v_and_b32 v35, 3, v35
    s_mul_i32 s{sB}, s{sA}, {KCSZ}
    s_add_u32 s{sB}, s{sB}, {KC}
    v_mul_u32_u24 v36, {KCOPY}, v35
    v_add_u32 v36, s{sB}, v36
    v_add_u32 v35, v35, v33
    v_lshlrev_b32 v37, 3, v34
    v_sub_u32 v37, v37, v35
    v_add_u32 v37, 27, v37
    v_lshl_add_u32 v25, v37, 1, v36
    v_lshlrev_b32 v37, 2, v34
    v_sub_u32 v37, v37, v35
    v_add_u32 v37, 19, v37
    v_lshl_add_u32 v26, v37, 1, v36
    s_lshl_b32 s{sB}, s{sA}, 2
    s_add_u32 s{sB}, s{sB}, {MISC}
    v_mov_b32 v27, s{sB}
    """)
    for (dst, h) in ((BANDE, 4), (BANDO, 3)):
        S(f"v_add_u32 v35, {8-h}, v33")
        S(f"v_mov_b32 v36, {(1 << (2*h+1)) - 1}")
        S(f"v_lshlrev_b32 v36, v35, v36")
        S(f"v_lshlrev_b32 v35, 3, v34")
        S(f"v_lshrrev_b32 v36, v35, v36")
        for j in range(4):
            S(f"v_bfe_u32 v35, v36, {2*j}, 1")
            S(f"v_bfe_u32 v37, v36, {2*j+1}, 1")
            S(f"v_lshl_or_b32 v35, v37, 16, v35")
            S(f"v_mul_u32_u24 v{dst+j}, 0x3c00, v35")

def conv_far(S, svals, pairs):
    S.lds(f"ds_read_b32 v28, v27", "sig")
    taus = [t for s in svals for t in (2*s, 2*s+1)]
    first = set()
    for s in svals:
        for (name, Z, band, vf, sec) in (("E", 24, BANDE, VF + 4*s, SEC_E), ("O", 16, BANDO, VF + 8 + 4*s, SEC_O)):
            for q in range(2):
                tau = 2*s + q
                S.lds(f"ds_read_b128 {vr(BRING+4*q,4)}, v24 offset:{528 + 512*tau - 2*Z}", f"U{name}{tau}")
            for q in range(2):
                S.wait_lg(f"U{name}{2*s+q}")
                S(f"v_mfma_f32_16x16x32_f16 {vr(DW+4*q,4)}, {vr(BRING+4*q,4)}, {vr(band,4)}, 0")
            for q in range(2):
                S(f"v_cvt_pk_f16_f32 v{vf+2*q}, v{DW+4*q}, v{DW+4*q+1}")
                S(f"v_cvt_pk_f16_f32 v{vf+2*q+1}, v{DW+4*q+2}, v{DW+4*q+3}")
    n = 0
    for (cl, s, delta) in pairs:
        for (name, vf, sec) in (("E", VF + 4*s, SEC_E), ("O", VF + 8 + 4*s, SEC_O)):
            g = GF + 4*(n % 4); n += 1
            off = sec + 32*(7 - delta)
            S.lds(f"ds_read_b64 {vr(g,2)}, v26 offset:{off}", f"G{n}")
            S.lds(f"ds_read_b64 {vr(g+2,2)}, v26 offset:{off+32}", f"G{n}")
            S.wait_lg(f"G{n}")
            acc = CACC + 4*cl
            c = vr(acc, 4) if cl in first else "0"
            first.add(cl)
            S(f"v_mfma_f32_16x16x32_f16 {vr(acc,4)}, {vr(vf,4)}, {vr(g,4)}, {c}")
    return first

def conv_near(S, tiles, first):
    kmax = lambda c: min(32, 8*c + 8)
    xi_hi = 8*tiles[-1]; xi_lo = min(8*c - kmax(c) for c in tiles)
    steps = list(range(xi_hi, xi_lo - 1, -1))
    D = 2
    def issue(i):
        xi = steps[i]
        kn = xi_hi - xi
        if kn <= 32:
            S.lds(f"ds_read_b64 {vr(FK+4*kn,2)}, v25 offset:{64*(32-kn)}", f"s{i}")
            S.lds(f"ds_read_b64 {vr(FK+4*kn+2,2)}, v25 offset:{64*(32-kn)+8}", f"s{i}")
        S.lds(f"ds_read_b128 {vr(BRING+4*(i % 4),4)}, v24 offset:{64*(xi+8)}", f"s{i}")
    for i in range(min(D, len(steps))): issue(i)
    first = set(first)
    for i, xi in enumerate(steps):
        if i + D < len(steps): issue(i + D)
        S.wait_lg(f"s{i}")
        for cl, c in enumerate(tiles):
            k = 8*c - xi
            if 0 <= k <= kmax(c):
                acc = CACC + 4*cl
                cc = vr(acc, 4) if cl in first else "0"
                first.add(cl)
                S(f"v_mfma_f32_16x16x32_f16 {vr(acc,4)}, {vr(FK+4*k,4)}, {vr(BRING+4*(i % 4),4)}, {cc}")

def conv_store(S, tiles):
    S(f"""
    s_lshr_b32 s{sA}, s{sWave}, 1
    s_add_u32 s{sA}, s{sA}, s{sD0}
    s_lshl_b32 s{sA}, s{sA}, 13
    s_add_u32 s{sA}, s{sA}, {WS_Y}
    v_and_b32 v33, 15, v0
    v_lshrrev_b32 v34, 4, v0
    v_lshlrev_b32 v33, 6, v33
    v_lshl_add_u32 v33, v34, 4, v33
    v_mov_b32 v34, 0xffff0000
    """)
    for cl, c in enumerate(tiles):
        acc = CACC + 4*cl
        for j in range(4): S(f"v_mul_f32 v{acc+j}, v28, v{acc+j}")
        S(f"v_cvt_pk_bf16_f32 v35, v{acc}, v{acc+1}")
        S(f"v_cvt_pk_bf16_f32 v36, v{acc+2}, v{acc+3}")
        S(f"v_lshl_or_b32 v{acc}, v35, 16, s{sTagLo}")
        S(f"v_and_b32 v35, v34, v35")
        S(f"v_or_b32 v{acc+1}, s{sTagLo}, v35")
        S(f"v_lshl_or_b32 v{acc+2}, v36, 16, s{sTagLo}")
        S(f"v_and_b32 v36, v34, v36")
        S(f"v_or_b32 v{acc+3}, s{sTagLo}, v36")
        S(f"s_add_u32 s{sB}, s{sA}, {c*1024}")
        S.vmem(f"buffer_store_dwordx4 {vr(acc,4)}, v33, {SWS}, s{sB} offen sc1", "yst")

def conv(S):
    conv_setup(S)
    S(f"s_bitcmp1_b32 s{sWave}, 0")
    S(f"s_cbranch_scc1 L_convB")
    save_lg = (list(S.lg), S.lg_done); save_vm = (list(S.vm), S.vm_done)
    first = conv_far(S, [0], [(4, 0, 4)])
    conv_near(S, [0, 1, 2, 3, 4], first)
    conv_store(S, [0, 1, 2, 3, 4])
    S.wait_lg_all()
    S("s_branch L_convE")
    S("L_convB:")
    vmA = list(S.vm)
    S.lg, S.lg_done = save_lg; S.vm, S.vm_done = save_vm
    first = conv_far(S, [0, 1], [(0, 0, 5), (1, 0, 6), (1, 1, 4), (2, 0, 7), (2, 1, 5)])
    conv_near(S, [5, 6, 7], first)
    conv_store(S, [5, 6, 7])
    S(f"s_mov_b32 s{sB}, {OOB}")
    for _ in range(2):
        S.vmem(f"buffer_store_dwordx4 {vr(CACC,4)}, v33, {SWS}, s{sB} offen sc1", "yst")
    S.wait_lg_all()
    assert len(S.vm) == len(vmA)
    S("L_convE:")

ACC2 = 64; HR = 96; BF2 = (160, 168); XT = 176; B2R = 180; YR = 184; PR = 200
RD = 16
def gemm2_setup(S):
    S(f"""
    s_lshr_b32 s{sA}, s{sWave}, 1
    s_and_b32 s{sB}, s{sWave}, 1
    s_lshr_b32 s{sC}, s{sR2}, 5
    s_add_u32 s{sC}, s{sC}, s{sB}
    s_mul_i32 s{sC}, s{sC}, 86
    s_mul_i32 s{sD}, s{sA}, 43
    s_add_u32 s{sC}, s{sC}, s{sD}
    s_lshl_b32 s{sC}, s{sC}, 10
    s_add_u32 s{sH0}, s{sC}, {WS_H}
    v_lshrrev_b32 v33, 5, v0
    v_lshlrev_b32 v33, 3, v33
    v_bfe_u32 v34, v0, 2, 2
    v_add_u32 v33, v33, v34
    v_lshlrev_b32 v33, 7, v33
    v_bfe_u32 v34, v0, 4, 1
    v_lshlrev_b32 v34, 1, v34
    v_bfe_u32 v35, v0, 1, 1
    v_add_u32 v34, v34, v35
    s_lshl_b32 s{sD}, s{sA}, 2
    v_or_b32 v34, s{sD}, v34
    v_bfe_u32 v35, v0, 3, 1
    v_lshlrev_b32 v35, 2, v35
    v_xor_b32 v34, v34, v35
    v_lshl_add_u32 v33, v34, 4, v33
    v_and_b32 v34, 1, v0
    v_lshl_add_u32 v33, v34, 3, v33
    s_lshl_b32 s{sD}, s{sA}, 13
    v_add_u32 v24, s{sD}, v33
    v_xor_b32 v25, 64, v24
    """)

def xtile_load(S):
    S(f"""
    v_lshrrev_b32 v30, 3, v1
    v_add_u32 v30, s{sR2}, v30
    v_lshlrev_b32 v30, 10, v30
    v_and_b32 v31, 7, v1
    v_lshlrev_b32 v31, 4, v31
    s_lshl_b32 s{sA}, s{sC2}, 1
    v_add3_u32 v30, v30, v31, s{sA}
    """)
    S.vmem(f"buffer_load_dwordx4 {vr(XT,4)}, v30, {SU}, 0 offen", "xt")

def h_load(S, f, tag=True):
    r = HR + 4*(f % RD)
    if f % 4 == 0 or not tag:
        S(f"s_add_u32 s{sE}, s{sH0}, {(f//4)*4096}")
    txt = f"buffer_load_dwordx4 {vr(r,4)}, v2, {SWS}, s{sE} offen offset:{(f % 4)*1024} sc1"
    if tag: S.vmem(txt, f"h{f}")
    else: S(txt)

def g2_reads(S, j, s, st, tag):
    if s == 0:
        S(f"v_add_u32 v26, {slot2(j)}, v24")
        S(f"v_add_u32 v27, {slot2(j)}, v25")
    for lc in range(2):
        for h in range(2):
            S.lds(f"ds_read_b64_tr_b16 {vr(BF2[st]+4*lc+2*h,2)}, v{26+lc} offset:{(16*s+4*h)*128}", tag)

def y_loads(S, tag=True):
    for q in range(4):
        txt = f"buffer_load_dwordx4 {vr(YR+4*q,4)}, v28, {SWS}, s{sG} offen offset:{q*32} sc1"
        if tag: S.vmem(txt, "y")
        else: S(txt)

def gemm2(S):
    gemm2_setup(S)
    xtile_load(S)
    S(f"""
    s_lshr_b32 s{sA}, s{sWave}, 1
    s_lshl_b32 s{sA}, s{sA}, 5
    s_add_u32 s{sA}, s{sA}, s{sC2}
    v_and_b32 v28, 31, v0
    v_add_u32 v28, s{sA}, v28
    v_lshlrev_b32 v29, 1, v28
    """)
    S.vmem(f"global_load_ushort v{B2R}, v29, {sp(sB2)}", "b2")
    S(f"""
    v_lshlrev_b32 v28, 13, v28
    v_lshrrev_b32 v29, 5, v0
    v_lshl_add_u32 v28, v29, 4, v28
    s_and_b32 s{sB}, s{sWave}, 1
    s_lshl_b32 s{sB}, s{sB}, 5
    s_add_u32 s{sB}, s{sB}, s{sR2}
    s_lshl_b32 s{sB}, s{sB}, 2
    s_add_u32 s{sG}, s{sB}, {WS_Y}
    """)
    for f in range(RD): h_load(S, f)
    S.barrier("W0")
    stamp(S, 7)
    g2_reads(S, 0, 0, 0, "b0_0")
    f = 0; st = 0
    for j in range(11):
        ns = 4 if j < 10 else 3
        S.wait_vm(f"h{f+ns-1}")
        lab = f"L_h{j}"
        S(f"s_mov_b32 s{sRetry}, 0")
        S(f"{lab}_chk:")
        regs = [HR + 4*((f+k) % RD) + e for k in range(ns) for e in range(4)]
        S(f"v_or3_b32 v33, v{regs[0]}, v{regs[1]}, v{regs[2]}")
        k = 3
        while k < len(regs):
            if k + 1 < len(regs):
                S(f"v_or3_b32 v33, v33, v{regs[k]}, v{regs[k+1]}"); k += 2
            else:
                S(f"v_or_b32 v33, v33, v{regs[k]}"); k += 1
        S(f"""
        v_and_b32 v33, 0x80008000, v33
        v_cmp_ne_u32 vcc, 0, v33
        s_cbranch_vccz {lab}_ok
        s_add_u32 s{sRetry}, s{sRetry}, 1
        s_cmp_ge_u32 s{sRetry}, 4096
        s_cbranch_scc1 {lab}_ok
        """)
        S(f"s_add_u32 s{sF}, s{sH0}, {f*1024}")
        for k in range(ns):
            S(f"buffer_load_dwordx4 {vr(HR+4*((f+k) % RD),4)}, v2, {SWS}, s{sF} offen offset:{k*1024} sc1")
        S("s_waitcnt vmcnt(0)")
        S(f"s_branch {lab}_chk")
        S(f"{lab}_ok:")
        for s in range(ns):
            if s < ns - 1:
                g2_reads(S, j, s+1, st ^ 1, f"b{j}_{s+1}")
                S.wait_lg(f"b{j}_{s}")
            else:
                S.wait_lg(f"b{j}_{s}")
                S.barrier(f"W{j+1}")
                if j < 10: g2_reads(S, j+1, 0, st ^ 1, f"b{j+1}_0")
            for lc in range(2):
                acc = ACC2 + 16*lc
                c = "0" if f == 0 else vr(acc, 16)
                S(f"v_mfma_f32_32x32x16_bf16 {vr(acc,16)}, {vr(HR+4*(f % RD),4)}, {vr(BF2[st]+4*lc,4)}, {c}")
            if f + RD < 43: h_load(S, f + RD)
            if f + RD == 43: y_loads(S)
            f += 1; st ^= 1

def final_C(S):
    S(f"s_lshl_b32 s{sA}, s{sWave}, 12")
    S(f"s_add_u32 s{sA}, s{sA}, {XCH}")
    S(f"v_add_u32 v33, s{sA}, v2")
    for q in range(4):
        S.lds(f"ds_write_b128 v33, {vr(ACC2+16+4*q,4)} offset:{q*1024}", "xw")
    S.wait_lg_all()
    S.barrier("FX")
    S(f"s_xor_b32 s{sA}, s{sWave}, 2")
    S(f"s_lshl_b32 s{sA}, s{sA}, 12")
    S(f"s_add_u32 s{sA}, s{sA}, {XCH}")
    S(f"v_add_u32 v33, s{sA}, v2")
    for q in range(4):
        S.lds(f"ds_read_b128 {vr(PR+4*q,4)}, v33 offset:{q*1024}", "xr")
    S.wait_vm("y")
    S(f"s_mov_b32 s{sRetry}, 0")
    S("L_y_chk:")
    for k in range(16):
        S(f"v_xor_b32 v34, s{sTagLo}, v{YR+k}")
        if k == 0: S("v_mov_b32 v35, v34")
        else: S("v_or_b32 v35, v35, v34")
    S(f"""
    v_and_b32 v35, 0xffff, v35
    v_cmp_ne_u32 vcc, 0, v35
    s_cbranch_vccz L_y_ok
    s_add_u32 s{sRetry}, s{sRetry}, 1
    s_cmp_ge_u32 s{sRetry}, 4096
    s_cbranch_scc1 L_y_ok
    """)
    y_loads(S, tag=False)
    S("s_waitcnt vmcnt(0)")
    S("s_branch L_y_chk")
    S("L_y_ok:")
    S.wait_vm("b2")
    S(f"v_lshlrev_b32 v{B2R}, 16, v{B2R}")
    S.wait_lg("xr")
    for k in range(16):
        S(f"v_and_b32 v{YR+k}, 0xffff0000, v{YR+k}")
        S(f"v_add_f32 v{ACC2+k}, v{ACC2+k}, v{PR+k}")
        S(f"v_add_f32 v{YR+k}, v{YR+k}, v{B2R}")
        S(f"v_add_f32 v{ACC2+k}, v{ACC2+k}, v{YR+k}")
    S(f"""
    s_and_b32 s{sA}, s{sWave}, 1
    s_mul_i32 s{sA}, s{sA}, {32*TTROW}
    s_lshr_b32 s{sB}, s{sWave}, 1
    s_lshl_b32 s{sB}, s{sB}, 7
    s_add_u32 s{sA}, s{sA}, s{sB}
    s_add_u32 s{sA}, s{sA}, {TT}
    v_lshrrev_b32 v33, 5, v0
    v_mul_u32_u24 v33, {4*TTROW}, v33
    v_and_b32 v34, 31, v0
    v_lshl_add_u32 v33, v34, 2, v33
    v_add_u32 v33, s{sA}, v33
    """)
    for k in range(16):
        S.lds(f"ds_write_b32 v33, v{ACC2+k} offset:{(8*(k >> 2) + (k & 3))*TTROW}", "tw")
    S.wait_lg_all()

def final_all(S):
    S.barrier("FT")
    S(f"""
    v_lshrrev_b32 v33, 3, v1
    v_mul_u32_u24 v33, {TTROW}, v33
    v_and_b32 v34, 7, v1
    v_lshl_add_u32 v33, v34, 5, v33
    v_add_u32 v33, {TT}, v33
    """)
    S.lds("ds_read_b128 v[40:43], v33", "tr")
    S.lds("ds_read_b128 v[44:47], v33 offset:16", "tr")
    S.wait_vm("xt")
    for j in range(4):
        S(f"v_lshlrev_b32 v{48+2*j}, 16, v{XT+j}")
        S(f"v_and_b32 v{49+2*j}, 0xffff0000, v{XT+j}")
    S.wait_lg_all()
    for j in range(8): S(f"v_add_f32 v{40+j}, v{40+j}, v{48+j}")
    for j in range(4): S(f"v_cvt_pk_bf16_f32 v{48+j}, v{40+2*j}, v{41+2*j}")
    S.vmem(f"buffer_store_dwordx4 v[48:51], v30, {SOUT}, 0 offen", "out")

LOG2E = 1.4426950408889634
L_HI = struct.unpack("<f", struct.pack("<I", 0x3FB8AA00))[0]
L_LO = LOG2E - L_HI
CC, Z1, Z2, Z4, Z8, Z128 = 16, 18, 20, 22, 24, 26
PA, PB = 28, 30
RR = 40
CV = 80
BE = 96
AE = 112
DD = 128
WA = 144
RA = 152
DP = 172
SIGH = 95

def cmul(S, d, a, b):
    S(f"v_pk_mul_f32 {vr(d,2)}, {vr(a,2)}, {vr(b,2)} op_sel_hi:[0,1]")
    S(f"v_pk_fma_f32 {vr(d,2)}, {vr(a,2)}, {vr(b,2)}, {vr(d,2)} op_sel:[1,1,0] op_sel_hi:[1,0,1] neg_lo:[1,0,0]")

def zpow(S, d, p):
    S(f"v_mul_f32 v34, {f32(p)}, v14")
    S(f"v_mul_f32 v35, {f32(p)}, v15")
    S("v_exp_f32 v34, v34")
    S("v_fract_f32 v35, v35")
    S("v_cos_f32 v36, v35")
    S("v_sin_f32 v37, v35")
    S(f"v_mul_f32 v{d}, v34, v36")
    S(f"v_mul_f32 v{d+1}, v34, v37")

def param_loads(S):
    S(f"""
    s_sub_u32 s{sHW}, s{sWave}, 4
    s_lshr_b32 s{sCH}, s{sHW}, 1
    s_and_b32 s{sNH}, s{sHW}, 1
    s_add_u32 s{sA}, s{sD0}, s{sCH}
    s_lshl_b32 s{sB}, s{sA}, 7
    s_lshl_b32 s{sC}, s{sNH}, 6
    s_add_u32 s{sB}, s{sB}, s{sC}
    v_add_u32 v33, s{sB}, v0
    v_lshlrev_b32 v33, 1, v33
    s_lshl_b32 s{sA}, s{sA}, 1
    v_mov_b32 v34, s{sA}
    """)
    for k, s in enumerate((sAre, sAim, sBre, sBim, sCre, sCim)):
        S.vmem(f"global_load_ushort v{160+k}, v33, {sp(s)}", "par")
    S.vmem(f"global_load_ushort v166, v34, {sp(sLdt)}", "par")
    S.vmem(f"global_load_ushort v167, v34, {sp(sDsk)}", "par")

def code_prefetch(S):
    S(f"""
    s_lshl_b32 s{sA}, s{sI}, 2
    s_add_u32 s{sA}, s{sA}, s{sHW}
    s_and_b32 s{sA}, s{sA}, 31
    s_lshl_b32 s{sA}, s{sA}, 10
    s_min_u32 s{sA}, s{sA}, L_end-{KNAME}-1024
    s_getpc_b64 {sp(sP0)}
    L_pc:
    s_sub_u32 s{sP0}, s{sP0}, L_pc-{KNAME}
    s_subb_u32 s{sP0+1}, s{sP0+1}, 0
    v_add_u32 v35, s{sA}, v2
    """)
    S.vmem(f"global_load_dwordx4 v[168:171], v35, {sp(sP0)}", "pref")

def write_tile(S):
    for i in range(8):
        S.lds(f"ds_write2st64_b32 v{WA+i}, v{CV+i}, v{CV+8+i} offset0:{i} offset1:{i+8}", "ew")

def read_frags(S, dst, tag):
    for s in range(4):
        S.lds(f"ds_read_b128 {vr(dst+4*s,4)}, v{RA+s}", tag)

def kgen_atoms(S):
    S.wait_vm("par")
    for k in range(8): S(f"v_lshlrev_b32 v{160+k}, 16, v{160+k}")
    S(f"""
    v_mul_f32 v34, {f32(L_HI)}, v166
    v_mul_f32 v35, {f32(L_LO*0.6931471805599453)}, v166
    v_exp_f32 v34, v34
    s_nop 0
    v_fmac_f32 v34, v34, v35
    v_cvt_pk_bf16_f32 v34, v34, v34
    v_and_b32 v34, 0xffff0000, v34
    v_mul_f32 v14, v34, v160
    v_mul_f32 v15, v34, v161
    v_mul_f32 v14, {f32(LOG2E)}, v14
    v_mul_f32 v15, {f32(0.15915494309189535)}, v15
    v_mul_f32 v162, v34, v162
    v_mul_f32 v163, v34, v163
    """)
    cmul(S, CC, 164, 162)
    S(f"v_mul_f32 v38, v{CC}, v{CC}")
    S(f"v_fmac_f32 v38, v{CC+1}, v{CC+1}")
    wave_max(S, 38, sA)
    S(f"""
    v_mov_b32 v38, {f32(1e-36)}
    v_max_f32 v38, s{sA}, v38
    v_rsq_f32 v39, v38
    s_nop 0
    v_mul_f32 v38, v38, v39
    v_readfirstlane_b32 s{SIGH}, v38
    v_mul_f32 v{RR}, v{CC}, v39
    v_mul_f32 v{RR+1}, v{CC+1}, v39
    """)
    yield
    S(f"""
    s_lshl_b32 s{sA}, s{sHW}, 12
    s_add_u32 s{sA}, s{sA}, {ESCR}
    v_lshlrev_b32 v33, 2, v0
    """)
    for i in range(8):
        S(f"v_xor_b32 v{WA+i}, {32*i}, v33")
        S(f"v_add_u32 v{WA+i}, s{sA}, v{WA+i}")
    S(f"""
    v_and_b32 v33, 15, v0
    v_lshrrev_b32 v34, 4, v0
    v_and_b32 v35, 7, v33
    v_lshlrev_b32 v35, 1, v35
    v_xor_b32 v35, v35, v34
    v_lshlrev_b32 v35, 4, v35
    v_lshl_add_u32 v35, v33, 8, v35
    """)
    for s in range(4):
        S(f"v_xor_b32 v{RA+s}, {64*s}, v35")
        S(f"v_add_u32 v{RA+s}, s{sA}, v{RA+s}")
    yield
    zpow(S, Z1, 1); zpow(S, Z8, 8)
    yield
    zpow(S, Z128, 128)
    cmul(S, Z2, Z1, Z1); cmul(S, Z4, Z2, Z2)
    yield
    S(f"v_mov_b32 v{CV}, 0x00003c00")
    S(f"v_cvt_pk_f16_f32 v{CV+1}, v{Z8}, v{Z8+1}")
    cur = Z8
    for j in range(2, 16):
        nxt = PA if cur != PA else PB
        cmul(S, nxt, cur, Z8)
        S(f"v_cvt_pk_f16_f32 v{CV+j}, v{nxt}, v{nxt+1}")
        cur = nxt
        if j == 8: yield
    write_tile(S)
    read_frags(S, BE, "be")
    yield
    for i in range(1, 17):
        cmul(S, RR+2*i, RR+2*(i-1), Z128)
        if i == 8: yield
    yield
    def put(row, reg):
        S(f"v_cvt_pk_f16_f32 v{CV+row}, v{reg}, -v{reg+1}")
    def chain(row0, start, mult, n):
        put(row0, start)
        cur = start
        for j in range(1, n):
            nxt = PA if cur != PA else PB
            cmul(S, nxt, cur, mult)
            put(row0+j, nxt)
            cur = nxt
    def tile_out(t):
        write_tile(S)
        read_frags(S, AE + 16*(t & 1)*0, f"ae{t}")
    def tile_mm(t):
        S.wait_lg(f"ae{t}")
        for s in range(4):
            c = "0" if s == 0 else vr(DD+4*t, 4)
            S(f"v_mfma_f32_16x16x32_f16 {vr(DD+4*t,4)}, {vr(AE+4*s,4)}, {vr(BE+4*s,4)}, {c}")
    chain(0, RR, Z1, 8); yield
    chain(8, RR+2, Z1, 8)
    tile_out(0); yield
    chain(0, RR+4, Z2, 4); chain(4, RR+6, Z2, 4); yield
    for k in range(4): chain(8+2*k, RR+8+2*k, Z4, 2)
    S.wait_lg("be")
    tile_mm(0)
    tile_out(1); yield
    for i in range(8): put(i, RR+16+2*i)
    put(8, RR+32)
    for i in range(9, 16): S(f"v_mov_b32 v{CV+i}, 0")
    tile_mm(1)
    tile_out(2); yield
    tile_mm(2)
    S(f"s_cmp_eq_u32 s{sNH}, 1")
    S(f"s_cbranch_scc0 L_kx")
    S(f"v_mov_b32 v34, s{SIGH}")
    S(f"s_mul_i32 s{sA}, s{sCH}, 8192")
    S(f"s_add_u32 s{sA}, s{sA}, {ESCR + 4096}")
    S(f"v_add_u32 v33, s{sA}, v2")
    S(f"v_mov_b32 v35, s{sA}")
    save = (list(S.lg), S.lg_done)
    for t in range(3):
        S(f"ds_write_b128 v33, {vr(DD+4*t,4)} offset:{t*1024}")
    S(f"ds_write_b32 v35, v34 offset:3072")
    S("L_kx:")
    S("s_waitcnt lgkmcnt(0)"); S.lg_done = len(S.lg)
    yield "DX"

def kgen_zero(S):
    S(f"""
    s_mul_i32 s{sA}, s{sCH}, {KCSZ}
    s_add_u32 s{sA}, s{sA}, {KC}
    v_mov_b32 v34, 0
    v_mov_b32 v35, 0
    v_mov_b32 v36, 0
    v_mov_b32 v37, 0
    v_add_u32 v33, s{sA}, v2
    """)
    S(f"s_lshl_b32 s{sB}, s{sNH}, 10")
    S(f"v_add_u32 v33, s{sB}, v33")
    S.lds("ds_write_b128 v33, v[34:37]", "z")
    S(f"v_cmp_gt_u32 vcc, {164-128}, v0")
    S(f"s_cmp_eq_u32 s{sNH}, 0")
    S(f"s_cselect_b64 {sp(sP0)}, -1, 0")
    S(f"s_and_b64 exec, vcc, {sp(sP0)}")
    S.lds("ds_write_b128 v33, v[34:37] offset:2048", "z")
    S("s_mov_b64 exec, -1")

def ut_zero(S):
    S(f"""
    s_mul_i32 s{sA}, s{sCH}, {UTSZ}
    s_add_u32 s{sA}, s{sA}, {UT}
    v_mov_b32 v34, 0
    v_mov_b32 v35, 0
    v_mov_b32 v36, 0
    v_mov_b32 v37, 0
    v_add_u32 v33, s{sA}, v2
    v_cmp_gt_u32 vcc, 34, v0
    s_mov_b64 exec, vcc
    """)
    S.lds("ds_write_b128 v33, v[34:37]", "z")
    S(f"v_cmp_gt_u32 vcc, 2, v0")
    S("s_mov_b64 exec, vcc")
    S.lds(f"ds_write_b128 v33, v[34:37] offset:{(272+2048)*2}", "z")
    S("s_mov_b64 exec, -1")

def kgen_combine(S):
    S(f"s_cmp_eq_u32 s{sNH}, 0")
    S(f"s_cbranch_scc0 L_kc")
    save = (list(S.lg), S.lg_done)
    S(f"""
    s_mul_i32 s{sA}, s{sCH}, 8192
    s_add_u32 s{sA}, s{sA}, {ESCR + 4096}
    v_add_u32 v33, s{sA}, v2
    v_mov_b32 v35, s{sA}
    """)
    for t in range(3):
        S(f"ds_read_b128 {vr(DP+4*t,4)}, v33 offset:{t*1024}")
    S("ds_read_b32 v38, v35 offset:3072")
    S("s_waitcnt lgkmcnt(0)")
    S(f"""
    v_mov_b32 v39, s{SIGH}
    v_and_b32 v34, 0x7fffffff, v167
    v_mul_f32 v34, {f32(1/1024)}, v34
    v_max3_f32 v34, v34, v38, v39
    v_rcp_f32 v35, v34
    s_nop 0
    v_mul_f32 v38, v38, v35
    v_mul_f32 v39, v39, v35
    v_mul_f32 v36, v167, v35
    s_lshl_b32 s{sA}, s{sCH}, 2
    s_add_u32 s{sA}, s{sA}, {MISC}
    v_mov_b32 v37, s{sA}
    ds_write_b32 v37, v34
    """)
    for k in range(12):
        S(f"v_mul_f32 v{DD+k}, v39, v{DD+k}")
        S(f"v_fmac_f32 v{DD+k}, v38, v{DP+k}")
    S(f"""
    v_cmp_eq_u32 vcc, 0, v0
    s_nop 1
    v_cndmask_b32 v36, 0, v36, vcc
    v_add_f32 v{DD}, v{DD}, v36
    s_mul_i32 s{sA}, s{sCH}, {KCSZ}
    s_add_u32 s{sA}, s{sA}, {KC}
    v_and_b32 v33, 15, v0
    v_lshrrev_b32 v34, 4, v0
    """)
    T0, T1, T2 = DD, DD+4, DD+8
    S(f"v_cvt_pk_f16_f32 v40, v{T1}, v{T1+1}")
    S(f"v_cvt_pk_f16_f32 v41, v{T1+2}, v{T1+3}")
    S(f"v_cvt_pk_f16_f32 v42, v{T2}, v{T2+1}")
    S(f"v_cvt_pk_f16_f32 v43, v{T2+2}, v{T2+3}")
    S(f"v_cvt_pk_f16_f32 v44, v{T0+3}, v{T0+2}")
    S(f"v_cvt_pk_f16_f32 v45, v{T0+1}, v{T0}")
    def w16(addr, reg, hi, off):
        S(f"ds_write_b16{'_d16_hi' if hi else ''} v{addr}, v{reg} offset:{off}")
    S(f"""
    v_lshlrev_b32 v35, 8, v34
    v_lshl_add_u32 v35, v33, 3, v35
    v_sub_u32 v35, {1059 - 5 - 128}, v35
    v_lshlrev_b32 v35, 1, v35
    v_add_u32 v35, s{sA}, v35
    v_cmp_le_u32 vcc, 32, v0
    s_mov_b64 exec, vcc
    """)
    for pair, (reg) in enumerate((40, 41)):
        o = 256*(1 - pair)
        for e in range(8):
            w16(35, reg, e < 3, o + 2*e)
    S(f"""
    s_mov_b64 exec, -1
    v_lshlrev_b32 v35, 7, v34
    v_lshl_add_u32 v35, v33, 3, v35
    v_sub_u32 v35, {1059 - 6 - 256}, v35
    v_lshlrev_b32 v35, 1, v35
    v_add_u32 v35, s{sA}, v35
    s_mov_b32 exec_hi, 0
    """)
    seq = [(41, True), (41, False), (41, False), (41, False), (40, True), (40, False), (40, False), (40, False)]
    for e, (reg, hi) in enumerate(seq): w16(35, reg, hi, 2*e)
    S(f"""
    v_lshrrev_b32 v36, 1, v33
    v_lshl_add_u32 v36, v34, 5, v36
    v_and_b32 v37, 1, v33
    v_mul_u32_u24 v38, {SEC_O - SEC_E - 2}, v37
    v_sub_u32 v36, {68 - 24}, v36
    v_lshlrev_b32 v36, 1, v36
    v_add3_u32 v36, v36, v38, s{sA}
    """)
    for r, (reg, hi) in enumerate(((42, False), (42, True), (43, False), (43, True))):
        w16(36, reg, hi, SEC_E + 2*(24 - 8*r))
    S("s_mov_b64 exec, -1")
    S(f"""
    v_readlane_b32 s{sB}, v42, 0
    v_readlane_b32 s{sC}, v42, 32
    v_lshlrev_b32 v35, 1, v0
    v_add_u32 v35, s{sA}, v35
    v_mov_b32 v36, s{sB}
    v_mov_b32 v37, 0
    v_mov_b32 v38, s{sC}
    s_mov_b64 exec, 0x7f
    ds_write_b16 v35, v36 offset:{2*(1059-1028)}
    s_mov_b64 exec, 1
    ds_write_b16 v35, v37 offset:{SEC_E + 2*68}
    ds_write_b16 v35, v38 offset:{SEC_E + 2*4}
    s_mov_b64 exec, -1
    """)
    S(f"""
    v_lshrrev_b32 v35, 1, v34
    v_lshlrev_b32 v35, 7, v35
    v_lshl_add_u32 v35, v33, 3, v35
    v_and_b32 v36, 1, v34
    v_lshl_add_u32 v35, v36, 2, v35
    v_sub_u32 v35, 1056, v35
    v_lshlrev_b32 v35, 1, v35
    v_add_u32 v35, s{sA}, v35
    ds_write_b64 v35, v[44:45]
    L_kc:
    s_waitcnt lgkmcnt(0)
    """)
    S.lg_done = len(S.lg)

def kgen_build(S):
    S(f"""
    s_mul_i32 s{sA}, s{sCH}, {KCSZ}
    s_add_u32 s{sA}, s{sA}, {KC}
    s_lshl_b32 s{sB}, s{sNH}, 10
    s_add_u32 s{sA}, s{sA}, s{sB}
    v_add_u32 v33, s{sA}, v2
    """)
    def rnd(off, tag):
        S.lds(f"ds_read_b128 v[40:43], v33 offset:{off}", tag)
        S.lds(f"ds_read_b64 v[44:45], v33 offset:{off+16}", tag)
        S.wait_lg(tag)
        for i in range(4): S(f"v_alignbit_b32 v{48+i}, v{41+i}, v{40+i}, 16")
        for i in range(4): S(f"v_alignbit_b32 v{52+i}, v{42+i}, v{41+i}, 16")
        S.lds(f"ds_write_b128 v33, v[48:51] offset:{off+KCOPY}", "bw")
        S.lds(f"ds_write2_b32 v56, v41, v42 offset0:0 offset1:1", "bw")
        S.lds(f"ds_write2_b32 v56, v43, v44 offset0:2 offset1:3", "bw")
        S.lds(f"ds_write_b128 v33, v[52:55] offset:{off+3*KCOPY}", "bw")
    S(f"v_add_u32 v56, {2*KCOPY}, v33")
    rnd(0, "br0")
    S(f"v_cmp_gt_u32 vcc, {162-128}, v0")
    S(f"s_cmp_eq_u32 s{sNH}, 0")
    S(f"s_cselect_b64 {sp(sP0)}, -1, 0")
    S(f"s_and_b64 exec, vcc, {sp(sP0)}")
    S(f"s_cbranch_execz L_kb")
    S(f"v_add_u32 v56, 2048, v56")
    save = (list(S.lg), S.lg_done)
    S("ds_read_b128 v[40:43], v33 offset:2048")
    S("ds_read_b64 v[44:45], v33 offset:2064")
    S("s_waitcnt lgkmcnt(0)")
    for i in range(4): S(f"v_alignbit_b32 v{48+i}, v{41+i}, v{40+i}, 16")
    for i in range(4): S(f"v_alignbit_b32 v{52+i}, v{42+i}, v{41+i}, 16")
    S(f"ds_write_b128 v33, v[48:51] offset:{2048+KCOPY}")
    S("ds_write2_b32 v56, v41, v42 offset0:0 offset1:1")
    S("ds_write2_b32 v56, v43, v44 offset0:2 offset1:3")
    S(f"ds_write_b128 v33, v[52:55] offset:{2048+3*KCOPY}")
    S("L_kb:")
    S("s_mov_b64 exec, -1")
    S.wait_lg_all()

XN = 192
def xnt_addr(S):
    S(f"""
    v_subrev_u32 v190, 256, v1
    v_lshrrev_b32 v33, 2, v190
    v_lshlrev_b32 v33, 14, v33
    v_and_b32 v34, 3, v190
    v_lshl_add_u32 v191, v34, 4, v33
    s_lshl_b32 s{sA}, s{sD0}, 5
    s_add_u32 s{sXoff}, s{sA}, {WS_XNT}
    """)
def xnt_loads(S, tag=True):
    for k in range(4):
        S(f"s_add_u32 s{sA}, s{sXoff}, {k*64*16384}")
        txt = f"buffer_load_dwordx4 {vr(XN+4*k,4)}, v191, {SWS}, s{sA} offen sc1"
        if tag: S.vmem(txt, "xnt")
        else: S(txt)

def xnt_finish(S):
    S.wait_vm("xnt")
    S(f"s_mov_b32 s{sRetry}, 0")
    S("L_u_chk:")
    for k in range(16):
        S(f"v_xor_b32 v34, s{sTagHi}, v{XN+k}")
        if k == 0: S("v_mov_b32 v35, v34")
        else: S("v_or_b32 v35, v35, v34")
    S(f"""
    v_and_b32 v35, 0xffff0000, v35
    v_cmp_ne_u32 vcc, 0, v35
    s_cbranch_vccz L_u_ok
    s_add_u32 s{sRetry}, s{sRetry}, 1
    s_cmp_ge_u32 s{sRetry}, 4096
    s_cbranch_scc1 L_u_ok
    """)
    xnt_loads(S, tag=False)
    S("s_waitcnt vmcnt(0)")
    S("s_branch L_u_chk")
    S("L_u_ok:")
    S(f"""
    v_lshrrev_b32 v33, 2, v190
    v_lshlrev_b32 v33, 4, v33
    v_and_b32 v34, 1, v190
    v_lshl_add_u32 v33, v34, 3, v33
    v_bfe_u32 v34, v190, 1, 1
    v_mul_u32_u24 v34, {UTSZ}, v34
    v_add3_u32 v33, v33, v34, s{sWoff}
    s_mov_b32 s{sA}, 0x05040100
    """)
    for k in range(4):
        b = XN + 4*k
        S(f"v_perm_b32 v{b}, v{b+1}, v{b}, s{sA}")
        S(f"v_perm_b32 v{b+1}, v{b+3}, v{b+2}, s{sA}")
        S.lds(f"ds_write_b64 v33, {vr(b,2)} offset:{k*1024}", "uw")
    S.wait_lg_all()

def w2_setup(S):
    S(f"""
    v_lshrrev_b32 v33, 3, v0
    v_lshlrev_b32 v33, 10, v33
    v_and_b32 v34, 7, v0
    v_bfe_u32 v35, v0, 4, 1
    v_lshlrev_b32 v35, 2, v35
    v_xor_b32 v34, v34, v35
    v_lshl_add_u32 v189, v34, 4, v33
    s_lshr_b32 s{sA}, s{sHW}, 1
    s_and_b32 s{sB}, s{sHW}, 1
    s_mul_i32 s{sC}, s{sA}, {688*1024}
    s_lshl_b32 s{sD}, s{sB}, 15
    s_add_u32 s{sC}, s{sC}, s{sD}
    s_lshl_b32 s{sD}, s{sC2}, 1
    s_add_u32 s{sH0}, s{sC}, s{sD}
    s_lshl_b32 s{sA}, s{sA}, 13
    s_lshl_b32 s{sB}, s{sB}, 12
    s_add_u32 s{sH1}, s{sA}, s{sB}
    """)
def w2_dma(S, j):
    S(f"s_add_u32 s{sA}, s{sH0}, {j*65536}")
    for q in range(4):
        S(f"s_add_u32 m0, s{sH1}, {slot2(j) + q*1024}")
        S(f"s_add_u32 s{sB}, s{sA}, {q*8192}")
        S.vmem(f"buffer_load_dwordx4 v189, {SW2}, s{sB} offen lds", f"c{j}")

def mid_dma(S, c):
    S(f"s_lshl_b32 s{sF}, s{sHW}, 2")
    for q in range(4): dma_x(S, c, sF, q, f"x{c}")
    dma_w(S, None, c, sHW, f"x{c}")

def dump_lds(S, off, nbytes, wsoff, stride):
    S(f"s_mul_i32 s{sA}, s2, {stride}")
    S(f"s_add_u32 s{sA}, s{sA}, {wsoff}")
    S(f"v_lshlrev_b32 v33, 4, v1")
    for k in range((nbytes + 4095)//4096):
        S(f"v_add_u32 v34, {off + 4096*k}, v33")
        S(f"ds_read_b128 v[36:39], v34")
        S("s_waitcnt lgkmcnt(0)")
        S(f"s_add_u32 s{sB}, s{sA}, {4096*k}")
        S.vmem(f"buffer_store_dwordx4 v[36:39], v33, {SWS}, s{sB} offen", "dump")
        S("s_waitcnt vmcnt(0)")
    S.vm_done = len(S.vm)

def build_C():
    S = Stream("C")
    S("L_roleC:")
    stamp(S, 0)
    first_loads(S)
    h_offsets(S)
    S(f"s_cmp_eq_u32 s{sG1ok}, 1")
    S(f"s_cselect_b32 s{sM}, s{sM}, 1000")
    h_clear(S)
    dma_setup(S)
    stamp(S, 10)
    initial_dma(S, "C")
    stamp(S, 11)
    nonce_setup(S)
    stamp(S, 12)
    p1_part1(S, "clear")
    stamp(S, 14)
    S.barrier("P1")
    stamp(S, 1)
    p1_part2(S)
    stamp(S, 15)
    gemm1(S)
    stamp(S, 3)
    g1_epilogue(S)
    stamp(S, 4)
    S.barrier("CONV")
    stamp(S, 5)
    if OPT.dumpK: dump_lds(S, KC, 2*KCSZ + 0, 0x1000000, 32768); dump_lds(S, UT, 2*UTSZ, 0x1000000 + 21504, 32768)
    conv(S)
    stamp(S, 6)
    gemm2(S)
    stamp(S, 8)
    final_C(S)
    final_all(S)
    stamp(S, 9)
    stamp_flush(S)
    S(f"s_or_b32 s{sA}, s2, s{sWave}")
    S(f"s_cmp_eq_u32 s{sA}, 0")
    S("s_cbranch_scc0 L_end")
    S(f"v_mov_b32 v33, s{sN}")
    S("s_mov_b64 exec, 1")
    S(f"buffer_store_dword v33, off, {SWS}, 0 sc1")
    S("s_branch L_end")
    return S

def build_H():
    S = Stream("H")
    S("L_roleH:")
    stamp(S, 0)
    first_loads(S)
    param_loads(S)
    code_prefetch(S)
    dma_setup(S)
    stamp(S, 10)
    initial_dma(S, "H")
    stamp(S, 11)
    nonce_setup(S)
    stamp(S, 12)
    p1_part1(S, "xrow")
    stamp(S, 14)
    S.barrier("P1")
    stamp(S, 1)
    p1_part2(S)
    kgen_zero(S)
    atoms = kgen_atoms(S)
    done = False
    def run(n):
        nonlocal done
        for _ in range(n):
            if done: return
            r = next(atoms)
            if r == "DX": done = True
    S.wait_vm("x0")
    S.barrier("G0")
    stamp(S, 2)
    plan = {0: 3, 1: 3, 2: 3, 3: 3, 4: 99}
    for c in range(8):
        if 1 <= c <= 4: mid_dma(S, c + 3)
        if c in plan: run(plan[c])
        if c == 4: stamp(S, 3)
        if c == 5:
            kgen_combine(S)
            xnt_addr(S)
            xnt_loads(S)
        if c == 6:
            kgen_build(S)
        if c == 7:
            S(f"s_mov_b32 s{sWoff}, {UT + 272*2}")
            ut_zero(S)
        if c + 1 <= 7:
            S.wait_vm(f"x{c+1}")
            if c + 1 in (1, 3): S.wait_vm(f"w{c+1}")
        S.wait_lg_all()
        stamp(S, 16 + c)
        S.barrier(f"G{c+1}")
    assert done
    stamp(S, 4)
    w2_setup(S)
    xnt_finish(S)
    stamp(S, 5)
    for j in range(3): w2_dma(S, j)
    S.barrier("CONV")
    for j in range(3, 7): w2_dma(S, j)
    xtile_load(S)
    stamp(S, 6)
    S.wait_vm("c0")
    S.barrier("W0")
    stamp(S, 7)
    for j in range(11):
        if j == 0:
            w2_dma(S, 7); w2_dma(S, 8)
        if j == 1: w2_dma(S, 9)
        if j == 2: w2_dma(S, 10)
        if j < 10: S.wait_vm(f"c{j+1}")
        S.barrier(f"W{j+1}")
    S.barrier("FX")
    final_all(S)
    stamp(S, 9)
    stamp_flush(S)
    S("s_branch L_end")
    return S

def generate():
    P = Stream("P")
    prologue(P)
    P(f"s_cmp_ge_u32 s{sWave}, 4")
    P("s_cbranch_scc1 L_roleH")
    C = build_C(); H = build_H()
    assert C.bars == H.bars, (C.bars, H.bars)
    lines = P.L + C.L + H.L + ["L_end:", "    s_endpgm"]
    lines, nn = hazard_pass(lines)
    head = open("cdna_kernels/" + KNAME[:-7] + ".s.ref").read().split("; Override launch")[0]
    txt = head + f"; @launch grid=(256,1,1) block=(512,1,1) lds={LDS_BYTES}\n"
    txt += f""".amdgcn_target "amdgcn-amd-amdhsa--gfx950"
.text
.globl {KNAME}
.p2align 8
.type {KNAME},@function
{KNAME}:
""" + "\n".join(lines) + f"""
.section .rodata,"a"
.p2align 6
.amdhsa_kernel {KNAME}
  .amdhsa_next_free_vgpr 256
  .amdhsa_next_free_sgpr 102
  .amdhsa_accum_offset 256
  .amdhsa_group_segment_fixed_size 0
  .amdhsa_kernarg_size 136
  .amdhsa_user_sgpr_count 2
  .amdhsa_user_sgpr_kernarg_segment_ptr 1
  .amdhsa_system_sgpr_workgroup_id_x 1
.end_amdhsa_kernel
"""
    return txt, nn

if __name__ == "__main__":
    out = sys.argv[1] if len(sys.argv) > 1 else "k.s"
    if "stamps" in sys.argv: OPT.stamps = True
    if "dumpK" in sys.argv: OPT.dumpK = True
    txt, nn = generate()
    open(out, "w").write(txt)
    print("written", out, "lines", txt.count("\n"), "nops inserted", nn)
```

```python
import sys, struct
from asmlib import Stream, hazard_pass

KNAME = "parallel_sum__ssm_conv_s4__dense_activation_squared_relu__prompt_kernel"

WS_NONCE = 0
WS_STATS = 0x1000
WS_XNT   = 0x10000
WS_Y     = 0x500000
WS_H     = 0x900000
WS_DBG   = 0xF00000
WS_SIZE  = 0x1000000 + 0x1000000
OOB      = 0x7fff0000

SLOT1 = 28672
KC    = 114688; KCOPY = 2624; KCSZ = 4*KCOPY
SEC_E = 2176; SEC_O = 2384
ESCR  = 135680
P1BUF = 152064; P1ROW = 1040
UT    = 152064; UTSZ = (272 + 2048 + 16)*2
MISC  = 161408
LDS_BYTES = 163840
SLOT2 = 16384
def slot2(j):
    if j <= 6: return j*SLOT2
    if j == 7: return KC
    if j == 8: return KC + SLOT2
    return (j-9)*SLOT2
XCH = 2*SLOT2
TT  = 3*SLOT2
TTROW = 272

sU, sAre, sAim, sBre, sBim, sCre, sCim, sLdt = 4, 6, 8, 10, 12, 14, 16, 18
sDsk, sW1, sB1, sW2, sB2, sOut, sDbg, sWs = 20, 24, 26, 28, 30, 32, 34, 36
SU, SW1, SW2, SWS, SOUT = "s[40:43]", "s[44:47]", "s[48:51]", "s[52:55]", "s[56:59]"
sWave, sXcd, sI, sN, sTagHi, sTagLo = 60, 61, 62, 63, 64, 65
sT0, sTB, sR0, sF0, sG1ok, sD0, sR2, sC2 = 66, 67, 68, 69, 70, 71, 72, 73
sA, sB, sC, sD, sE, sF, sG, sH = 74, 75, 76, 77, 78, 79, 80, 81
sXoff, sWoff, sM = 82, 83, 84
sH0, sH1 = 85, 86
sRetry = 87
sP0, sP1 = 88, 90
sHW, sCH, sNH = 92, 93, 94
sStamp = 96

def f32(x): return "0x%08x" % struct.unpack("<I", struct.pack("<f", x))[0]
def sp(n): return f"s[{n}:{n+1}]"
def vr(a, n): return f"v[{a}:{a+n-1}]" if n > 1 else f"v{a}"

class Opt:
    skipC = False
    skipH = False
    norot = False
    dumpK = False
    stop = None
    stamps = False
    dbgst = False
    allwrite = False
    fine = False
    sDbgKeep = 34
    s1split = False
OPT = Opt()

def stamp(S, idx):
    if not OPT.stamps: return
    prev = getattr(S, "last_stamp", None)
    if prev is not None:
        S(f"v_writelane_b32 v255, s{sStamp}, {prev}")
    else:
        S("v_mov_b32 v255, 0")
        S("s_memrealtime s[22:23]")
    S(f"s_memtime {sp(sStamp)}")
    S.last_stamp = idx

def stamp_flush(S):
    if not OPT.stamps: return
    if OPT.dbgst:
        S(f"s_mov_b32 s88, s{OPT.sDbgKeep}")
        S(f"s_mov_b32 s89, s{OPT.sDbgKeep+1}")
        S("s_mov_b32 s90, 256")
        S("s_mov_b32 s91, 0x20000")
    S("s_memrealtime s[34:35]")
    S("s_memtime s[38:39]")
    S("s_waitcnt lgkmcnt(0)")
    S(f"v_writelane_b32 v255, s{sStamp}, {S.last_stamp}")
    S(f"v_writelane_b32 v255, s22, 30")
    S(f"v_writelane_b32 v255, s34, 31")
    S(f"v_writelane_b32 v255, s38, 29")
    if OPT.dbgst:
        S(f"s_cmp_lg_u32 s{sWave}, 0")
        S(f"s_cbranch_scc1 L_nodbg{S.name}{getattr(S,'ndbg',0)}")
        S("v_mov_b32 v253, 0")
        S("v_readlane_b32 s98, v255, 30"); S("s_not_b32 s99, s98"); S("v_writelane_b32 v253, s99, 0"); S("v_writelane_b32 v253, s98, 1")
        S("v_readlane_b32 s98, v255, 31"); S("v_writelane_b32 v253, s98, 2")
        S("v_readlane_b32 s97, v255, 0")
        for n, k in enumerate((2, 3, 4, 5, 6, 7, 8, 9)):
            S(f"v_readlane_b32 s98, v255, {k}"); S("s_sub_u32 s98, s98, s97"); S(f"v_writelane_b32 v253, s98, {3+n}")
        for n, k in enumerate((2, 3, 5, 7, 9)):
            S(f"v_readlane_b32 s98, v255, {k}"); S("s_sub_u32 s98, s98, s97"); S("s_not_b32 s98, s98"); S(f"v_writelane_b32 v253, s98, {11+n}")
        S("v_lshlrev_b32 v254, 2, v0")
        S("s_mov_b64 exec, 0xffff")
        S("buffer_atomic_umax v253, v254, s[88:91], 0 offen sc1")
        S("s_mov_b64 exec, -1")
        S(f"L_nodbg{S.name}{getattr(S,'ndbg',0)}:")
        S.ndbg = getattr(S,'ndbg',0) + 1
    S(f"s_lshl_b32 s98, s2, 3")
    S(f"s_add_u32 s98, s98, s{sWave}")
    S(f"s_lshl_b32 s98, s98, 7")
    S(f"s_add_u32 s98, s98, {WS_DBG}")
    S(f"v_lshlrev_b32 v254, 2, v0")
    S(f"s_mov_b32 exec_lo, -1")
    S(f"s_mov_b32 exec_hi, 0")
    S(f"buffer_store_dword v255, v254, {SWS}, s98 offen")
    S(f"s_mov_b64 exec, -1")

def prologue(S):
    S(f"""
    s_cmp_ge_u32 s2, 256
    s_cbranch_scc1 L_end
    s_load_dwordx16 s[4:19], s[0:1], 0
    s_load_dwordx16 s[20:35], s[0:1], 64
    s_load_dwordx2 s[36:37], s[0:1], 128
    v_xor_b32 v0, 256, v0
    v_mov_b32 v1, v0
    v_lshrrev_b32 v3, 6, v0
    v_and_b32 v0, 63, v0
    v_readfirstlane_b32 s{sWave}, v3
    v_lshlrev_b32 v2, 4, v0
    s_and_b32 s{sXcd}, s2, 7
    s_lshr_b32 s{sI}, s2, 3
    s_lshl_b32 s{sA}, s{sXcd}, 5
    s_add_u32 s{sTB}, s{sA}, s{sI}
    s_lshl_b32 s{sT0}, s{sTB}, 3
    s_lshr_b32 s{sA}, s{sXcd}, 1
    s_lshl_b32 s{sA}, s{sA}, 2
    s_and_b32 s{sB}, s{sI}, 3
    s_add_u32 s{sA}, s{sA}, s{sB}
    s_lshl_b32 s{sR0}, s{sA}, 7
    s_and_b32 s{sA}, s{sXcd}, 1
    s_lshl_b32 s{sA}, s{sA}, 3
    s_lshr_b32 s{sC}, s{sI}, 2
    s_add_u32 s{sA}, s{sA}, s{sC}
    s_mul_i32 s{sF0}, s{sA}, 96
    s_cmp_lt_u32 s{sA}, 15
    s_cselect_b32 s{sG1ok}, 1, 0
    s_lshl_b32 s{sD0}, s{sTB}, 1
    s_lshl_b32 s{sA}, s{sXcd}, 8
    s_lshl_b32 s{sB}, s{sB}, 6
    s_add_u32 s{sR2}, s{sA}, s{sB}
    s_lshl_b32 s{sC2}, s{sC}, 6
    s_waitcnt lgkmcnt(0)
    s_mov_b32 s40, s{sU}
    s_mov_b32 s41, s{sU+1}
    s_mov_b32 s42, {2048*512*2}
    s_mov_b32 s43, 0x20000
    s_mov_b32 s44, s{sW1}
    s_mov_b32 s45, s{sW1+1}
    s_mov_b32 s46, {512*1376*2}
    s_mov_b32 s47, 0x20000
    s_mov_b32 s48, s{sW2}
    s_mov_b32 s49, s{sW2+1}
    s_mov_b32 s50, {512*1376*2}
    s_mov_b32 s51, 0x20000
    s_mov_b32 s52, s{sWs}
    s_mov_b32 s53, s{sWs+1}
    s_mov_b32 s54, {WS_SIZE}
    s_mov_b32 s55, 0x20000
    s_mov_b32 s56, s{sOut}
    s_mov_b32 s57, s{sOut+1}
    s_mov_b32 s58, {2048*512*2}
    s_mov_b32 s59, 0x20000
    """)

def first_loads(S):
    S.vmem(f"buffer_load_dword v3, off, {SWS}, 0 sc1", "nonce")
    S(f"s_add_u32 s{sA}, s{sT0}, s{sWave}")
    S(f"s_lshl_b32 s{sA}, s{sA}, 10")
    S.vmem(f"buffer_load_dwordx4 v[4:7], v2, {SU}, s{sA} offen", "xrow")

def dma_setup(S):
    S(f"""
    v_lshrrev_b32 v33, 3, v0
    v_lshlrev_b32 v33, 10, v33
    v_and_b32 v34, 7, v0
    v_lshrrev_b32 v35, 4, v0
    v_xor_b32 v36, v34, v35
    v_lshl_add_u32 v240, v36, 4, v33
    v_xor_b32 v36, 4, v36
    v_lshl_add_u32 v241, v36, 4, v33
    s_mov_b32 s{sA}, 0x15555556
    s_movk_i32 s{sB}, 2752
    """)
    for b in range(3):
        S(f"""
        v_add_u32 v33, {64*b}, v0
        v_mul_hi_u32 v34, v33, s{sA}
        v_mul_u32_u24 v35, 12, v34
        v_sub_u32 v35, v33, v35
        v_bfe_u32 v36, v34, 3, 1
        v_lshlrev_b32 v36, 1, v36
        v_xor_b32 v35, v35, v36
        v_lshlrev_b32 v35, 4, v35
        v_mad_u32_u24 v{242+b}, v34, s{sB}, v35
        """)
    S(f"""
    s_lshl_b32 s{sA}, s{sR0}, 10
    s_lshl_b32 s{sB}, s{sF0}, 1
    s_cmp_eq_u32 s{sG1ok}, 1
    s_cselect_b32 s{sXoff}, s{sA}, {OOB}
    s_cselect_b32 s{sWoff}, s{sB}, {OOB}
    """)

def dma_x(S, c, j_sreg_mul, joff, tag):
    slot = (c % 4)*SLOT1
    S(f"s_add_u32 s{sA}, s{j_sreg_mul}, {joff}")
    S(f"s_lshl_b32 s{sB}, s{sA}, 10")
    S(f"s_add_u32 m0, s{sB}, {slot}")
    S(f"s_lshl_b32 s{sA}, s{sA}, 13")
    S(f"s_add_u32 s{sA}, s{sA}, {c*128}")
    S(f"s_add_u32 s{sA}, s{sA}, s{sXoff}")
    S.vmem(f"buffer_load_dwordx4 v{240 + (joff & 1)}, {SU}, s{sA} offen lds", tag)

def dma_w(S, csreg, cconst, asreg, tag):
    if csreg is None: S(f"s_mov_b32 s{sC}, {cconst}")
    else: S(f"s_add_u32 s{sC}, s{csreg}, {cconst}")
    S(f"s_lshl_b32 s{sD}, s{sC}, 2")
    S(f"s_add_u32 s{sD}, s{sD}, s{asreg}")
    S(f"s_mul_i32 s{sD}, s{sD}, {16*2752}")
    S(f"s_add_u32 s{sD}, s{sD}, s{sWoff}")
    S(f"s_and_b32 s{sC}, s{sC}, 3")
    S(f"s_mul_i32 s{sC}, s{sC}, {SLOT1}")
    S(f"s_mul_i32 s{sE}, s{asreg}, 3072")
    S(f"s_add_u32 s{sC}, s{sC}, s{sE}")
    S(f"s_add_u32 s{sC}, s{sC}, 16384")
    for b in range(3):
        S(f"s_add_u32 m0, s{sC}, {b*1024}")
        S.vmem(f"buffer_load_dwordx4 v{242+b}, {SW1}, s{sD} offen lds", tag)

def initial_dma(S, role):
    S(f"s_lshl_b32 s{sF}, s{sWave}, 1")
    S(f"s_lshr_b32 s{sG}, s{sWave}, 2")
    S(f"s_and_b32 s{sH}, s{sWave}, 3")
    wt = lambda m: f"w{2*m + (0 if role == 'C' else 1)}"
    for c in range(4):
        dma_x(S, c, sF, 0, f"x{c}"); dma_x(S, c, sF, 1, f"x{c}")
        if c in (0, 2):
            dma_w(S, sG, c, sH, wt(c//2))

def nonce_setup(S):
    S.wait_vm("nonce")
    S(f"""
    v_readfirstlane_b32 s{sN}, v3
    s_mul_i32 s{sN}, s{sN}, 1664525
    s_add_u32 s{sN}, s{sN}, 1013904223
    s_and_b32 s{sTagLo}, s{sN}, 0xffff
    s_lshl_b32 s{sTagHi}, s{sN}, 16
    """)

def wave_sum(S, v, sdst):
    for m in ("row_shr:1", "row_shr:2", "row_shr:4", "row_shr:8"):
        S(f"v_add_f32_dpp v{v}, v{v}, v{v} {m} row_mask:0xf bank_mask:0xf")
    S(f"v_add_f32_dpp v{v}, v{v}, v{v} row_bcast:15 row_mask:0xa bank_mask:0xf")
    S(f"v_add_f32_dpp v{v}, v{v}, v{v} row_bcast:31 row_mask:0xc bank_mask:0xf")
    S(f"v_readlane_b32 s{sdst}, v{v}, 63")

def wave_max(S, v, sdst):
    for m in ("row_shr:1", "row_shr:2", "row_shr:4", "row_shr:8"):
        S(f"v_max_f32_dpp v{v}, v{v}, v{v} {m} row_mask:0xf bank_mask:0xf")
    S(f"v_max_f32_dpp v{v}, v{v}, v{v} row_bcast:15 row_mask:0xa bank_mask:0xf")
    S(f"v_max_f32_dpp v{v}, v{v}, v{v} row_bcast:31 row_mask:0xc bank_mask:0xf")
    S(f"v_readlane_b32 s{sdst}, v{v}, 63")

def p1_part1(S, last_tag):
    S.wait_vm(last_tag)
    stamp(S, 13)
    for j in range(4):
        S(f"v_lshlrev_b32 v{8+2*j}, 16, v{4+j}")
        S(f"v_and_b32 v{9+2*j}, 0xffff0000, v{4+j}")
    S("""
    v_add_f32 v16, v8, v9
    v_add_f32 v17, v10, v11
    v_add_f32 v18, v12, v13
    v_add_f32 v19, v14, v15
    v_add_f32 v16, v16, v17
    v_add_f32 v18, v18, v19
    v_add_f32 v16, v16, v18
    """)
    wave_sum(S, 16, sA)
    S(f"v_mov_b32 v17, {f32(1/512)}")
    S(f"v_mul_f32 v17, s{sA}, v17")
    for j in range(8):
        S(f"v_sub_f32 v{24+j}, v{8+j}, v17")
    S("v_mul_f32 v16, v24, v24")
    for j in range(1, 8):
        S(f"v_fmac_f32 v16, v{24+j}, v{24+j}")
    wave_sum(S, 16, sA)
    S(f"""
    v_cvt_pk_bf16_f32 v20, v17, v17
    v_and_b32 v20, 0xffff0000, v20
    v_mov_b32 v18, {f32(1/512)}
    v_mul_f32 v18, s{sA}, v18
    v_cvt_pk_bf16_f32 v18, v18, v18
    v_and_b32 v18, 0xffff0000, v18
    v_add_f32 v18, {f32(1e-5)}, v18
    v_cvt_pk_bf16_f32 v18, v18, v18
    v_and_b32 v18, 0xffff0000, v18
    v_sqrt_f32 v19, v18
    v_rcp_f32 v21, v19
    v_fma_f32 v23, -v19, v19, v18
    v_mul_f32 v21, 0.5, v21
    v_fmac_f32 v19, v23, v21
    v_cvt_pk_bf16_f32 v19, v19, v19
    v_and_b32 v19, 0xffff0000, v19
    v_rcp_f32 v22, v19
    v_fma_f32 v23, -v19, v22, 1.0
    v_fmac_f32 v22, v23, v22
    v_mul_f32 v23, v20, v22
    """)
    for j in range(8):
        S(f"v_fma_f32 v{24+j}, v{8+j}, v22, -v23")
    for j in range(4):
        S(f"v_cvt_pk_f16_f32 v{4+j}, v{24+2*j}, v{25+2*j}")
    S(f"s_mul_i32 s{sA}, s{sWave}, {P1ROW}")
    S(f"s_add_u32 s{sA}, s{sA}, {P1BUF}")
    S(f"v_add_u32 v16, s{sA}, v2")
    S.lds("ds_write_b128 v16, v[4:7]", "p1w")
    S.wait_lg_all()

def p1_part2(S):
    S(f"""
    v_mov_b32 v4, v20
    v_mov_b32 v5, s{sN}
    v_mov_b32 v6, v22
    v_mov_b32 v7, s{sN}
    s_add_u32 s{sA}, s{sT0}, s{sWave}
    s_lshl_b32 s{sA}, s{sA}, 4
    s_add_u32 s{sA}, s{sA}, {WS_STATS}
    s_mov_b64 exec, 1
    """)
    S.vmem(f"buffer_store_dwordx4 v[4:7], off, {SWS}, s{sA} sc1", "statst")
    S("s_mov_b64 exec, -1")
    S(f"""
    v_and_b32 v8, 1, v1
    v_mul_u32_u24 v8, {4*P1ROW}, v8
    v_and_b32 v9, 0x1fe, v1
    v_add_u32 v8, v8, v9
    v_add_u32 v8, {P1BUF}, v8
    """)
    for k in range(2):
        for j in range(4):
            S.lds(f"ds_read_u16 v{12+4*k+j}, v8 offset:{j*P1ROW + 512*k}", f"p1r{k}")
    S(f"v_lshlrev_b32 v9, 4, v1")
    S(f"s_lshl_b32 s{sA}, s{sTB}, 14")
    S(f"s_add_u32 s{sA}, s{sA}, {WS_XNT}")
    S(f"s_add_u32 s{sB}, s{sA}, 8192")
    for k in range(2):
        S.wait_lg(f"p1r{k}")
        for j in range(4):
            S(f"v_or_b32 v{12+4*k+j}, s{sTagHi}, v{12+4*k+j}")
        S.vmem(f"buffer_store_dwordx4 v[{12+4*k}:{15+4*k}], v9, {SWS}, s{sA if k == 0 else sB} offen sc1", "xntst")

ACC1 = 64
S1A  = 112
ONES = 124
XF = (128, 160); WF = (144, 176)

def h_offsets(S):
    S(f"""
    s_and_b32 s{sA}, s{sWave}, 1
    s_lshr_b32 s{sB}, s{sWave}, 1
    s_lshr_b32 s{sC}, s{sR0}, 5
    s_lshl_b32 s{sA}, s{sA}, 1
    s_add_u32 s{sC}, s{sC}, s{sA}
    s_mul_i32 s{sC}, s{sC}, 86
    s_lshr_b32 s{sD}, s{sF0}, 4
    s_mul_i32 s{sB}, s{sB}, 3
    s_add_u32 s{sD}, s{sD}, s{sB}
    s_add_u32 s{sC}, s{sC}, s{sD}
    s_lshl_b32 s{sC}, s{sC}, 10
    s_add_u32 s{sH0}, s{sC}, {WS_H}
    s_add_u32 s{sH1}, s{sH0}, {86*1024}
    s_mov_b32 s{sM}, s{sD}
    """)

def h_soff(S, alpha, pp, dst):
    S(f"s_add_u32 s{dst}, s{sM}, {alpha}")
    S(f"s_cmp_lt_u32 s{dst}, 86")
    S(f"s_cselect_b32 s{dst}, s{sH1 if pp else sH0}, {OOB}")

def h_clear(S):
    for j in range(4): S(f"v_mov_b32 v{8+j}, 0x80008000")
    for a in range(3):
        for pp in range(2):
            h_soff(S, a, pp, sA)
            S.vmem(f"buffer_store_dwordx4 v[8:11], v2, {SWS}, s{sA} offen offset:{a*1024} sc1", "clear")

def g1_addr(S):
    S(f"""
    s_and_b32 s{sA}, s{sWave}, 1
    s_lshr_b32 s{sB}, s{sWave}, 1
    v_and_b32 v33, 15, v0
    v_lshrrev_b32 v34, 4, v0
    v_lshrrev_b32 v35, 1, v33
    v_xor_b32 v35, v35, v34
    v_lshlrev_b32 v35, 4, v35
    v_lshl_add_u32 v35, v33, 7, v35
    s_lshl_b32 s{sC}, s{sA}, 13
    v_add_u32 v24, s{sC}, v35
    v_xor_b32 v25, 64, v24
    v_lshrrev_b32 v35, 2, v33
    v_lshl_add_u32 v35, v34, 3, v35
    v_mul_u32_u24 v35, 192, v35
    v_bfe_u32 v36, v0, 1, 1
    v_lshl_add_u32 v35, v36, 4, v35
    v_and_b32 v36, 1, v0
    v_lshl_add_u32 v35, v36, 3, v35
    s_mul_i32 s{sC}, s{sB}, 96
    s_add_u32 s{sC}, s{sC}, 16384
    v_add_u32 v35, s{sC}, v35
    v_and_b32 v36, 1, v34
    v_lshlrev_b32 v36, 5, v36
    v_add_u32 v26, v35, v36
    v_sub_u32 v27, v35, v36
    """)
    S(f"""
    s_cmp_eq_u32 s{sB}, 1
    s_cselect_b64 vcc, -1, 0
    v_cndmask_b32 v35, v26, v27, vcc
    v_cndmask_b32 v27, v27, v26, vcc
    v_mov_b32 v26, v35
    """)

def g1_reads(S, c, s, st, tag):
    slot = (c % 4)*SLOT1
    xa = 37 + s; wa = (39, 40)
    if s == 0:
        S(f"v_add_u32 v37, {slot}, v24")
        S(f"v_add_u32 v38, {slot}, v25")
        S(f"v_add_u32 v39, {slot}, v26")
        S(f"v_add_u32 v40, {slot}, v27")
    for a in range(3):
        for h in range(2):
            off = (32*s + 4*h)*192 + 32*a
            S.lds(f"ds_read_b64_tr_b16 {vr(WF[st]+4*a+2*h, 2)}, v{wa[a & 1]} offset:{off}", tag)
    for tt in range(4):
        S.lds(f"ds_read_b128 {vr(XF[st]+4*tt, 4)}, v{xa} offset:{tt*2048}", tag)

def g1_mfmas(S, st, first):
    for a in range(3):
        for tt in range(4):
            acc = ACC1 + 16*a + 4*tt
            c = "0" if first else vr(acc, 4)
            S(f"v_mfma_f32_16x16x32_bf16 {vr(acc,4)}, {vr(WF[st]+4*a,4)}, {vr(XF[st]+4*tt,4)}, {c}")
        acc = S1A + 4*a
        c = "0" if first else vr(acc, 4)
        S(f"v_mfma_f32_16x16x32_bf16 {vr(acc,4)}, {vr(WF[st]+4*a,4)}, {vr(ONES,4)}, {c}")

def gemm1(S):
    g1_addr(S)
    for j in range(4): S(f"v_mov_b32 v{ONES+j}, 0x3f803f80")
    S.wait_vm("x0"); S.wait_vm("w0")
    S.barrier("G0")
    stamp(S, 2)
    g1_reads(S, 0, 0, 0, "r0_0")
    for c in range(8):
        g1_reads(S, c, 1, 1, f"r{c}_1")
        S.wait_lg(f"r{c}_0")
        g1_mfmas(S, 0, c == 0)
        if c == 4:
            g1_epi_loads(S)
        S.wait_lg(f"r{c}_1")
        if c < 3:
            S.wait_vm(f"x{c+1}")
            if c+1 == 2: S.wait_vm("w2")
        S.barrier(f"G{c+1}")
        stamp(S, 16 + c)
        if c < 7:
            g1_reads(S, c+1, 0, 0, f"r{c+1}_0")
        g1_mfmas(S, 1, False)

STAT = 188; B1R = 204; B1F = 210
def g1_epi_loads(S):
    S(f"""
    s_and_b32 s{sA}, s{sWave}, 1
    s_lshl_b32 s{sA}, s{sA}, 6
    s_add_u32 s{sA}, s{sA}, s{sR0}
    s_lshl_b32 s{sA}, s{sA}, 4
    s_add_u32 s{sE}, s{sA}, {WS_STATS}
    v_and_b32 v41, 15, v0
    v_lshlrev_b32 v41, 4, v41
    """)
    for tt in range(4):
        S.vmem(f"buffer_load_dwordx4 {vr(STAT+4*tt,4)}, v41, {SWS}, s{sE} offen offset:{tt*256} sc1", "stat")
    S(f"""
    s_lshr_b32 s{sB}, s{sWave}, 1
    s_mul_i32 s{sB}, s{sB}, 48
    s_add_u32 s{sB}, s{sB}, s{sF0}
    v_lshrrev_b32 v42, 4, v0
    v_lshlrev_b32 v42, 2, v42
    v_add_u32 v42, s{sB}, v42
    """)
    for a in range(3):
        S(f"v_add_u32 v43, {16*a}, v42")
        S(f"v_min_u32 v43, 1372, v43")
        S(f"v_lshlrev_b32 v43, 1, v43")
        S.vmem(f"global_load_dwordx2 {vr(B1R+2*a,2)}, v43, {sp(sB1)}", "b1")

def check_stats(S, lab):
    S(f"s_mov_b32 s{sRetry}, 0")
    S.wait_vm("stat")
    S(f"{lab}_chk:")
    for tt in range(4):
        b = STAT + 4*tt
        S(f"v_xor_b32 v44, s{sN}, v{b+1}")
        S(f"v_xor_b32 v45, s{sN}, v{b+3}")
        if tt == 0: S(f"v_or_b32 v46, v44, v45")
        else: S(f"v_or3_b32 v46, v46, v44, v45")
    S(f"""
    v_cmp_ne_u32 vcc, 0, v46
    s_cbranch_vccz {lab}_ok
    s_add_u32 s{sRetry}, s{sRetry}, 1
    s_cmp_ge_u32 s{sRetry}, 4096
    s_cbranch_scc1 {lab}_ok
    """)
    for tt in range(4):
        S(f"buffer_load_dwordx4 {vr(STAT+4*tt,4)}, v41, {SWS}, s{sE} offen offset:{tt*256} sc1")
    S("s_waitcnt vmcnt(0)")
    S(f"s_branch {lab}_chk")
    S(f"{lab}_ok:")

def g1_epilogue(S):
    check_stats(S, "L_st")
    S.wait_vm("b1")
    for a in range(3):
        for h in range(2):
            S(f"v_lshlrev_b32 v{B1F+4*a+2*h}, 16, v{B1R+2*a+h}")
            S(f"v_and_b32 v{B1F+4*a+2*h+1}, 0xffff0000, v{B1R+2*a+h}")
    for a in range(3):
        for pp in range(2):
            for q in range(2):
                tt = 2*pp + q
                acc = ACC1 + 16*a + 4*tt
                m = STAT + 4*tt; r = m + 2
                for h in range(2):
                    A = vr(acc+2*h, 2)
                    S(f"v_pk_fma_f32 {A}, {vr(S1A+4*a+2*h,2)}, {vr(m,2)}, {A} op_sel_hi:[1,0,1] neg_lo:[0,1,0] neg_hi:[0,1,0]")
                    S(f"v_pk_fma_f32 {A}, {A}, {vr(r,2)}, {vr(B1F+4*a+2*h,2)} op_sel_hi:[1,0,1]")
                for j in range(4):
                    S(f"v_max_f32 v{acc+j}, 0, v{acc+j}")
                for h in range(2):
                    A = vr(acc+2*h, 2)
                    S(f"v_pk_mul_f32 {A}, {A}, {A}")
                base = 48 + 4*((2*a+pp) & 1)
                S(f"v_cvt_pk_bf16_f32 v{base+2*q}, v{acc}, v{acc+1}")
                S(f"v_cvt_pk_bf16_f32 v{base+2*q+1}, v{acc+2}, v{acc+3}")
            base = 48 + 4*((2*a+pp) & 1)
            S(f"v_permlane16_swap_b32 v{base}, v{base+2}")
            S(f"v_permlane16_swap_b32 v{base+1}, v{base+3}")
            h_soff(S, a, pp, sA)
            S.vmem(f"buffer_store_dwordx4 {vr(base,4)}, v2, {SWS}, s{sA} offen offset:{a*1024} sc1", "hst")

FK = 64; CACC = 196; BRING = 216; GF = 232
VF = 32; DW = 48; BANDE = 56; BANDO = 60

def conv_setup(S):
    S(f"""
    s_lshr_b32 s{sA}, s{sWave}, 1
    v_and_b32 v33, 15, v0
    v_lshrrev_b32 v34, 4, v0
    s_mul_i32 s{sB}, s{sA}, {UTSZ}
    s_add_u32 s{sB}, s{sB}, {UT+16}
    v_lshlrev_b32 v35, 5, v33
    v_lshl_add_u32 v35, v34, 4, v35
    v_add_u32 v24, s{sB}, v35
    v_sub_u32 v35, 3, v33
    v_and_b32 v35, 3, v35
    s_mul_i32 s{sB}, s{sA}, {KCSZ}
    s_add_u32 s{sB}, s{sB}, {KC}
    v_mul_u32_u24 v36, {KCOPY}, v35
    v_add_u32 v36, s{sB}, v36
    v_add_u32 v35, v35, v33
    v_lshlrev_b32 v37, 3, v34
    v_sub_u32 v37, v37, v35
    v_add_u32 v37, 27, v37
    v_lshl_add_u32 v25, v37, 1, v36
    v_lshlrev_b32 v37, 2, v34
    v_sub_u32 v37, v37, v35
    v_add_u32 v37, 19, v37
    v_lshl_add_u32 v26, v37, 1, v36
    s_lshl_b32 s{sB}, s{sA}, 2
    s_add_u32 s{sB}, s{sB}, {MISC}
    v_mov_b32 v27, s{sB}
    """)
    for (dst, h) in ((BANDE, 4), (BANDO, 3)):
        S(f"v_add_u32 v35, {8-h}, v33")
        S(f"v_mov_b32 v36, {(1 << (2*h+1)) - 1}")
        S(f"v_lshlrev_b32 v36, v35, v36")
        S(f"v_lshlrev_b32 v35, 3, v34")
        S(f"v_lshrrev_b32 v36, v35, v36")
        for j in range(4):
            S(f"v_bfe_u32 v35, v36, {2*j}, 1")
            S(f"v_bfe_u32 v37, v36, {2*j+1}, 1")
            S(f"v_lshl_or_b32 v35, v37, 16, v35")
            S(f"v_mul_u32_u24 v{dst+j}, 0x3c00, v35")

def conv_far(S, svals, pairs):
    S.lds(f"ds_read_b32 v28, v27", "sig")
    taus = [t for s in svals for t in (2*s, 2*s+1)]
    first = set()
    for s in svals:
        for (name, Z, band, vf, sec) in (("E", 24, BANDE, VF + 4*s, SEC_E), ("O", 16, BANDO, VF + 8 + 4*s, SEC_O)):
            for q in range(2):
                tau = 2*s + q
                S.lds(f"ds_read_b128 {vr(BRING+4*q,4)}, v24 offset:{528 + 512*tau - 2*Z}", f"U{name}{tau}")
            for q in range(2):
                S.wait_lg(f"U{name}{2*s+q}")
                S(f"v_mfma_f32_16x16x32_f16 {vr(DW+4*q,4)}, {vr(BRING+4*q,4)}, {vr(band,4)}, 0")
            for q in range(2):
                S(f"v_cvt_pk_f16_f32 v{vf+2*q}, v{DW+4*q}, v{DW+4*q+1}")
                S(f"v_cvt_pk_f16_f32 v{vf+2*q+1}, v{DW+4*q+2}, v{DW+4*q+3}")
    n = 0
    for (cl, s, delta) in pairs:
        for (name, vf, sec) in (("E", VF + 4*s, SEC_E), ("O", VF + 8 + 4*s, SEC_O)):
            g = GF + 4*(n % 4); n += 1
            off = sec + 32*(7 - delta)
            S.lds(f"ds_read_b64 {vr(g,2)}, v26 offset:{off}", f"G{n}")
            S.lds(f"ds_read_b64 {vr(g+2,2)}, v26 offset:{off+32}", f"G{n}")
            S.wait_lg(f"G{n}")
            acc = CACC + 4*cl
            c = vr(acc, 4) if cl in first else "0"
            first.add(cl)
            S(f"v_mfma_f32_16x16x32_f16 {vr(acc,4)}, {vr(vf,4)}, {vr(g,4)}, {c}")
    return first

def conv_near(S, tiles, first):
    kmax = lambda c: min(32, 8*c + 8)
    xi_hi = 8*tiles[-1]; xi_lo = min(8*c - kmax(c) for c in tiles)
    steps = list(range(xi_hi, xi_lo - 1, -1))
    D = 2
    def issue(i):
        xi = steps[i]
        kn = xi_hi - xi
        if kn <= 32:
            S.lds(f"ds_read_b64 {vr(FK+4*kn,2)}, v25 offset:{64*(32-kn)}", f"s{i}")
            S.lds(f"ds_read_b64 {vr(FK+4*kn+2,2)}, v25 offset:{64*(32-kn)+8}", f"s{i}")
        S.lds(f"ds_read_b128 {vr(BRING+4*(i % 4),4)}, v24 offset:{64*(xi+8)}", f"s{i}")
    for i in range(min(D, len(steps))): issue(i)
    first = set(first)
    for i, xi in enumerate(steps):
        if i + D < len(steps): issue(i + D)
        S.wait_lg(f"s{i}")
        for cl, c in enumerate(tiles):
            k = 8*c - xi
            if 0 <= k <= kmax(c):
                acc = CACC + 4*cl
                cc = vr(acc, 4) if cl in first else "0"
                first.add(cl)
                S(f"v_mfma_f32_16x16x32_f16 {vr(acc,4)}, {vr(FK+4*k,4)}, {vr(BRING+4*(i % 4),4)}, {cc}")

def conv_store(S, tiles):
    S(f"""
    s_lshr_b32 s{sA}, s{sWave}, 1
    s_add_u32 s{sA}, s{sA}, s{sD0}
    s_lshl_b32 s{sA}, s{sA}, 13
    s_add_u32 s{sA}, s{sA}, {WS_Y}
    v_and_b32 v33, 15, v0
    v_lshrrev_b32 v34, 4, v0
    v_lshlrev_b32 v33, 6, v33
    v_lshl_add_u32 v33, v34, 4, v33
    v_mov_b32 v34, 0xffff0000
    """)
    for cl, c in enumerate(tiles):
        acc = CACC + 4*cl
        for j in range(4): S(f"v_mul_f32 v{acc+j}, v28, v{acc+j}")
        S(f"v_cvt_pk_bf16_f32 v35, v{acc}, v{acc+1}")
        S(f"v_cvt_pk_bf16_f32 v36, v{acc+2}, v{acc+3}")
        S(f"v_lshl_or_b32 v{acc}, v35, 16, s{sTagLo}")
        S(f"v_and_b32 v35, v34, v35")
        S(f"v_or_b32 v{acc+1}, s{sTagLo}, v35")
        S(f"v_lshl_or_b32 v{acc+2}, v36, 16, s{sTagLo}")
        S(f"v_and_b32 v36, v34, v36")
        S(f"v_or_b32 v{acc+3}, s{sTagLo}, v36")
        S(f"s_add_u32 s{sB}, s{sA}, {c*1024}")
        S.vmem(f"buffer_store_dwordx4 {vr(acc,4)}, v33, {SWS}, s{sB} offen sc1", "yst")

def conv(S):
    conv_setup(S)
    S(f"s_bitcmp1_b32 s{sWave}, 0")
    S(f"s_cbranch_scc1 L_convB")
    save_lg = (list(S.lg), S.lg_done); save_vm = (list(S.vm), S.vm_done)
    first = conv_far(S, [0], [(4, 0, 4)])
    conv_near(S, [0, 1, 2, 3, 4], first)
    conv_store(S, [0, 1, 2, 3, 4])
    S.wait_lg_all()
    S("s_branch L_convE")
    S("L_convB:")
    vmA = list(S.vm)
    S.lg, S.lg_done = save_lg; S.vm, S.vm_done = save_vm
    first = conv_far(S, [0, 1], [(0, 0, 5), (1, 0, 6), (1, 1, 4), (2, 0, 7), (2, 1, 5)])
    conv_near(S, [5, 6, 7], first)
    conv_store(S, [5, 6, 7])
    S(f"s_mov_b32 s{sB}, {OOB}")
    for _ in range(2):
        S.vmem(f"buffer_store_dwordx4 {vr(CACC,4)}, v33, {SWS}, s{sB} offen sc1", "yst")
    S.wait_lg_all()
    assert len(S.vm) == len(vmA)
    S("L_convE:")

ACC2 = 64; HR = 96; BF2 = (160, 168); XT = 176; B2R = 180; YR = 184; PR = 200
RD = 16
def gemm2_setup(S):
    S(f"""
    s_lshr_b32 s{sA}, s{sWave}, 1
    s_and_b32 s{sB}, s{sWave}, 1
    s_lshr_b32 s{sC}, s{sR2}, 5
    s_add_u32 s{sC}, s{sC}, s{sB}
    s_mul_i32 s{sC}, s{sC}, 86
    s_mul_i32 s{sD}, s{sA}, 43
    s_add_u32 s{sC}, s{sC}, s{sD}
    s_lshl_b32 s{sC}, s{sC}, 10
    s_add_u32 s{sH0}, s{sC}, {WS_H}
    v_lshrrev_b32 v33, 5, v0
    v_lshlrev_b32 v33, 3, v33
    v_bfe_u32 v34, v0, 2, 2
    v_add_u32 v33, v33, v34
    v_lshlrev_b32 v33, 7, v33
    v_bfe_u32 v34, v0, 4, 1
    v_lshlrev_b32 v34, 1, v34
    v_bfe_u32 v35, v0, 1, 1
    v_add_u32 v34, v34, v35
    s_lshl_b32 s{sD}, s{sA}, 2
    v_or_b32 v34, s{sD}, v34
    v_bfe_u32 v35, v0, 3, 1
    v_lshlrev_b32 v35, 2, v35
    v_xor_b32 v34, v34, v35
    v_lshl_add_u32 v33, v34, 4, v33
    v_and_b32 v34, 1, v0
    v_lshl_add_u32 v33, v34, 3, v33
    s_lshl_b32 s{sD}, s{sA}, 13
    v_add_u32 v24, s{sD}, v33
    v_xor_b32 v25, 64, v24
    """)

def xtile_load(S):
    S(f"""
    v_lshrrev_b32 v30, 3, v1
    v_add_u32 v30, s{sR2}, v30
    v_lshlrev_b32 v30, 10, v30
    v_and_b32 v31, 7, v1
    v_lshlrev_b32 v31, 4, v31
    s_lshl_b32 s{sA}, s{sC2}, 1
    v_add3_u32 v30, v30, v31, s{sA}
    """)
    S.vmem(f"buffer_load_dwordx4 {vr(XT,4)}, v30, {SU}, 0 offen", "xt")

def h_load(S, f, tag=True):
    r = HR + 4*(f % RD)
    if f % 4 == 0 or not tag:
        S(f"s_add_u32 s{sE}, s{sH0}, {(f//4)*4096}")
    txt = f"buffer_load_dwordx4 {vr(r,4)}, v2, {SWS}, s{sE} offen offset:{(f % 4)*1024} sc1"
    if tag: S.vmem(txt, f"h{f}")
    else: S(txt)

def g2_reads(S, j, s, st, tag):
    if s == 0:
        S(f"v_add_u32 v26, {slot2(j)}, v24")
        S(f"v_add_u32 v27, {slot2(j)}, v25")
    for lc in range(2):
        for h in range(2):
            S.lds(f"ds_read_b64_tr_b16 {vr(BF2[st]+4*lc+2*h,2)}, v{26+lc} offset:{(16*s+4*h)*128}", tag)

def y_loads(S, tag=True):
    for q in range(4):
        txt = f"buffer_load_dwordx4 {vr(YR+4*q,4)}, v28, {SWS}, s{sG} offen offset:{q*32} sc1"
        if tag: S.vmem(txt, "y")
        else: S(txt)

def gemm2(S):
    gemm2_setup(S)
    xtile_load(S)
    S(f"""
    s_lshr_b32 s{sA}, s{sWave}, 1
    s_lshl_b32 s{sA}, s{sA}, 5
    s_add_u32 s{sA}, s{sA}, s{sC2}
    v_and_b32 v28, 31, v0
    v_add_u32 v28, s{sA}, v28
    v_lshlrev_b32 v29, 1, v28
    """)
    S.vmem(f"global_load_ushort v{B2R}, v29, {sp(sB2)}", "b2")
    S(f"""
    v_lshlrev_b32 v28, 13, v28
    v_lshrrev_b32 v29, 5, v0
    v_lshl_add_u32 v28, v29, 4, v28
    s_and_b32 s{sB}, s{sWave}, 1
    s_lshl_b32 s{sB}, s{sB}, 5
    s_add_u32 s{sB}, s{sB}, s{sR2}
    s_lshl_b32 s{sB}, s{sB}, 2
    s_add_u32 s{sG}, s{sB}, {WS_Y}
    """)
    for f in range(RD): h_load(S, f)
    S.barrier("W0")
    stamp(S, 7)
    g2_reads(S, 0, 0, 0, "b0_0")
    f = 0; st = 0
    for j in range(11):
        ns = 4 if j < 10 else 3
        S.wait_vm(f"h{f+ns-1}")
        lab = f"L_h{j}"
        S(f"s_mov_b32 s{sRetry}, 0")
        S(f"{lab}_chk:")
        regs = [HR + 4*((f+k) % RD) + e for k in range(ns) for e in range(4)]
        S(f"v_or3_b32 v33, v{regs[0]}, v{regs[1]}, v{regs[2]}")
        k = 3
        while k < len(regs):
            if k + 1 < len(regs):
                S(f"v_or3_b32 v33, v33, v{regs[k]}, v{regs[k+1]}"); k += 2
            else:
                S(f"v_or_b32 v33, v33, v{regs[k]}"); k += 1
        S(f"""
        v_and_b32 v33, 0x80008000, v33
        v_cmp_ne_u32 vcc, 0, v33
        s_cbranch_vccz {lab}_ok
        s_add_u32 s{sRetry}, s{sRetry}, 1
        s_cmp_ge_u32 s{sRetry}, 4096
        s_cbranch_scc1 {lab}_ok
        """)
        S(f"s_add_u32 s{sF}, s{sH0}, {f*1024}")
        for k in range(ns):
            S(f"buffer_load_dwordx4 {vr(HR+4*((f+k) % RD),4)}, v2, {SWS}, s{sF} offen offset:{k*1024} sc1")
        S("s_waitcnt vmcnt(0)")
        S(f"s_branch {lab}_chk")
        S(f"{lab}_ok:")
        for s in range(ns):
            if s < ns - 1:
                g2_reads(S, j, s+1, st ^ 1, f"b{j}_{s+1}")
                S.wait_lg(f"b{j}_{s}")
            else:
                S.wait_lg(f"b{j}_{s}")
                S.barrier(f"W{j+1}")
                if j < 10: g2_reads(S, j+1, 0, st ^ 1, f"b{j+1}_0")
            for lc in range(2):
                acc = ACC2 + 16*lc
                c = "0" if f == 0 else vr(acc, 16)
                S(f"v_mfma_f32_32x32x16_bf16 {vr(acc,16)}, {vr(HR+4*(f % RD),4)}, {vr(BF2[st]+4*lc,4)}, {c}")
            if f + RD < 43: h_load(S, f + RD)
            if f + RD == 43: y_loads(S)
            f += 1; st ^= 1

def final_C(S):
    S(f"s_lshl_b32 s{sA}, s{sWave}, 12")
    S(f"s_add_u32 s{sA}, s{sA}, {XCH}")
    S(f"v_add_u32 v33, s{sA}, v2")
    for q in range(4):
        S.lds(f"ds_write_b128 v33, {vr(ACC2+16+4*q,4)} offset:{q*1024}", "xw")
    S.wait_lg_all()
    S.barrier("FX")
    S(f"s_xor_b32 s{sA}, s{sWave}, 2")
    S(f"s_lshl_b32 s{sA}, s{sA}, 12")
    S(f"s_add_u32 s{sA}, s{sA}, {XCH}")
    S(f"v_add_u32 v33, s{sA}, v2")
    for q in range(4):
        S.lds(f"ds_read_b128 {vr(PR+4*q,4)}, v33 offset:{q*1024}", "xr")
    S.wait_vm("y")
    S(f"s_mov_b32 s{sRetry}, 0")
    S("L_y_chk:")
    for k in range(16):
        S(f"v_xor_b32 v34, s{sTagLo}, v{YR+k}")
        if k == 0: S("v_mov_b32 v35, v34")
        else: S("v_or_b32 v35, v35, v34")
    S(f"""
    v_and_b32 v35, 0xffff, v35
    v_cmp_ne_u32 vcc, 0, v35
    s_cbranch_vccz L_y_ok
    s_add_u32 s{sRetry}, s{sRetry}, 1
    s_cmp_ge_u32 s{sRetry}, 4096
    s_cbranch_scc1 L_y_ok
    """)
    y_loads(S, tag=False)
    S("s_waitcnt vmcnt(0)")
    S("s_branch L_y_chk")
    S("L_y_ok:")
    S.wait_vm("b2")
    S(f"v_lshlrev_b32 v{B2R}, 16, v{B2R}")
    S.wait_lg("xr")
    for k in range(16):
        S(f"v_and_b32 v{YR+k}, 0xffff0000, v{YR+k}")
        S(f"v_add_f32 v{ACC2+k}, v{ACC2+k}, v{PR+k}")
        S(f"v_add_f32 v{YR+k}, v{YR+k}, v{B2R}")
        S(f"v_fma_f32 v{ACC2+k}, v{ACC2+k}, s5, v{YR+k}")
    S(f"""
    s_and_b32 s{sA}, s{sWave}, 1
    s_mul_i32 s{sA}, s{sA}, {32*TTROW}
    s_lshr_b32 s{sB}, s{sWave}, 1
    s_lshl_b32 s{sB}, s{sB}, 7
    s_add_u32 s{sA}, s{sA}, s{sB}
    s_add_u32 s{sA}, s{sA}, {TT}
    v_lshrrev_b32 v33, 5, v0
    v_mul_u32_u24 v33, {4*TTROW}, v33
    v_and_b32 v34, 31, v0
    v_lshl_add_u32 v33, v34, 2, v33
    v_add_u32 v33, s{sA}, v33
    """)
    for k in range(16):
        S.lds(f"ds_write_b32 v33, v{ACC2+k} offset:{(8*(k >> 2) + (k & 3))*TTROW}", "tw")
    S.wait_lg_all()

def final_all(S):
    S.barrier("FT")
    S(f"""
    v_lshrrev_b32 v33, 3, v1
    v_mul_u32_u24 v33, {TTROW}, v33
    v_and_b32 v34, 7, v1
    v_lshl_add_u32 v33, v34, 5, v33
    v_add_u32 v33, {TT}, v33
    """)
    S.lds("ds_read_b128 v[40:43], v33", "tr")
    S.lds("ds_read_b128 v[44:47], v33 offset:16", "tr")
    S.wait_vm("xt")
    for j in range(4):
        S(f"v_lshlrev_b32 v{48+2*j}, 16, v{XT+j}")
        S(f"v_and_b32 v{49+2*j}, 0xffff0000, v{XT+j}")
    S.wait_lg_all()
    for j in range(8): S(f"v_add_f32 v{40+j}, v{40+j}, v{48+j}")
    for j in range(4): S(f"v_cvt_pk_bf16_f32 v{48+j}, v{40+2*j}, v{41+2*j}")
    S.vmem(f"buffer_store_dwordx4 v[48:51], v30, {SOUT}, 0 offen", "out")

LOG2E = 1.4426950408889634
L_HI = struct.unpack("<f", struct.pack("<I", 0x3FB8AA00))[0]
L_LO = LOG2E - L_HI
CC, Z1, Z2, Z4, Z8, Z128 = 16, 18, 20, 22, 24, 26
PA, PB = 28, 30
RR = 40
CV = 80
BE = 96
AE = 112
DD = 128
WA = 144
RA = 152
DP = 172
SIGH = 95

def cmul(S, d, a, b):
    S(f"v_pk_mul_f32 {vr(d,2)}, {vr(a,2)}, {vr(b,2)} op_sel_hi:[0,1]")
    S(f"v_pk_fma_f32 {vr(d,2)}, {vr(a,2)}, {vr(b,2)}, {vr(d,2)} op_sel:[1,1,0] op_sel_hi:[1,0,1] neg_lo:[1,0,0]")

def zpow(S, d, p):
    S(f"v_mul_f32 v34, {f32(p)}, v14")
    S(f"v_mul_f32 v35, {f32(p)}, v15")
    S("v_exp_f32 v34, v34")
    S("v_fract_f32 v35, v35")
    S("v_cos_f32 v36, v35")
    S("v_sin_f32 v37, v35")
    S(f"v_mul_f32 v{d}, v34, v36")
    S(f"v_mul_f32 v{d+1}, v34, v37")

def param_loads(S, base=4):
    S(f"""
    s_sub_u32 s{sHW}, s{sWave}, {base}
    s_lshr_b32 s{sCH}, s{sHW}, 1
    s_and_b32 s{sNH}, s{sHW}, 1
    s_add_u32 s{sA}, s{sD0}, s{sCH}
    s_lshl_b32 s{sB}, s{sA}, 7
    s_lshl_b32 s{sC}, s{sNH}, 6
    s_add_u32 s{sB}, s{sB}, s{sC}
    v_add_u32 v33, s{sB}, v0
    v_lshlrev_b32 v33, 1, v33
    s_lshl_b32 s{sA}, s{sA}, 1
    v_mov_b32 v34, s{sA}
    """)
    if OPT.fine: stamp(S, 26)
    for k, s in enumerate((sAre, sAim, sBre, sBim, sCre, sCim)):
        S.vmem(f"global_load_ushort v{160+k}, v33, {sp(s)}", "par")
        if OPT.fine and k == 0: S("s_nop 7"); S("s_nop 7"); S("s_nop 7"); S("s_nop 7"); S("s_waitcnt lgkmcnt(0)"); stamp(S, 27)
        if OPT.fine and k == 3: S("s_waitcnt lgkmcnt(0)"); stamp(S, 28)
    S.vmem(f"global_load_ushort v166, v34, {sp(sLdt)}", "par")
    S.vmem(f"global_load_ushort v167, v34, {sp(sDsk)}", "par")

def code_prefetch(S):
    S(f"""
    s_lshl_b32 s{sA}, s{sI}, 2
    s_add_u32 s{sA}, s{sA}, s{sHW}
    s_and_b32 s{sA}, s{sA}, 31
    s_lshl_b32 s{sA}, s{sA}, 10
    s_min_u32 s{sA}, s{sA}, L_end-{KNAME}-1024
    s_getpc_b64 {sp(sP0)}
    L_pc:
    s_sub_u32 s{sP0}, s{sP0}, L_pc-{KNAME}
    s_subb_u32 s{sP0+1}, s{sP0+1}, 0
    v_add_u32 v35, s{sA}, v2
    """)
    S.vmem(f"global_load_dwordx4 v[168:171], v35, {sp(sP0)}", "pref")

def write_tile(S):
    for i in range(8):
        S.lds(f"ds_write2st64_b32 v{WA+i}, v{CV+i}, v{CV+8+i} offset0:{i} offset1:{i+8}", "ew")

def read_frags(S, dst, tag):
    for s in range(4):
        S.lds(f"ds_read_b128 {vr(dst+4*s,4)}, v{RA+s}", tag)

def kgen_atoms(S):
    S.wait_vm("par")
    for k in range(8): S(f"v_lshlrev_b32 v{160+k}, 16, v{160+k}")
    S(f"""
    v_mul_f32 v34, {f32(L_HI)}, v166
    v_mul_f32 v35, {f32(L_LO*0.6931471805599453)}, v166
    v_exp_f32 v34, v34
    s_nop 0
    v_fmac_f32 v34, v34, v35
    v_cvt_pk_bf16_f32 v34, v34, v34
    v_and_b32 v34, 0xffff0000, v34
    v_mul_f32 v14, v34, v160
    v_mul_f32 v15, v34, v161
    v_mul_f32 v14, {f32(LOG2E)}, v14
    v_mul_f32 v15, {f32(0.15915494309189535)}, v15
    v_mul_f32 v162, v34, v162
    v_mul_f32 v163, v34, v163
    """)
    cmul(S, CC, 164, 162)
    S(f"v_mul_f32 v38, v{CC}, v{CC}")
    S(f"v_fmac_f32 v38, v{CC+1}, v{CC+1}")
    wave_max(S, 38, sA)
    S(f"""
    v_mov_b32 v38, {f32(1e-36)}
    v_max_f32 v38, s{sA}, v38
    v_rsq_f32 v39, v38
    s_nop 0
    v_mul_f32 v38, v38, v39
    v_readfirstlane_b32 s{SIGH}, v38
    v_mul_f32 v{RR}, v{CC}, v39
    v_mul_f32 v{RR+1}, v{CC+1}, v39
    """)
    yield
    S(f"""
    s_lshl_b32 s{sA}, s{sHW}, 12
    s_add_u32 s{sA}, s{sA}, {ESCR}
    v_lshlrev_b32 v33, 2, v0
    """)
    for i in range(8):
        S(f"v_xor_b32 v{WA+i}, {32*i}, v33")
        S(f"v_add_u32 v{WA+i}, s{sA}, v{WA+i}")
    S(f"""
    v_and_b32 v33, 15, v0
    v_lshrrev_b32 v34, 4, v0
    v_and_b32 v35, 7, v33
    v_lshlrev_b32 v35, 1, v35
    v_xor_b32 v35, v35, v34
    v_lshlrev_b32 v35, 4, v35
    v_lshl_add_u32 v35, v33, 8, v35
    """)
    for s in range(4):
        S(f"v_xor_b32 v{RA+s}, {64*s}, v35")
        S(f"v_add_u32 v{RA+s}, s{sA}, v{RA+s}")
    yield
    zpow(S, Z1, 1); zpow(S, Z8, 8)
    yield
    zpow(S, Z128, 128)
    cmul(S, Z2, Z1, Z1); cmul(S, Z4, Z2, Z2)
    yield
    S(f"v_mov_b32 v{CV}, 0x00003c00")
    S(f"v_cvt_pk_f16_f32 v{CV+1}, v{Z8}, v{Z8+1}")
    cur = Z8
    for j in range(2, 16):
        nxt = PA if cur != PA else PB
        cmul(S, nxt, cur, Z8)
        S(f"v_cvt_pk_f16_f32 v{CV+j}, v{nxt}, v{nxt+1}")
        cur = nxt
        if j == 8: yield
    write_tile(S)
    read_frags(S, BE, "be")
    yield
    for i in range(1, 17):
        cmul(S, RR+2*i, RR+2*(i-1), Z128)
        if i == 8: yield
    yield
    def put(row, reg):
        S(f"v_cvt_pk_f16_f32 v{CV+row}, v{reg}, -v{reg+1}")
    def chain(row0, start, mult, n):
        put(row0, start)
        cur = start
        for j in range(1, n):
            nxt = PA if cur != PA else PB
            cmul(S, nxt, cur, mult)
            put(row0+j, nxt)
            cur = nxt
    def tile_out(t):
        write_tile(S)
        read_frags(S, AE + 16*(t & 1)*0, f"ae{t}")
    def tile_mm(t):
        S.wait_lg(f"ae{t}")
        for s in range(4):
            c = "0" if s == 0 else vr(DD+4*t, 4)
            S(f"v_mfma_f32_16x16x32_f16 {vr(DD+4*t,4)}, {vr(AE+4*s,4)}, {vr(BE+4*s,4)}, {c}")
    chain(0, RR, Z1, 8); yield
    chain(8, RR+2, Z1, 8)
    tile_out(0); yield
    chain(0, RR+4, Z2, 4); chain(4, RR+6, Z2, 4); yield
    for k in range(4): chain(8+2*k, RR+8+2*k, Z4, 2)
    S.wait_lg("be")
    tile_mm(0)
    tile_out(1); yield
    for i in range(8): put(i, RR+16+2*i)
    put(8, RR+32)
    for i in range(9, 16): S(f"v_mov_b32 v{CV+i}, 0")
    tile_mm(1)
    tile_out(2); yield
    tile_mm(2)
    if OPT.allwrite:
        S(f"s_lshl_b32 s{sA}, s{sHW}, 12")
        S(f"s_add_u32 s{sA}, s{sA}, {ESCR}")
        S(f"v_add_u32 v33, s{sA}, v2")
        S(f"v_mov_b32 v34, s{SIGH}")
        S(f"v_mov_b32 v35, s{sA}")
        for t in range(3):
            S.lds(f"ds_write_b128 v33, {vr(DD+4*t,4)} offset:{t*1024}", "dw")
        S.lds(f"ds_write_b32 v35, v34 offset:3072", "dw")
        yield "DX"
        return
    S(f"s_cmp_eq_u32 s{sNH}, 1")
    S(f"s_cbranch_scc0 L_kx")
    S(f"v_mov_b32 v34, s{SIGH}")
    S(f"s_mul_i32 s{sA}, s{sCH}, 8192")
    S(f"s_add_u32 s{sA}, s{sA}, {ESCR + 4096}")
    S(f"v_add_u32 v33, s{sA}, v2")
    S(f"v_mov_b32 v35, s{sA}")
    save = (list(S.lg), S.lg_done)
    for t in range(3):
        S(f"ds_write_b128 v33, {vr(DD+4*t,4)} offset:{t*1024}")
    S(f"ds_write_b32 v35, v34 offset:3072")
    S("L_kx:")
    S("s_waitcnt lgkmcnt(0)"); S.lg_done = len(S.lg)
    yield "DX"

def kgen_zero(S):
    S(f"""
    s_mul_i32 s{sA}, s{sCH}, {KCSZ}
    s_add_u32 s{sA}, s{sA}, {KC}
    v_mov_b32 v34, 0
    v_mov_b32 v35, 0
    v_mov_b32 v36, 0
    v_mov_b32 v37, 0
    v_add_u32 v33, s{sA}, v2
    """)
    S(f"s_lshl_b32 s{sB}, s{sNH}, 10")
    S(f"v_add_u32 v33, s{sB}, v33")
    S.lds("ds_write_b128 v33, v[34:37]", "z")
    S(f"v_cmp_gt_u32 vcc, {164-128}, v0")
    S(f"s_cmp_eq_u32 s{sNH}, 0")
    S(f"s_cselect_b64 {sp(sP0)}, -1, 0")
    S(f"s_and_b64 exec, vcc, {sp(sP0)}")
    S.lds("ds_write_b128 v33, v[34:37] offset:2048", "z")
    S("s_mov_b64 exec, -1")

def ut_zero(S):
    S(f"""
    s_mul_i32 s{sA}, s{sCH}, {UTSZ}
    s_add_u32 s{sA}, s{sA}, {UT}
    v_mov_b32 v34, 0
    v_mov_b32 v35, 0
    v_mov_b32 v36, 0
    v_mov_b32 v37, 0
    v_add_u32 v33, s{sA}, v2
    v_cmp_gt_u32 vcc, 34, v0
    s_mov_b64 exec, vcc
    """)
    S.lds("ds_write_b128 v33, v[34:37]", "z")
    S(f"v_cmp_gt_u32 vcc, 2, v0")
    S("s_mov_b64 exec, vcc")
    S.lds(f"ds_write_b128 v33, v[34:37] offset:{(272+2048)*2}", "z")
    S("s_mov_b64 exec, -1")

def kgen_combine(S):
    S(f"s_cmp_eq_u32 s{sNH}, 0")
    S(f"s_cbranch_scc0 L_kc")
    save = (list(S.lg), S.lg_done)
    S(f"""
    s_mul_i32 s{sA}, s{sCH}, 8192
    s_add_u32 s{sA}, s{sA}, {ESCR + 4096}
    v_add_u32 v33, s{sA}, v2
    v_mov_b32 v35, s{sA}
    """)
    for t in range(3):
        S(f"ds_read_b128 {vr(DP+4*t,4)}, v33 offset:{t*1024}")
    S("ds_read_b32 v38, v35 offset:3072")
    S("s_waitcnt lgkmcnt(0)")
    S(f"""
    v_mov_b32 v39, s{SIGH}
    v_and_b32 v34, 0x7fffffff, v167
    v_mul_f32 v34, {f32(1/1024)}, v34
    v_max3_f32 v34, v34, v38, v39
    v_rcp_f32 v35, v34
    s_nop 0
    v_mul_f32 v38, v38, v35
    v_mul_f32 v39, v39, v35
    v_mul_f32 v36, v167, v35
    s_lshl_b32 s{sA}, s{sCH}, 2
    s_add_u32 s{sA}, s{sA}, {MISC}
    v_mov_b32 v37, s{sA}
    ds_write_b32 v37, v34
    """)
    for k in range(12):
        S(f"v_mul_f32 v{DD+k}, v39, v{DD+k}")
        S(f"v_fmac_f32 v{DD+k}, v38, v{DP+k}")
    S(f"""
    v_cmp_eq_u32 vcc, 0, v0
    s_nop 1
    v_cndmask_b32 v36, 0, v36, vcc
    v_add_f32 v{DD}, v{DD}, v36
    s_mul_i32 s{sA}, s{sCH}, {KCSZ}
    s_add_u32 s{sA}, s{sA}, {KC}
    v_and_b32 v33, 15, v0
    v_lshrrev_b32 v34, 4, v0
    """)
    T0, T1, T2 = DD, DD+4, DD+8
    S(f"v_cvt_pk_f16_f32 v40, v{T1}, v{T1+1}")
    S(f"v_cvt_pk_f16_f32 v41, v{T1+2}, v{T1+3}")
    S(f"v_cvt_pk_f16_f32 v42, v{T2}, v{T2+1}")
    S(f"v_cvt_pk_f16_f32 v43, v{T2+2}, v{T2+3}")
    S(f"v_cvt_pk_f16_f32 v44, v{T0+3}, v{T0+2}")
    S(f"v_cvt_pk_f16_f32 v45, v{T0+1}, v{T0}")
    def w16(addr, reg, hi, off):
        S(f"ds_write_b16{'_d16_hi' if hi else ''} v{addr}, v{reg} offset:{off}")
    S(f"""
    v_lshlrev_b32 v35, 8, v34
    v_lshl_add_u32 v35, v33, 3, v35
    v_sub_u32 v35, {1059 - 5 - 128}, v35
    v_lshlrev_b32 v35, 1, v35
    v_add_u32 v35, s{sA}, v35
    v_cmp_le_u32 vcc, 32, v0
    s_mov_b64 exec, vcc
    """)
    for pair, (reg) in enumerate((40, 41)):
        o = 256*(1 - pair)
        for e in range(8):
            w16(35, reg, e < 3, o + 2*e)
    S(f"""
    s_mov_b64 exec, -1
    v_lshlrev_b32 v35, 7, v34
    v_lshl_add_u32 v35, v33, 3, v35
    v_sub_u32 v35, {1059 - 6 - 256}, v35
    v_lshlrev_b32 v35, 1, v35
    v_add_u32 v35, s{sA}, v35
    s_mov_b32 exec_hi, 0
    """)
    seq = [(41, True), (41, False), (41, False), (41, False), (40, True), (40, False), (40, False), (40, False)]
    for e, (reg, hi) in enumerate(seq): w16(35, reg, hi, 2*e)
    S(f"""
    v_lshrrev_b32 v36, 1, v33
    v_lshl_add_u32 v36, v34, 5, v36
    v_and_b32 v37, 1, v33
    v_mul_u32_u24 v38, {SEC_O - SEC_E - 2}, v37
    v_sub_u32 v36, {68 - 24}, v36
    v_lshlrev_b32 v36, 1, v36
    v_add3_u32 v36, v36, v38, s{sA}
    """)
    for r, (reg, hi) in enumerate(((42, False), (42, True), (43, False), (43, True))):
        w16(36, reg, hi, SEC_E + 2*(24 - 8*r))
    S("s_mov_b64 exec, -1")
    S(f"""
    v_readlane_b32 s{sB}, v42, 0
    v_readlane_b32 s{sC}, v42, 32
    v_lshlrev_b32 v35, 1, v0
    v_add_u32 v35, s{sA}, v35
    v_mov_b32 v36, s{sB}
    v_mov_b32 v37, 0
    v_mov_b32 v38, s{sC}
    s_mov_b64 exec, 0x7f
    ds_write_b16 v35, v36 offset:{2*(1059-1028)}
    s_mov_b64 exec, 1
    ds_write_b16 v35, v37 offset:{SEC_E + 2*68}
    ds_write_b16 v35, v38 offset:{SEC_E + 2*4}
    s_mov_b64 exec, -1
    """)
    S(f"""
    v_lshrrev_b32 v35, 1, v34
    v_lshlrev_b32 v35, 7, v35
    v_lshl_add_u32 v35, v33, 3, v35
    v_and_b32 v36, 1, v34
    v_lshl_add_u32 v35, v36, 2, v35
    v_sub_u32 v35, 1056, v35
    v_lshlrev_b32 v35, 1, v35
    v_add_u32 v35, s{sA}, v35
    ds_write_b64 v35, v[44:45]
    L_kc:
    s_waitcnt lgkmcnt(0)
    """)
    S.lg_done = len(S.lg)

def kgen_build(S):
    S(f"""
    s_mul_i32 s{sA}, s{sCH}, {KCSZ}
    s_add_u32 s{sA}, s{sA}, {KC}
    s_lshl_b32 s{sB}, s{sNH}, 10
    s_add_u32 s{sA}, s{sA}, s{sB}
    v_add_u32 v33, s{sA}, v2
    """)
    def rnd(off, tag):
        S.lds(f"ds_read_b128 v[40:43], v33 offset:{off}", tag)
        S.lds(f"ds_read_b64 v[44:45], v33 offset:{off+16}", tag)
        S.wait_lg(tag)
        for i in range(4): S(f"v_alignbit_b32 v{48+i}, v{41+i}, v{40+i}, 16")
        for i in range(4): S(f"v_alignbit_b32 v{52+i}, v{42+i}, v{41+i}, 16")
        S.lds(f"ds_write_b128 v33, v[48:51] offset:{off+KCOPY}", "bw")
        S.lds(f"ds_write2_b32 v56, v41, v42 offset0:0 offset1:1", "bw")
        S.lds(f"ds_write2_b32 v56, v43, v44 offset0:2 offset1:3", "bw")
        S.lds(f"ds_write_b128 v33, v[52:55] offset:{off+3*KCOPY}", "bw")
    S(f"v_add_u32 v56, {2*KCOPY}, v33")
    rnd(0, "br0")
    S(f"v_cmp_gt_u32 vcc, {162-128}, v0")
    S(f"s_cmp_eq_u32 s{sNH}, 0")
    S(f"s_cselect_b64 {sp(sP0)}, -1, 0")
    S(f"s_and_b64 exec, vcc, {sp(sP0)}")
    S(f"s_cbranch_execz L_kb")
    S(f"v_add_u32 v56, 2048, v56")
    save = (list(S.lg), S.lg_done)
    S("ds_read_b128 v[40:43], v33 offset:2048")
    S("ds_read_b64 v[44:45], v33 offset:2064")
    S("s_waitcnt lgkmcnt(0)")
    for i in range(4): S(f"v_alignbit_b32 v{48+i}, v{41+i}, v{40+i}, 16")
    for i in range(4): S(f"v_alignbit_b32 v{52+i}, v{42+i}, v{41+i}, 16")
    S(f"ds_write_b128 v33, v[48:51] offset:{2048+KCOPY}")
    S("ds_write2_b32 v56, v41, v42 offset0:0 offset1:1")
    S("ds_write2_b32 v56, v43, v44 offset0:2 offset1:3")
    S(f"ds_write_b128 v33, v[52:55] offset:{2048+3*KCOPY}")
    S("L_kb:")
    S("s_mov_b64 exec, -1")
    S.wait_lg_all()

XN = 192
def xnt_addr(S):
    S(f"""
    v_subrev_u32 v190, 256, v1
    v_lshrrev_b32 v33, 2, v190
    v_lshlrev_b32 v33, 14, v33
    v_and_b32 v34, 3, v190
    v_lshl_add_u32 v191, v34, 4, v33
    s_lshl_b32 s{sA}, s{sD0}, 5
    s_add_u32 s{sXoff}, s{sA}, {WS_XNT}
    """)
def xnt_loads(S, tag=True):
    for k in range(4):
        S(f"s_add_u32 s{sA}, s{sXoff}, {k*64*16384}")
        txt = f"buffer_load_dwordx4 {vr(XN+4*k,4)}, v191, {SWS}, s{sA} offen sc1"
        if tag: S.vmem(txt, "xnt")
        else: S(txt)

def xnt_finish(S):
    S.wait_vm("xnt")
    S(f"s_mov_b32 s{sRetry}, 0")
    S("L_u_chk:")
    for k in range(16):
        S(f"v_xor_b32 v34, s{sTagHi}, v{XN+k}")
        if k == 0: S("v_mov_b32 v35, v34")
        else: S("v_or_b32 v35, v35, v34")
    S(f"""
    v_and_b32 v35, 0xffff0000, v35
    v_cmp_ne_u32 vcc, 0, v35
    s_cbranch_vccz L_u_ok
    s_add_u32 s{sRetry}, s{sRetry}, 1
    s_cmp_ge_u32 s{sRetry}, 4096
    s_cbranch_scc1 L_u_ok
    """)
    xnt_loads(S, tag=False)
    S("s_waitcnt vmcnt(0)")
    S("s_branch L_u_chk")
    S("L_u_ok:")
    S(f"""
    v_lshrrev_b32 v33, 2, v190
    v_lshlrev_b32 v33, 4, v33
    v_and_b32 v34, 1, v190
    v_lshl_add_u32 v33, v34, 3, v33
    v_bfe_u32 v34, v190, 1, 1
    v_mul_u32_u24 v34, {UTSZ}, v34
    v_add3_u32 v33, v33, v34, s{sWoff}
    s_mov_b32 s{sA}, 0x05040100
    """)
    for k in range(4):
        b = XN + 4*k
        S(f"v_perm_b32 v{b}, v{b+1}, v{b}, s{sA}")
        S(f"v_perm_b32 v{b+1}, v{b+3}, v{b+2}, s{sA}")
        S.lds(f"ds_write_b64 v33, {vr(b,2)} offset:{k*1024}", "uw")
    S.wait_lg_all()

def w2_setup(S):
    S(f"""
    v_lshrrev_b32 v33, 3, v0
    v_lshlrev_b32 v33, 10, v33
    v_and_b32 v34, 7, v0
    v_bfe_u32 v35, v0, 4, 1
    v_lshlrev_b32 v35, 2, v35
    v_xor_b32 v34, v34, v35
    v_lshl_add_u32 v189, v34, 4, v33
    s_lshr_b32 s{sA}, s{sHW}, 1
    s_and_b32 s{sB}, s{sHW}, 1
    s_mul_i32 s{sC}, s{sA}, {688*1024}
    s_lshl_b32 s{sD}, s{sB}, 15
    s_add_u32 s{sC}, s{sC}, s{sD}
    s_lshl_b32 s{sD}, s{sC2}, 1
    s_add_u32 s{sH0}, s{sC}, s{sD}
    s_lshl_b32 s{sA}, s{sA}, 13
    s_lshl_b32 s{sB}, s{sB}, 12
    s_add_u32 s{sH1}, s{sA}, s{sB}
    """)
def w2_dma(S, j):
    S(f"s_add_u32 s{sA}, s{sH0}, {j*65536}")
    for q in range(4):
        S(f"s_add_u32 m0, s{sH1}, {slot2(j) + q*1024}")
        S(f"s_add_u32 s{sB}, s{sA}, {q*8192}")
        S.vmem(f"buffer_load_dwordx4 v189, {SW2}, s{sB} offen lds", f"c{j}")

def mid_dma(S, c):
    S(f"s_lshl_b32 s{sF}, s{sHW}, 2")
    for q in range(4): dma_x(S, c, sF, q, f"x{c}")
    dma_w(S, None, c, sHW, f"x{c}")

def dump_lds(S, off, nbytes, wsoff, stride):
    S(f"s_mul_i32 s{sA}, s2, {stride}")
    S(f"s_add_u32 s{sA}, s{sA}, {wsoff}")
    S(f"v_lshlrev_b32 v33, 4, v1")
    for k in range((nbytes + 4095)//4096):
        S(f"v_add_u32 v34, {off + 4096*k}, v33")
        S(f"ds_read_b128 v[36:39], v34")
        S("s_waitcnt lgkmcnt(0)")
        S(f"s_add_u32 s{sB}, s{sA}, {4096*k}")
        S.vmem(f"buffer_store_dwordx4 v[36:39], v33, {SWS}, s{sB} offen", "dump")
        S("s_waitcnt vmcnt(0)")
    S.vm_done = len(S.vm)

def build_C():
    S = Stream("C")
    S("L_roleC:")
    stamp(S, 0)
    first_loads(S)
    h_offsets(S)
    S(f"s_cmp_eq_u32 s{sG1ok}, 1")
    S(f"s_cselect_b32 s{sM}, s{sM}, 1000")
    h_clear(S)
    dma_setup(S)
    stamp(S, 10)
    initial_dma(S, "C")
    stamp(S, 11)
    nonce_setup(S)
    stamp(S, 12)
    p1_part1(S, "clear")
    stamp(S, 14)
    S.barrier("P1")
    stamp(S, 1)
    p1_part2(S)
    stamp(S, 15)
    gemm1(S)
    stamp(S, 3)
    g1_epilogue(S)
    stamp(S, 4)
    S.barrier("CONV")
    stamp(S, 5)
    if OPT.dumpK: dump_lds(S, KC, 2*KCSZ + 0, 0x1000000, 32768); dump_lds(S, UT, 2*UTSZ, 0x1000000 + 21504, 32768)
    conv(S)
    stamp(S, 6)
    gemm2(S)
    stamp(S, 8)
    final_C(S)
    final_all(S)
    stamp(S, 9)
    stamp_flush(S)
    S(f"s_or_b32 s{sA}, s2, s{sWave}")
    S(f"s_cmp_eq_u32 s{sA}, 0")
    S("s_cbranch_scc0 L_end")
    S(f"v_mov_b32 v33, s{sN}")
    S("s_mov_b64 exec, 1")
    S(f"buffer_store_dword v33, off, {SWS}, 0 sc1")
    S("s_branch L_end")
    return S

def build_H():
    S = Stream("H")
    S("L_roleH:")
    stamp(S, 0)
    first_loads(S)
    param_loads(S)
    code_prefetch(S)
    dma_setup(S)
    stamp(S, 10)
    initial_dma(S, "H")
    stamp(S, 11)
    nonce_setup(S)
    stamp(S, 12)
    p1_part1(S, "xrow")
    stamp(S, 14)
    S.barrier("P1")
    stamp(S, 1)
    p1_part2(S)
    kgen_zero(S)
    atoms = kgen_atoms(S)
    done = False
    def run(n):
        nonlocal done
        for _ in range(n):
            if done: return
            r = next(atoms)
            if r == "DX": done = True
    S.wait_vm("x0")
    S.barrier("G0")
    stamp(S, 2)
    plan = {0: 3, 1: 3, 2: 3, 3: 3, 4: 99}
    for c in range(8):
        if 1 <= c <= 4: mid_dma(S, c + 3)
        if c in plan: run(plan[c])
        if c == 4: stamp(S, 3)
        if c == 5:
            kgen_combine(S)
            xnt_addr(S)
            xnt_loads(S)
        if c == 6:
            kgen_build(S)
        if c == 7:
            S(f"s_mov_b32 s{sWoff}, {UT + 272*2}")
            ut_zero(S)
        if c + 1 <= 7:
            S.wait_vm(f"x{c+1}")
            if c + 1 in (1, 3): S.wait_vm(f"w{c+1}")
        S.wait_lg_all()
        stamp(S, 16 + c)
        S.barrier(f"G{c+1}")
    assert done
    stamp(S, 4)
    w2_setup(S)
    xnt_finish(S)
    stamp(S, 5)
    for j in range(3): w2_dma(S, j)
    S.barrier("CONV")
    for j in range(3, 7): w2_dma(S, j)
    xtile_load(S)
    stamp(S, 6)
    S.wait_vm("c0")
    S.barrier("W0")
    stamp(S, 7)
    for j in range(11):
        if j == 0:
            w2_dma(S, 7); w2_dma(S, 8)
        if j == 1: w2_dma(S, 9)
        if j == 2: w2_dma(S, 10)
        if j < 10: S.wait_vm(f"c{j+1}")
        S.barrier(f"W{j+1}")
    S.barrier("FX")
    final_all(S)
    stamp(S, 9)
    stamp_flush(S)
    S("s_branch L_end")
    return S

def generate():
    P = Stream("P")
    prologue(P)
    P(f"s_cmp_ge_u32 s{sWave}, 4")
    P("s_cbranch_scc1 L_roleH")
    C = build_C(); H = build_H()
    assert C.bars == H.bars, (C.bars, H.bars)
    lines = P.L + C.L + H.L + ["L_end:", "    s_endpgm"]
    lines, nn = hazard_pass(lines)
    head = open("cdna_kernels/" + KNAME[:-7] + ".s.ref").read().split("; Override launch")[0]
    txt = head + f"; @launch grid=(256,1,1) block=(512,1,1) lds={LDS_BYTES}\n"
    txt += f""".amdgcn_target "amdgcn-amd-amdhsa--gfx950"
.text
.globl {KNAME}
.p2align 8
.type {KNAME},@function
{KNAME}:
""" + "\n".join(lines) + f"""
.section .rodata,"a"
.p2align 6
.amdhsa_kernel {KNAME}
  .amdhsa_next_free_vgpr 256
  .amdhsa_next_free_sgpr 102
  .amdhsa_accum_offset 256
  .amdhsa_group_segment_fixed_size 0
  .amdhsa_kernarg_size 136
  .amdhsa_user_sgpr_count 2
  .amdhsa_user_sgpr_kernarg_segment_ptr 1
  .amdhsa_system_sgpr_workgroup_id_x 1
.end_amdhsa_kernel
"""
    return txt, nn

if __name__ == "__main__":
    out = sys.argv[1] if len(sys.argv) > 1 else "k.s"
    if "stamps" in sys.argv: OPT.stamps = True
    if "dumpK" in sys.argv: OPT.dumpK = True
    txt, nn = generate()
    open(out, "w").write(txt)
    print("written", out, "lines", txt.count("\n"), "nops inserted", nn)
```

```python
import sys
from gen import *
import gen as g1
from asmlib import Stream, hazard_pass

S1T = MISC + 64
B1T = S1T + 384
sXS, sWS, sXL, sWL = 82, 83, 98, 99
sHa = (85, 86, 95)

sHT, sSgn = 4, 5
def nonce_setup(S, crole=False):
    S.wait_vm("nonce")
    S(f"""
    v_readfirstlane_b32 s{sN}, v3
    s_not_b32 s{sN}, s{sN}
    s_bfe_u32 s{sA}, s{sN}, 0x1000f
    s_and_b32 s{sN}, s{sN}, 0x7fffffff
    s_lshl_b32 s{sA}, s{sA}, 31
    s_or_b32 s{sN}, s{sN}, s{sA}
    s_and_b32 s{sTagLo}, s{sN}, 0xffff
    s_and_b32 s{sTagHi}, s{sN}, 0xffff0000
    """)
    if crole:
        S(f"s_and_b32 s{sHT}, s{sN}, 0x80008000")
        S(f"s_or_b32 s{sSgn}, s{sA}, 0x3f800000")

def weave(S, mains, fills, lead=0, per=None):
    def put(x):
        if callable(x): x()
        else: S(x)
    fills = list(fills)
    for _ in range(min(lead, len(fills))): put(fills.pop(0))
    n = len(mains)
    for i, m in enumerate(mains):
        put(m)
        k = per if per is not None else -(-len(fills) // (n - i))
        if i == n - 1: k = len(fills)
        for _ in range(min(k, len(fills))): put(fills.pop(0))

def dma_setup2(S):
    S(f"""
    v_lshrrev_b32 v33, 3, v0
    v_lshlrev_b32 v33, 10, v33
    v_and_b32 v34, 7, v0
    v_lshrrev_b32 v35, 4, v0
    v_xor_b32 v36, v34, v35
    v_lshl_add_u32 v240, v36, 4, v33
    v_xor_b32 v36, 4, v36
    v_lshl_add_u32 v241, v36, 4, v33
    v_add_u32 v241, {8192-1024}, v241
    v_add_u32 v242, {2*(8192-1024)}, v240
    v_add_u32 v243, {2*(8192-1024)}, v241
    s_mov_b32 s{sA}, 0x15555556
    s_movk_i32 s{sB}, 2752
    """)
    for b in range(3):
        S(f"""
        v_add_u32 v33, {64*b}, v0
        v_mul_hi_u32 v34, v33, s{sA}
        v_mul_u32_u24 v35, 12, v34
        v_sub_u32 v35, v33, v35
        v_lshlrev_b32 v35, 4, v35
        v_mad_u32_u24 v{244+b}, v34, s{sB}, v35
        """)
        if b: S(f"v_subrev_u32 v{244+b}, {1024*b}, v{244+b}")
    S(f"""
    s_lshl_b32 s{sA}, s{sR0}, 10
    s_lshl_b32 s{sB}, s{sF0}, 1
    s_cmp_eq_u32 s{sG1ok}, 1
    s_cselect_b32 s{sA}, s{sA}, {OOB}
    s_cselect_b32 s{sB}, s{sB}, {OOB}
    s_lshl_b32 s{sC}, s{sWave}, 15
    s_add_u32 s{sXS}, s{sA}, s{sC}
    s_mul_i32 s{sC}, s{sWave}, {16*2752}
    s_add_u32 s{sWS}, s{sB}, s{sC}
    s_lshl_b32 s{sXL}, s{sWave}, 12
    s_mul_i32 s{sWL}, s{sWave}, 3072
    s_add_u32 s{sWL}, s{sWL}, 16384
    """)

sRot1, sRot2, sKc = 100, 101, 84
def rot_setup(S):
    S(f"""
    s_lshr_b32 s{sA}, s{sI}, 2
    s_and_b32 s{sB}, s{sI}, 3
    s_lshl_b32 s{sB}, s{sB}, 1
    s_add_u32 s{sA}, s{sA}, s{sB}
    s_and_b32 s{sRot1}, s{sA}, 7
    s_cmp_ge_u32 s{sA}, 10
    s_cselect_b32 s{sB}, 10, 0
    s_sub_u32 s{sRot2}, s{sA}, s{sB}
    """)
    if OPT.norot or OPT.norot1: S(f"s_mov_b32 s{sRot1}, 0")
    if OPT.norot: S(f"s_mov_b32 s{sRot2}, 0")

def kc2_ops(j, dst):
    if j == 10: return [f"s_mov_b32 s{dst}, 10"]
    return [f"s_add_u32 s{dst}, s{sRot2}, {j}", f"s_cmp_ge_u32 s{dst}, 10", f"s_cselect_b32 s{sP1+1}, 10, 0",
            f"s_sub_u32 s{dst}, s{dst}, s{sP1+1}"]

def dma_chunk_ops(S, c):
    slot = (c % 4)*SLOT1; tag = f"d{c}"
    ops = [f"s_add_u32 s{sKc}, s{sRot1}, {c}", f"s_and_b32 s{sKc}, s{sKc}, 7", f"s_lshl_b32 s{sA}, s{sKc}, 7",
           f"s_add_u32 m0, s{sXL}, {slot}", f"s_add_u32 s{sA}, s{sA}, s{sXS}"]
    for q in range(4):
        ops.append(lambda q=q: S.vmem(f"buffer_load_dwordx4 v{240+q}, {SU}, s{sA} offen offset:{1024*q} lds", tag))
    ops += [f"s_mul_i32 s{sB}, s{sKc}, {64*2752}", f"s_add_u32 m0, s{sWL}, {slot}", f"s_add_u32 s{sB}, s{sB}, s{sWS}"]
    for b in range(3):
        ops.append(lambda b=b: S.vmem(f"buffer_load_dwordx4 v{244+b}, {SW1}, s{sB} offen offset:{1024*b} lds", tag))
    return ops

def emit(S, ops):
    for x in ops:
        if callable(x): x()
        else: S(x)

ACC = 64; S1R = 112; SEL = 116
FS = (120, 136, 152)
WLO, XLO, WHI, XHI = 24, 27, 31, 34

def g1_addr2(S):
    S(f"""
    v_and_b32 v40, 31, v0
    v_lshrrev_b32 v41, 5, v0
    v_bfe_u32 v42, v0, 1, 3
    v_xor_b32 v42, v42, v41
    v_lshlrev_b32 v42, 4, v42
    v_lshl_add_u32 v42, v40, 7, v42
    s_lshl_b32 s{sA}, s{sWave}, 12
    v_add_u32 v{XLO}, s{sA}, v42
    """)
    for s in range(1, 4): S(f"v_xor_b32 v{XLO+s}, {32*s}, v{XLO}")
    S(f"""
    v_bfe_u32 v42, v0, 2, 2
    v_lshl_add_u32 v42, v41, 3, v42
    v_mul_u32_u24 v42, 192, v42
    v_bfe_u32 v43, v0, 4, 1
    v_lshl_add_u32 v42, v43, 5, v42
    v_bfe_u32 v43, v0, 1, 1
    v_lshl_add_u32 v42, v43, 4, v42
    v_and_b32 v43, 1, v0
    v_lshl_add_u32 v42, v43, 3, v42
    v_add_u32 v42, 16384, v42
    """)
    for a in range(3):
        S(f"s_add_u32 s{sA}, s{sWave}, {a}")
        S(f"s_cmp_ge_u32 s{sA}, 3")
        S(f"s_cselect_b32 s{sB}, 3, 0")
        S(f"s_sub_u32 s{sA}, s{sA}, s{sB}")
        S(f"s_cmp_ge_u32 s{sA}, 3")
        S(f"s_cselect_b32 s{sB}, 3, 0")
        S(f"s_sub_u32 s{sA}, s{sA}, s{sB}")
        S(f"s_lshl_b32 s{sB}, s{sA}, 6")
        S(f"v_add_u32 v{WLO+a}, s{sB}, v42")
        S(f"s_lshr_b32 s{sC}, s{sR0}, 5")
        S(f"s_add_u32 s{sC}, s{sC}, s{sWave}")
        S(f"s_mul_i32 s{sC}, s{sC}, 86")
        S(f"s_lshr_b32 s{sD}, s{sF0}, 4")
        S(f"s_lshl_b32 s{sE}, s{sA}, 1")
        S(f"s_add_u32 s{sD}, s{sD}, s{sE}")
        S(f"s_add_u32 s{sC}, s{sC}, s{sD}")
        S(f"s_lshl_b32 s{sC}, s{sC}, 10")
        S(f"s_add_u32 s{sC}, s{sC}, {WS_H}")
        S(f"s_cmp_lt_u32 s{sD}, 86")
        S(f"s_cselect_b32 s{sHa[a]}, s{sC}, {OOB}")
        S(f"s_lshl_b32 s{sB}, s{sA}, 7")
        S(f"s_add_u32 s{sB}, s{sB}, {S1T}")
        S(f"v_lshl_add_u32 v{44+a}, v41, 4, s{sB}")
    for k in range(3): S(f"v_add_u32 v{WHI+k}, {2*SLOT1}, v{WLO+k}")
    for k in range(4): S(f"v_add_u32 v{XHI+k}, {2*SLOT1}, v{XLO+k}")
    S(f"""
    v_and_b32 v40, 15, v0
    v_bfe_u32 v41, v0, 4, 1
    v_cmp_eq_u32 vcc, v40, v41
    v_mov_b32 v42, 0x3f803f80
    v_cndmask_b32 v{SEL}, 0, v42, vcc
    v_mov_b32 v{SEL+1}, v{SEL}
    v_mov_b32 v{SEL+2}, v{SEL}
    v_mov_b32 v{SEL+3}, v{SEL}
    """)

def g1_read_ops(S, sg):
    c, s = divmod(sg, 4); st = FS[sg % 3]
    slot = c % 4; hi = slot >= 2; base = (slot & 1)*SLOT1
    W = WHI if hi else WLO; X = XHI if hi else XLO
    tag = f"g{sg}"; ops = []
    ops.append(lambda: S.lds(f"ds_read_b128 {vr(st+12,4)}, v{X+s} offset:{base}", tag))
    for a in range(3):
        for h in range(2):
            off = base + (16*s + 4*h)*192
            ops.append(lambda a=a, h=h, off=off: S.lds(f"ds_read_b64_tr_b16 {vr(st+4*a+2*h,2)}, v{W+a} offset:{off}", tag))
    return ops

STATR = 216
def stat_load(S, tag=True):
    txt = f"buffer_load_dwordx4 {vr(STATR,4)}, v47, {SWS}, s{sE} offen sc1"
    if tag: S.vmem(txt, "stat")
    else: S(txt)

def gemm1_v2(S):
    g1_addr2(S)
    S.wait_vm("d0")
    S.barrier("G0"); stamp(S, 2)
    emit(S, g1_read_ops(S, 0)); emit(S, g1_read_ops(S, 1))
    pend = []
    for c in range(OPT.pre, 4): pend += dma_chunk_ops(S, c)
    for sg in range(32):
        c, s = divmod(sg, 4); st = FS[sg % 3]
        if s == 2 and c < 7:
            S.wait_vm(f"d{c+1}")
            S.barrier(f"G{c+1}"); stamp(S, 16 + c)
            if 4 <= c + 3 <= 7 and c >= 1: pend = pend + dma_chunk_ops(S, c + 3)
        S.wait_lg(f"g{sg}")
        if sg == 31:
            S.barrier("G8")
        fills = []
        if sg + 2 < 32: fills += g1_read_ops(S, sg + 2)
        take = pend[:9]; pend = pend[9:]
        fills2 = list(take)
        if sg == 20:
            def ep():
                S(f"s_lshl_b32 s{sE}, s{sWave}, 5")
                S(f"s_add_u32 s{sE}, s{sE}, s{sR0}")
                S(f"s_lshl_b32 s{sE}, s{sE}, 4")
                S(f"s_add_u32 s{sE}, s{sE}, {WS_STATS}")
                S(f"v_and_b32 v47, 31, v0")
                S(f"v_lshlrev_b32 v47, 4, v47")
                stat_load(S)
            fills2.append(ep)
        mains = []
        for a in range(3):
            acc = ACC + 16*a
            cc = "0" if sg == 0 else vr(acc, 16)
            mains.append(f"v_mfma_f32_32x32x16_bf16 {vr(acc,16)}, {vr(st+4*a,4)}, {vr(st+12,4)}, {cc}")
        mains.insert(1, f"v_mfma_f32_16x16x32_bf16 {vr(S1R,4)}, {vr(st,4)}, {vr(SEL,4)}, {'0' if sg == 0 else vr(S1R,4)}")
        allf = fills + fills2
        weave(S, mains, allf)
    S(f"""
    v_lshrrev_b32 v42, 5, v0
    v_lshlrev_b32 v42, 4, v42
    v_sub_u32 v42, v44, v42
    v_and_b32 v41, 15, v0
    v_lshl_add_u32 v42, v41, 6, v42
    v_lshrrev_b32 v40, 4, v0
    v_lshl_add_u32 v42, v40, 4, v42
    v_cmp_gt_u32 vcc, 2, v41
    s_mov_b64 exec, vcc
    """)
    S.lds(f"ds_write_b128 v42, {vr(S1R,4)}", "s1w")
    S("s_mov_b64 exec, -1")
    S.wait_lg_all()
    S.barrier("G9")

def g1_epilogue2(S):
    SQ, BQ = 120, 168
    for a in range(3):
        for j in range(4):
            S.lds(f"ds_read_b128 {vr(SQ+16*a+4*j,4)}, v{44+a} offset:{32*j}", f"t{a}")
            S.lds(f"ds_read_b128 {vr(BQ+16*a+4*j,4)}, v{44+a} offset:{384+32*j}", f"t{a}")
    S.wait_vm("stat")
    S(f"s_mov_b32 s{sRetry}, 0")
    S("L_st_chk:")
    S(f"""
    v_xor_b32 v40, s{sN}, v{STATR+1}
    v_xor_b32 v41, s{sN}, v{STATR+3}
    v_or_b32 v40, v40, v41
    v_cmp_ne_u32 vcc, 0, v40
    s_cbranch_vccz L_st_ok
    s_add_u32 s{sRetry}, s{sRetry}, 1
    s_cmp_ge_u32 s{sRetry}, 4096
    s_cbranch_scc1 L_st_ok
    """)
    stat_load(S, tag=False)
    S("s_waitcnt vmcnt(0)")
    S("s_branch L_st_chk")
    S("L_st_ok:")
    m, r = STATR, STATR + 2
    n = 0
    for a in range(3):
        S.wait_lg(f"t{a}")
        for mm in range(2):
            base = 48 + 4*(n & 1); n += 1
            for q in range(2):
                j = 2*mm + q
                acc = ACC + 16*a + 4*j
                for h in range(2):
                    A = vr(acc+2*h, 2)
                    S(f"v_pk_fma_f32 {A}, {vr(SQ+16*a+4*j+2*h,2)}, {vr(m,2)}, {A} op_sel_hi:[1,0,1] neg_lo:[0,1,0] neg_hi:[0,1,0]")
                for h in range(2):
                    A = vr(acc+2*h, 2)
                    S(f"v_pk_fma_f32 {A}, {A}, {vr(r,2)}, {vr(BQ+16*a+4*j+2*h,2)} op_sel_hi:[1,0,1]")
                for e in range(4): S(f"v_max_f32 v{acc+e}, 0, v{acc+e}")
                for h in range(2):
                    A = vr(acc+2*h, 2)
                    S(f"v_pk_mul_f32 {A}, {A}, {A}")
                S(f"v_cvt_pk_bf16_f32 v{base+2*q}, v{acc}, v{acc+1}")
                S(f"v_cvt_pk_bf16_f32 v{base+2*q+1}, v{acc+2}, v{acc+3}")
            for e in range(4): S(f"v_or_b32 v{base+e}, s{sHT}, v{base+e}")
            S(f"v_permlane32_swap_b32 v{base}, v{base+2}")
            S(f"v_permlane32_swap_b32 v{base+1}, v{base+3}")
            off = f" offset:1024" if mm else ""
            S.vmem(f"buffer_store_dwordx4 {vr(base,4)}, v2, {SWS}, s{sHa[a]} offen{off} sc1", "hst")

def h_first_loads(S):
    S(f"s_sub_u32 s{sHW}, s{sWave}, 4")
    S(f"s_lshl_b32 s{sA}, s{sHW}, 1")
    S(f"s_add_u32 s{sA}, s{sA}, s{sT0}")
    S(f"s_lshl_b32 s{sA}, s{sA}, 10")
    S.vmem(f"buffer_load_dwordx4 v[4:7], v2, {SU}, s{sA} offen", "xrow")
    S.vmem(f"buffer_load_dwordx4 v[8:11], v2, {SU}, s{sA} offen offset:1024", "xrow")
    S.vmem(f"buffer_load_dword v3, off, {SWS}, 0 sc1", "nonce")

def h_clear2(S):
    S(f"""
    s_lshr_b32 s{sC}, s{sR0}, 5
    s_add_u32 s{sC}, s{sC}, s{sHW}
    s_mul_i32 s{sC}, s{sC}, 86
    s_lshr_b32 s{sD}, s{sF0}, 4
    s_add_u32 s{sC}, s{sC}, s{sD}
    s_lshl_b32 s{sC}, s{sC}, 10
    s_add_u32 s{sC}, s{sC}, {WS_H}
    s_cmp_eq_u32 s{sG1ok}, 1
    s_cselect_b32 s{sD}, s{sD}, 1000
    """)
    for j in range(4): S(f"v_mov_b32 v{12+j}, 0x80008000")
    for k in range(6):
        S(f"s_add_u32 s{sA}, s{sD}, {k}")
        S(f"s_cmp_lt_u32 s{sA}, 86")
        S(f"s_cselect_b32 s{sA}, s{sC}, {OOB}")
        if k >= 4:
            S(f"s_add_u32 s{sA}, s{sA}, 4096")
        S.vmem(f"buffer_store_dwordx4 v[12:15], v2, {SWS}, s{sA} offen offset:{(k % 4)*1024} sc1", "clear")

def p1_row(raw, x, t, sreg):
    L = []
    for j in range(4):
        L.append(f"v_lshlrev_b32 v{x+2*j}, 16, v{raw+j}")
        L.append(f"v_and_b32 v{x+2*j+1}, 0xffff0000, v{raw+j}")
    L += [f"v_add_f32 v{t}, v{x}, v{x+1}", f"v_add_f32 v{t+1}, v{x+2}, v{x+3}", f"v_add_f32 v{t+2}, v{x+4}, v{x+5}",
          f"v_add_f32 v{t+3}, v{x+6}, v{x+7}", f"v_add_f32 v{t}, v{t}, v{t+1}", f"v_add_f32 v{t+2}, v{t+2}, v{t+3}",
          f"v_add_f32 v{t}, v{t}, v{t+2}"]
    def red():
        o = [f"v_add_f32_dpp v{t}, v{t}, v{t} {m} row_mask:0xf bank_mask:0xf" for m in ("row_shr:1", "row_shr:2", "row_shr:4", "row_shr:8")]
        o.append(f"v_add_f32_dpp v{t}, v{t}, v{t} row_bcast:15 row_mask:0xa bank_mask:0xf")
        o.append(f"v_add_f32_dpp v{t}, v{t}, v{t} row_bcast:31 row_mask:0xc bank_mask:0xf")
        o.append(f"v_readlane_b32 s{sreg}, v{t}, 63")
        return o
    L += red()
    L.append(f"v_mov_b32 v{t+1}, {f32(1/512)}")
    L.append(f"v_mul_f32 v{t+1}, s{sreg}, v{t+1}")
    L.append(f"v_sub_f32 v{t+2}, v{x}, v{t+1}")
    L.append(f"v_mul_f32 v{t}, v{t+2}, v{t+2}")
    for j in range(1, 8):
        L.append(f"v_sub_f32 v{t+2+(j & 1)}, v{x+j}, v{t+1}")
        L.append(f"v_fmac_f32 v{t}, v{t+2+(j & 1)}, v{t+2+(j & 1)}")
    L += red()
    L += [f"v_cvt_pk_bf16_f32 v{t+4}, v{t+1}, v{t+1}", f"v_and_b32 v{t+4}, 0xffff0000, v{t+4}",
          f"v_mov_b32 v{t+2}, {f32(1/512)}", f"v_mul_f32 v{t+2}, s{sreg}, v{t+2}",
          f"v_cvt_pk_bf16_f32 v{t+2}, v{t+2}, v{t+2}", f"v_and_b32 v{t+2}, 0xffff0000, v{t+2}",
          f"v_add_f32 v{t+2}, {f32(1e-5)}, v{t+2}",
          f"v_cvt_pk_bf16_f32 v{t+2}, v{t+2}, v{t+2}", f"v_and_b32 v{t+2}, 0xffff0000, v{t+2}",
          f"v_sqrt_f32 v{t+3}, v{t+2}", f"v_rcp_f32 v{t+5}, v{t+3}",
          f"v_fma_f32 v{t+7}, -v{t+3}, v{t+3}, v{t+2}", f"v_mul_f32 v{t+5}, 0.5, v{t+5}", f"v_fmac_f32 v{t+3}, v{t+7}, v{t+5}",
          f"v_cvt_pk_bf16_f32 v{t+3}, v{t+3}, v{t+3}", f"v_and_b32 v{t+3}, 0xffff0000, v{t+3}",
          f"v_rcp_f32 v{t+6}, v{t+3}", f"v_fma_f32 v{t+7}, -v{t+3}, v{t+6}, 1.0", f"v_fmac_f32 v{t+6}, v{t+7}, v{t+6}",
          f"v_mul_f32 v{t+7}, v{t+4}, v{t+6}"]
    for j in range(8): L.append(f"v_fma_f32 v{x+j}, v{x+j}, v{t+6}, -v{t+7}")
    for j in range(4): L.append(f"v_cvt_pk_f16_f32 v{raw+j}, v{x+2*j}, v{x+2*j+1}")
    return L

TA, TB_ = 56, 64
def p1a(S):
    S.wait_vm("xrow")
    stamp(S, 13)
    A = p1_row(4, 40, TA, sA); B = p1_row(8, 48, TB_, sB)
    n = len(A)
    for i, (a, b) in enumerate(zip(A, B)):
        S(a); S(b)
        if i in (n//4, n//2, 3*n//4): yield
    S(f"s_mul_i32 s{sA}, s{sHW}, {2*P1ROW}")
    S(f"s_add_u32 s{sA}, s{sA}, {P1BUF}")
    S(f"v_add_u32 v16, s{sA}, v2")
    S.lds("ds_write_b128 v16, v[4:7]", "p1w")
    S.lds(f"ds_write_b128 v16, v[8:11] offset:{P1ROW}", "p1w")
    S(f"v_mov_b32 v230, v{TA+4}")
    S(f"v_mov_b32 v231, v{TA+6}")
    S(f"v_mov_b32 v232, v{TB_+4}")
    S(f"v_mov_b32 v233, v{TB_+6}")
    yield

def p1b(S):
    S(f"""
    v_cmp_eq_u32 vcc, 0, v0
    v_mov_b32 v225, s{sN}
    v_mov_b32 v227, s{sN}
    v_cndmask_b32 v224, v232, v230, vcc
    v_cndmask_b32 v226, v233, v231, vcc
    s_lshl_b32 s{sA}, s{sHW}, 1
    s_add_u32 s{sA}, s{sA}, s{sT0}
    s_lshl_b32 s{sA}, s{sA}, 4
    s_add_u32 s{sA}, s{sA}, {WS_STATS}
    s_mov_b64 exec, 3
    """)
    S.vmem(f"buffer_store_dwordx4 v[224:227], v2, {SWS}, s{sA} offen sc1", "statst")
    S("s_mov_b64 exec, -1")
    S(f"""
    v_subrev_u32 v190, 256, v1
    v_and_b32 v228, 1, v190
    v_mul_u32_u24 v228, {4*P1ROW}, v228
    v_and_b32 v229, 0xfe, v190
    v_add3_u32 v228, v228, v229, s{sP1}
    """)
    for k in range(4):
        for j in range(4):
            S.lds(f"ds_read_u16 v{208+4*k+j}, v228 offset:{j*P1ROW + 256*k}", f"p1r{k}")
    S(f"v_lshlrev_b32 v229, 4, v190")
    S(f"s_lshl_b32 s{sA}, s{sTB}, 14")
    S(f"s_add_u32 s{sA}, s{sA}, {WS_XNT}")
    for k in range(4):
        S.wait_lg(f"p1r{k}")
        for j in range(4):
            S(f"v_or_b32 v{208+4*k+j}, s{sTagHi}, v{208+4*k+j}")
        S(f"s_add_u32 s{sB}, s{sA}, {4096*k}")
        S.vmem(f"buffer_store_dwordx4 v[{208+4*k}:{211+4*k}], v229, {SWS}, s{sB} offen sc1", "xntst")

def b1_table(S):
    S(f"""
    v_lshlrev_b32 v33, 1, v0
    v_add_u32 v33, s{sF0}, v33
    v_min_u32 v33, 1374, v33
    v_lshlrev_b32 v33, 1, v33
    """)
    S.vmem(f"global_load_dword v188, v33, {sp(sB1)}", "b1")
def b1_table_write(S):
    S.wait_vm("b1")
    S(f"""
    v_lshlrev_b32 v34, 16, v188
    v_and_b32 v35, 0xffff0000, v188
    v_lshlrev_b32 v33, 3, v0
    v_add_u32 v33, {B1T}, v33
    v_cmp_gt_u32 vcc, 48, v0
    s_mov_b64 exec, vcc
    """)
    S.lds("ds_write_b64 v33, v[34:35]", "b1w")
    S("s_mov_b64 exec, -1")

def conv_wave(S, tiles, svals, pairs):
    UF = 64; DWF = 96; GFR = 128
    S.lds(f"ds_read_b32 v28, v27", "sig")
    wins = []
    for s in svals:
        for (name, Z, band, vf) in (("E", 24, BANDE, VF + 4*s), ("O", 16, BANDO, VF + 8 + 4*s)):
            for q in range(2): wins.append((name, Z, band, vf, s, q))
    for n, (name, Z, band, vf, s, q) in enumerate(wins):
        S.lds(f"ds_read_b128 {vr(UF+4*n,4)}, v24 offset:{528 + 512*(2*s+q) - 2*Z}", f"U{n}")
    gl = []
    for (cl, s, delta) in pairs:
        for (name, vf, sec) in (("E", VF + 4*s, SEC_E), ("O", VF + 8 + 4*s, SEC_O)):
            gl.append((cl, vf, sec + 32*(7 - delta)))
    gops = []
    for n, (cl, vf, off) in enumerate(gl):
        gops.append(lambda n=n, off=off: S.lds(f"ds_read_b64 {vr(GFR+4*n,2)}, v26 offset:{off}", f"G{n}"))
        gops.append(lambda n=n, off=off: S.lds(f"ds_read_b64 {vr(GFR+4*n+2,2)}, v26 offset:{off+32}", f"G{n}"))
    mains = []
    for n, (name, Z, band, vf, s, q) in enumerate(wins):
        def m(n=n, band=band):
            S.wait_lg(f"U{n}")
            S(f"v_mfma_f32_16x16x32_f16 {vr(DWF+4*n,4)}, {vr(UF+4*n,4)}, {vr(band,4)}, 0")
        mains.append(m)
    weave(S, mains, gops)
    kmax = lambda c: min(32, 8*c + 8)
    xi_hi = 8*tiles[-1]; xi_lo = min(8*c - kmax(c) for c in tiles)
    steps = list(range(xi_hi, xi_lo - 1, -1))
    D = 3
    def bops(i):
        xi = steps[i]
        return [lambda: S.lds(f"ds_read_b128 {vr(BRING+4*(i % 4),4)}, v24 offset:{64*(xi+8)}", f"s{i}")]
    def fops(kn, tag):
        return [lambda: S.lds(f"ds_read_b64 {vr(FK+4*kn,2)}, v25 offset:{64*(32-kn)}", tag),
                lambda: S.lds(f"ds_read_b64 {vr(FK+4*kn+2,2)}, v25 offset:{64*(32-kn)+8}", tag)]
    for n, (name, Z, band, vf, s, q) in enumerate(wins):
        S(f"v_cvt_pk_f16_f32 v{vf+2*q}, v{DWF+4*n}, v{DWF+4*n+1}")
        S(f"v_cvt_pk_f16_f32 v{vf+2*q+1}, v{DWF+4*n+2}, v{DWF+4*n+3}")
    first = set(); mains = []
    for n, (cl, vf, off) in enumerate(gl):
        def m(n=n, cl=cl, vf=vf, c=(cl in first)):
            S.wait_lg(f"G{n}")
            acc = CACC + 4*cl
            S(f"v_mfma_f32_16x16x32_f16 {vr(acc,4)}, {vr(vf,4)}, {vr(GFR+4*n,4)}, {vr(acc,4) if c else '0'}")
        first.add(cl); mains.append(m)
    pre = []
    for i in range(D): pre += fops(i, f"s{i}") + bops(i)
    weave(S, mains, pre)
    for i, xi in enumerate(steps):
        fills = []
        if i + D < len(steps):
            kn = i + D
            if kn <= 32: fills += fops(kn, f"s{i+D}")
            fills += bops(i + D)
        S.wait_lg(f"s{i}")
        mains = []
        for cl, c in enumerate(tiles):
            k = 8*c - xi
            if 0 <= k <= kmax(c):
                acc = CACC + 4*cl
                cc = vr(acc, 4) if cl in first else "0"
                first.add(cl)
                mains.append(f"v_mfma_f32_16x16x32_f16 {vr(acc,4)}, {vr(FK+4*k,4)}, {vr(BRING+4*(i % 4),4)}, {cc}")
        weave(S, mains, fills)

def conv2(S):
    conv_setup(S)
    S(f"s_bitcmp1_b32 s{sWave}, 0")
    S(f"s_cbranch_scc1 L_convB")
    save_lg = (list(S.lg), S.lg_done); save_vm = (list(S.vm), S.vm_done)
    conv_wave(S, [0, 1, 2, 3, 4], [0], [(4, 0, 4)])
    conv_store(S, [0, 1, 2, 3, 4])
    S.wait_lg_all()
    S("s_branch L_convE")
    S("L_convB:")
    vmA = list(S.vm)
    S.lg, S.lg_done = save_lg; S.vm, S.vm_done = save_vm
    conv_wave(S, [5, 6, 7], [0, 1], [(0, 0, 5), (1, 0, 6), (1, 1, 4), (2, 0, 7), (2, 1, 5)])
    conv_store(S, [5, 6, 7])
    S(f"s_mov_b32 s{sB}, {OOB}")
    for _ in range(2):
        S.vmem(f"buffer_store_dwordx4 {vr(CACC,4)}, v33, {SWS}, s{sB} offen sc1", "yst")
    S.wait_lg_all()
    assert len(S.vm) == len(vmA)
    S("L_convE:")

BS = (160, 168, 176)
g1.XT = 184; g1.B2R = 188; g1.YR = 192; g1.PR = 208
XT, B2R, YR, PR = 184, 188, 192, 208

def h_load2(S, f):
    r = HR + 4*(f % RD)
    if f % 4 == 0:
        emit(S, kc2_ops(f // 4, sE))
        S(f"s_lshl_b32 s{sE}, s{sE}, 12")
        S(f"s_add_u32 s{sE}, s{sE}, s{sH0}")
    S.vmem(f"buffer_load_dwordx4 {vr(r,4)}, v2, {SWS}, s{sE} offen offset:{(f % 4)*1024} sc1", f"h{f}")

def w2_dma2(S, j):
    emit(S, kc2_ops(j, sA))
    S(f"s_lshl_b32 s{sA}, s{sA}, 16")
    S(f"s_add_u32 s{sA}, s{sA}, s{sH0}")
    for q in range(4):
        S(f"s_add_u32 m0, s{sH1}, {slot2(j) + q*1024}")
        S(f"s_add_u32 s{sB}, s{sA}, {q*8192}")
        S.vmem(f"buffer_load_dwordx4 v189, {SW2}, s{sB} offen lds", f"c{j}")

def g2_read_ops(S, f):
    j, s = divmod(f, 4); st = BS[f % 3]; tag = f"b{f}"; ops = []
    if s == 0:
        ops.append(f"v_add_u32 v26, {slot2(j)}, v24")
        ops.append(f"v_add_u32 v27, {slot2(j)}, v25")
    for lc in range(2):
        for h in range(2):
            ops.append(lambda lc=lc, h=h: S.lds(f"ds_read_b64_tr_b16 {vr(st+4*lc+2*h,2)}, v{26+lc} offset:{(16*s+4*h)*128}", tag))
    return ops

def h_check_ops(S, j, out_of_line):
    f0 = 4*j; ns = 4 if j < 10 else 3
    regs = [HR + 4*((f0+k) % RD) + e for k in range(ns) for e in range(4)]
    def body(T):
        o = []
        for k in range(0, len(regs), 4):
            o.append(f"v_bitop3_b32 v34, s{sHT}, v{regs[k]}, v{regs[k+1]} bitop3:0x7e")
            o.append(f"v_bitop3_b32 v35, s{sHT}, v{regs[k+2]}, v{regs[k+3]} bitop3:0x7e")
            o.append("v_or_b32 v33, v34, v35" if k == 0 else "v_or3_b32 v33, v33, v34, v35")
        o += ["v_and_b32 v33, 0x80008000, v33", "v_cmp_ne_u32 vcc, 0, v33"]
        return o
    ops = [lambda: S.wait_vm(f"h{f0+ns-1}")] + body(S)
    ops.append(f"s_cbranch_vccnz L_hr{j}")
    ops.append(f"L_hb{j}:")
    R = out_of_line
    R.append(f"L_hr{j}:")
    R.append(f"    s_mov_b32 s{sRetry}, 0")
    R.append(f"L_hr{j}_again:")
    R += ["    " + x for x in kc2_ops(j, sF)]
    R.append(f"    s_lshl_b32 s{sF}, s{sF}, 12")
    R.append(f"    s_add_u32 s{sF}, s{sF}, s{sH0}")
    for k in range(ns):
        R.append(f"    buffer_load_dwordx4 {vr(HR+4*((f0+k) % RD),4)}, v2, {SWS}, s{sF} offen offset:{k*1024} sc1")
    R.append("    s_waitcnt vmcnt(0)")
    R += ["    " + x for x in body(None)]
    R.append(f"    s_cbranch_vccz L_hb{j}")
    R.append(f"    s_add_u32 s{sRetry}, s{sRetry}, 1")
    R.append(f"    s_cmp_lt_u32 s{sRetry}, 4096")
    R.append(f"    s_cbranch_scc1 L_hr{j}_again")
    R.append(f"    s_branch L_hb{j}")
    return ops

def gemm2_v2(S, ool):
    gemm2_setup(S)
    g1.xtile_load(S)
    S(f"""
    s_lshr_b32 s{sA}, s{sWave}, 1
    s_lshl_b32 s{sA}, s{sA}, 5
    s_add_u32 s{sA}, s{sA}, s{sC2}
    v_and_b32 v28, 31, v0
    v_add_u32 v28, s{sA}, v28
    v_lshlrev_b32 v29, 1, v28
    """)
    S.vmem(f"global_load_ushort v{B2R}, v29, {sp(sB2)}", "b2")
    S(f"""
    v_lshlrev_b32 v28, 13, v28
    v_lshrrev_b32 v29, 5, v0
    v_lshl_add_u32 v28, v29, 4, v28
    s_and_b32 s{sB}, s{sWave}, 1
    s_lshl_b32 s{sB}, s{sB}, 5
    s_add_u32 s{sB}, s{sB}, s{sR2}
    s_lshl_b32 s{sB}, s{sB}, 2
    s_add_u32 s{sG}, s{sB}, {WS_Y}
    """)
    for f in range(RD): h_load2(S, f)
    S.barrier("W0"); stamp(S, 7)
    emit(S, g2_read_ops(S, 0)); emit(S, g2_read_ops(S, 1))
    emit(S, h_check_ops(S, 0, ool))
    for f in range(43):
        j, s = divmod(f, 4); st = BS[f % 3]
        if s == 2 and j < 10:
            S.barrier(f"W{j+1}")
        S.wait_lg(f"b{f}")
        fills = []
        if f + 2 < 43: fills += g2_read_ops(S, f + 2)
        after = []
        if f + RD < 43: after.append(lambda f=f: h_load2(S, f + RD))
        if f + RD == 43: after.append(lambda: g1.y_loads(S))
        mains = []
        for lc in range(2):
            acc = ACC2 + 16*lc
            c = "0" if f == 0 else vr(acc, 16)
            mains.append(f"v_mfma_f32_32x32x16_bf16 {vr(acc,16)}, {vr(HR+4*(f % RD),4)}, {vr(st+4*lc,4)}, {c}")
        weave(S, mains, fills)
        emit(S, after)
        if s == 3 and j < 10:
            emit(S, h_check_ops(S, j + 1, ool))

def build_C2(ool):
    S = Stream("C")
    S("L_roleC:")
    stamp(S, 0)
    if OPT.ckgen and not OPT.dmafirst: param_loads(S, 0)
    stamp(S, 24)
    rot_setup(S)
    dma_setup2(S)
    stamp(S, 10)
    if OPT.ckgen:
        emit(S, dma_chunk_ops(S, 0))
        if OPT.dmafirst: param_loads(S, 0)
        S.vmem(f"buffer_load_dword v3, off, {SWS}, 0 sc1", "nonce")
        stamp(S, 25)
        nxt = 1
        for n, r in enumerate(kgen_atoms(S)):
            if n == 0: stamp(S, 1)
            while nxt < OPT.pre and n == OPT.dpos[nxt-1]:
                emit(S, dma_chunk_ops(S, nxt)); nxt += 1
        assert nxt == OPT.pre
        S.wait_lg_all()
    else:
        for c in range(OPT.pre): emit(S, dma_chunk_ops(S, c))
        S.vmem(f"buffer_load_dword v3, off, {SWS}, 0 sc1", "nonce")
    stamp(S, 11)
    gemm1_v2_pre = None
    if OPT.skipC:
        for c in range(10): S.barrier(f"G{c}"); stamp(S, {0: 2}.get(c, 15 + c))
    else:
        gemm1_v2(S)
    stamp(S, 3)
    if OPT.stop == "G9":
        stamp_flush(S); S("s_branch L_end"); return S
    nonce_setup(S, True)
    g1_epilogue2(S)
    stamp(S, 4)
    S.barrier("CONV")
    stamp(S, 5)
    if OPT.dumpK: dump_lds(S, KC, 2*KCSZ + 0, 0x1000000, 32768); dump_lds(S, UT, 2*UTSZ, 0x1000000 + 21504, 32768)
    conv2(S)
    stamp(S, 6)
    gemm2_v2(S, ool)
    stamp(S, 8)
    final_C(S)
    final_all(S)
    stamp(S, 9)
    stamp_flush(S)
    S(f"s_or_b32 s{sA}, s2, s{sWave}")
    S(f"s_cmp_eq_u32 s{sA}, 0")
    S("s_cbranch_scc0 L_end")
    S(f"v_mov_b32 v33, s{sN}")
    S("s_mov_b64 exec, 1")
    S(f"buffer_store_dword v33, off, {SWS}, 0 sc1")
    S("s_branch L_end")
    return S

def count_since(S, n0): return len(S.L) - n0

def h_first(S):
    h_first_loads(S)
    stamp(S, 24)
    if not OPT.ckgen:
        param_loads(S)
        code_prefetch(S)
        b1_table(S)
        return
    S(f"""
    s_lshr_b32 s{sCH}, s{sHW}, 1
    s_and_b32 s{sNH}, s{sHW}, 1
    s_add_u32 s{sA}, s{sD0}, s{sCH}
    s_lshl_b32 s{sA}, s{sA}, 1
    v_mov_b32 v34, s{sA}
    """)
    code_prefetch(S)
    stamp(S, 25)
    S.vmem(f"global_load_ushort v167, v34, {sp(sDsk)}", "dsk")
    b1_table(S)

def build_H2(S):
    S("L_roleH:")
    stamp(S, 1)
    if OPT.skipH:
        for c in range(10): S.barrier(f"G{c}"); stamp(S, {0: 2}.get(c, 15 + c))
        stamp(S, 4); stamp_flush(S); S("s_branch L_end"); return S
    rot_setup(S)
    S(f"s_mov_b32 s{sP1}, {P1BUF}")
    kgen_zero(S)
    for _ in p1a(S): pass
    S.wait_lg_all()
    stamp(S, 12)
    S.barrier("G0"); stamp(S, 2)
    def runner(gen):
        state = {"done": False}
        def run(budget):
            n0 = len(S.L)
            while not state["done"] and len(S.L) - n0 < budget:
                try:
                    r = next(gen)
                    if r == "DX": state["done"] = True
                except StopIteration:
                    state["done"] = True
        return run, state
    sch = OPT.hs
    def runner(gen):
        state = {"done": False}
        def run(budget):
            n0 = len(S.L)
            while not state["done"] and len(S.L) - n0 < budget:
                try:
                    r = next(gen)
                    if r == "DX": state["done"] = True
                except StopIteration:
                    state["done"] = True
        return run, state
    if not OPT.ckgen: krun, kst = runner(kgen_atoms(S))
    for c in range(8):
        if c == 0:
            nonce_setup(S); p1b(S); stamp(S, 15)
        if not OPT.ckgen and c < len(OPT.hb): krun(OPT.hb[c])
        if c == sch["comb"]:
            if not OPT.ckgen: assert kst["done"]
            kgen_combine3(S)
        if c == sch["build"]: kgen_build(S); stamp(S, 3)
        if c == sch["xnt"]:
            xnt_addr(S)
            xnt_loads(S)
        if c == sch["zero"]:
            S(f"s_mov_b32 s{sWoff}, {UT + 272*2}")
            ut_zero(S)
            b1_table_write(S)
            w2_setup(S)
        for j in sch["w2"].get(c, []): w2_dma2(S, j)
        S.wait_lg_all()
        stamp(S, 16 + c)
        S.barrier(f"G{c+1}")
    for j in sch["w2"].get(8, []): w2_dma2(S, j)
    S.barrier("G9")
    stamp(S, 4)
    if OPT.stop == "G9":
        stamp_flush(S); S("s_branch L_end"); return S
    for j in sch["w2"].get(9, []): w2_dma2(S, j)
    if sch["build"] == 9: kgen_build(S)
    xnt_finish(S)
    stamp(S, 5)
    S.barrier("CONV")
    for j in sch["w2"].get(10, []): w2_dma2(S, j)
    g1.xtile_load(S)
    stamp(S, 6)
    S.wait_vm("c0")
    S.barrier("W0")
    stamp(S, 7)
    for j in range(10):
        if j == 0:
            w2_dma2(S, 7); w2_dma2(S, 8)
        if j == 2: w2_dma2(S, 9)
        if j == 3: w2_dma2(S, 10)
        S.wait_vm(f"c{j+1}")
        S.barrier(f"W{j+1}")
    S.barrier("FX")
    final_all(S)
    stamp(S, 9)
    stamp_flush(S)
    S("s_branch L_end")
    return S

def kgen_combine3(S):
    T = Stream("tmp")
    kgen_combine(T)
    L = [x.strip() for x in T.L]
    i0 = [i for i, x in enumerate(L) if x.startswith("; sigma") or x.startswith("v_mov_b32 v39, s")][0]
    cut = [i for i, x in enumerate(L) if x.startswith("s_mov_b64 exec, -1")][0]
    i1 = [i for i, x in enumerate(L) if x.startswith("v_lshlrev_b32 v35, 8, v34")][0]
    if OPT.ckgen:
        S.wait_vm("dsk")
        S("v_lshlrev_b32 v167, 16, v167")
    S(f"""
    s_lshl_b32 s{sA}, s{sCH}, 13
    s_add_u32 s{sA}, s{sA}, {ESCR}
    v_add_u32 v33, s{sA}, v2
    v_mov_b32 v35, s{sA}
    """)
    for t in range(3):
        S(f"ds_read_b128 {vr(DD+4*t,4)}, v33 offset:{t*1024}")
        S(f"ds_read_b128 {vr(DP+4*t,4)}, v33 offset:{4096 + t*1024}")
    S("ds_read_b32 v39, v35 offset:3072")
    S(f"ds_read_b32 v38, v35 offset:{4096 + 3072}")
    S("s_waitcnt lgkmcnt(0)")
    for x in L[i0+1:i1]: S(x)
    S(f"s_cmp_eq_u32 s{sNH}, 0")
    S("s_cbranch_scc0 L_kc2")
    for x in L[i1:cut+1]: S(x)
    S("s_branch L_kc")
    S("L_kc2:")
    for x in L[cut+1:]: S(x)
    S.lg_done = len(S.lg)

def generate2():
    P = Stream("P")
    prologue(P)
    P(f"s_cmp_ge_u32 s{sWave}, 4")
    P("s_cbranch_scc0 L_roleC")
    ool = []
    H = Stream("H")
    stamp(H, 0)
    if not OPT.skipH: h_first(H)
    H("s_branch L_roleH")
    nfirst = len(H.L)
    C = build_C2(ool); build_H2(H)
    assert C.bars == H.bars, (C.bars, H.bars)
    lines = P.L + H.L[:nfirst] + C.L + ool + H.L[nfirst:] + ["L_end:", "    s_endpgm"]
    lines, nn = hazard_pass(lines)
    head = open("cdna_kernels/" + KNAME[:-7] + ".s.ref").read().split("; Override launch")[0]
    txt = head + f"; @launch grid=(256,1,1) block=(512,1,1) lds={LDS_BYTES}\n"
    txt += f""".amdgcn_target "amdgcn-amd-amdhsa--gfx950"
.text
.globl {KNAME}
.p2align 8
.type {KNAME},@function
{KNAME}:
""" + "\n".join(lines) + f"""
.section .rodata,"a"
.p2align 6
.amdhsa_kernel {KNAME}
  .amdhsa_next_free_vgpr 256
  .amdhsa_next_free_sgpr 102
  .amdhsa_accum_offset 256
  .amdhsa_group_segment_fixed_size 0
  .amdhsa_kernarg_size 136
  .amdhsa_user_sgpr_count 2
  .amdhsa_user_sgpr_kernarg_segment_ptr 1
  .amdhsa_system_sgpr_workgroup_id_x 1
.end_amdhsa_kernel
"""
    return txt, nn

if __name__ == "__main__":
    out = sys.argv[1] if len(sys.argv) > 1 else "k.s"
    if "stamps" in sys.argv: OPT.stamps = True
    if "dumpK" in sys.argv: OPT.dumpK = True
    if "dbgst" in sys.argv: OPT.dbgst = True; OPT.stamps = True
    OPT.norot = "norot" in sys.argv; OPT.norot1 = "norot1" in sys.argv
    OPT.budget = 110
    OPT.pre = 2
    OPT.allwrite = True
    OPT.fine = "fine" in sys.argv
    OPT.ckgen = "hkgen" not in sys.argv
    OPT.dmafirst = "dmafirst" in sys.argv
    w2s = {6: [0], 7: [1, 2], 8: [3, 4], 10: [5, 6]}
    if OPT.ckgen:
        OPT.pre = 4
        OPT.dpos = [1, 5, 9]
        OPT.hs = dict(comb=1, build=2, xnt=5, zero=4, w2=w2s)
    else:
        OPT.pre = 2
        OPT.hb = [30, 85, 85, 85, 85, 10**6]
        OPT.hs = dict(comb=6, build=9, xnt=7, zero=7, w2=w2s)
    for a in sys.argv:
        if a.startswith("pre="): OPT.pre = int(a[4:])
        if a.startswith("dpos="): OPT.dpos = [int(x) for x in a[5:].split(",")]
        if a.startswith("hs="): OPT.hs.update(eval(a[3:]))
    OPT.skipC = "skipC" in sys.argv; OPT.skipH = "skipH" in sys.argv
    if "stopG9" in sys.argv: OPT.stop = "G9"
    txt, nn = generate2()
    open(out, "w").write(txt)
    print("written", out, "lines", txt.count("\n"), "nops inserted", nn)
```

```python
import sys, struct
from asmlib import Stream, hazard_pass

KNAME = "parallel_sum__ssm_conv_s4__dense_activation_squared_relu__prompt_kernel"

WS_NONCE = 0
WS_STATS = 0x1000
WS_XNT   = 0x10000
WS_Y     = 0x500000
WS_H     = 0x900000
WS_DBG   = 0xF00000
WS_SIZE  = 0x1000000 + 0x1000000
OOB      = 0x7fff0000

SLOT1 = 28672
KC    = 114688; KCOPY = 2624; KCSZ = 4*KCOPY
SEC_E = 2176; SEC_O = 2384
ESCR  = 135680
P1BUF = 152064; P1ROW = 1040
UT    = 152064; UTSZ = (272 + 2048 + 16)*2
MISC  = 161408
LDS_BYTES = 163840
SLOT2 = 16384
def slot2(j):
    if j <= 6: return j*SLOT2
    if j == 7: return KC
    if j == 8: return KC + SLOT2
    return (j-9)*SLOT2
XCH = 2*SLOT2
TT  = 3*SLOT2
TTROW = 272

sU, sAre, sAim, sBre, sBim, sCre, sCim, sLdt = 4, 6, 8, 10, 12, 14, 16, 18
sDsk, sW1, sB1, sW2, sB2, sOut, sDbg, sWs = 20, 24, 26, 28, 30, 32, 34, 36
SU, SW1, SW2, SWS, SOUT = "s[40:43]", "s[44:47]", "s[48:51]", "s[52:55]", "s[56:59]"
sWave, sXcd, sI, sN, sTagHi, sTagLo = 60, 61, 62, 63, 64, 65
sT0, sTB, sR0, sF0, sG1ok, sD0, sR2, sC2 = 66, 67, 68, 69, 70, 71, 72, 73
sA, sB, sC, sD, sE, sF, sG, sH = 74, 75, 76, 77, 78, 79, 80, 81
sXoff, sWoff, sM = 82, 83, 84
sH0, sH1 = 85, 86
sRetry = 87
sP0, sP1 = 88, 90
sHW, sCH, sNH = 92, 93, 94
sStamp = 96

def f32(x): return "0x%08x" % struct.unpack("<I", struct.pack("<f", x))[0]
def sp(n): return f"s[{n}:{n+1}]"
def vr(a, n): return f"v[{a}:{a+n-1}]" if n > 1 else f"v{a}"

class Opt:
    skipC = False
    skipH = False
    norot = False
    dumpK = False
    stop = None
    stamps = False
    dbgst = False
    allwrite = False
    fine = False
    fakej3 = False
    c2rot = 0
    sDbgKeep = 34
    s1split = False
OPT = Opt()

def stamp(S, idx):
    if not OPT.stamps: return
    prev = getattr(S, "last_stamp", None)
    if prev is not None:
        S(f"v_writelane_b32 v255, s{sStamp}, {prev}")
    else:
        S("v_mov_b32 v255, 0")
        S("s_memrealtime s[22:23]")
    S(f"s_memtime {sp(sStamp)}")
    S.last_stamp = idx

def stamp_flush(S):
    if not OPT.stamps: return
    if OPT.dbgst:
        S(f"s_mov_b32 s88, s{OPT.sDbgKeep}")
        S(f"s_mov_b32 s89, s{OPT.sDbgKeep+1}")
        S("s_mov_b32 s90, 256")
        S("s_mov_b32 s91, 0x20000")
    S("s_memrealtime s[34:35]")
    S("s_memtime s[38:39]")
    S("s_waitcnt lgkmcnt(0)")
    S(f"v_writelane_b32 v255, s{sStamp}, {S.last_stamp}")
    S(f"v_writelane_b32 v255, s22, 30")
    S(f"v_writelane_b32 v255, s34, 31")
    S(f"v_writelane_b32 v255, s38, 29")
    if OPT.dbgst:
        S(f"s_cmp_lg_u32 s{sWave}, 0")
        S(f"s_cbranch_scc1 L_nodbg{S.name}{getattr(S,'ndbg',0)}")
        S("v_mov_b32 v253, 0")
        S("v_readlane_b32 s98, v255, 30"); S("s_not_b32 s99, s98"); S("v_writelane_b32 v253, s99, 0"); S("v_writelane_b32 v253, s98, 1")
        S("v_readlane_b32 s98, v255, 31"); S("v_writelane_b32 v253, s98, 2")
        S("v_readlane_b32 s97, v255, 0")
        for n, k in enumerate((2, 3, 4, 5, 6, 7, 8, 9)):
            S(f"v_readlane_b32 s98, v255, {k}"); S("s_sub_u32 s98, s98, s97"); S(f"v_writelane_b32 v253, s98, {3+n}")
        for n, k in enumerate((2, 3, 5, 7, 9)):
            S(f"v_readlane_b32 s98, v255, {k}"); S("s_sub_u32 s98, s98, s97"); S("s_not_b32 s98, s98"); S(f"v_writelane_b32 v253, s98, {11+n}")
        S("v_lshlrev_b32 v254, 2, v0")
        S("s_mov_b64 exec, 0xffff")
        S("buffer_atomic_umax v253, v254, s[88:91], 0 offen sc1")
        S("s_mov_b64 exec, -1")
        S(f"L_nodbg{S.name}{getattr(S,'ndbg',0)}:")
        S.ndbg = getattr(S,'ndbg',0) + 1
    S(f"s_lshl_b32 s98, s2, 3")
    S(f"s_add_u32 s98, s98, s{sWave}")
    S(f"s_lshl_b32 s98, s98, 7")
    S(f"s_add_u32 s98, s98, {WS_DBG}")
    S(f"v_lshlrev_b32 v254, 2, v0")
    S(f"s_mov_b32 exec_lo, -1")
    S(f"s_mov_b32 exec_hi, 0")
    S(f"buffer_store_dword v255, v254, {SWS}, s98 offen")
    S(f"s_mov_b64 exec, -1")

def prologue(S):
    S(f"""
    s_cmp_ge_u32 s2, 256
    s_cbranch_scc1 L_end
    s_load_dwordx16 s[4:19], s[0:1], 0
    s_load_dwordx16 s[20:35], s[0:1], 64
    s_load_dwordx2 s[36:37], s[0:1], 128
    v_xor_b32 v0, 256, v0
    v_mov_b32 v1, v0
    v_lshrrev_b32 v3, 6, v0
    v_and_b32 v0, 63, v0
    v_readfirstlane_b32 s{sWave}, v3
    v_lshlrev_b32 v2, 4, v0
    s_and_b32 s{sXcd}, s2, 7
    s_lshr_b32 s{sI}, s2, 3
    s_lshl_b32 s{sA}, s{sXcd}, 5
    s_add_u32 s{sTB}, s{sA}, s{sI}
    s_lshl_b32 s{sT0}, s{sTB}, 3
    s_lshr_b32 s{sA}, s{sXcd}, 1
    s_lshl_b32 s{sA}, s{sA}, 2
    s_and_b32 s{sB}, s{sI}, 3
    s_add_u32 s{sA}, s{sA}, s{sB}
    s_lshl_b32 s{sR0}, s{sA}, 7
    s_and_b32 s{sA}, s{sXcd}, 1
    s_lshl_b32 s{sA}, s{sA}, 3
    s_lshr_b32 s{sC}, s{sI}, 2
    s_add_u32 s{sA}, s{sA}, s{sC}
    s_mul_i32 s{sF0}, s{sA}, 96
    s_cmp_lt_u32 s{sA}, 15
    s_cselect_b32 s{sG1ok}, 1, 0
    s_lshl_b32 s{sD0}, s{sTB}, 1
    s_lshl_b32 s{sA}, s{sXcd}, 8
    s_lshl_b32 s{sB}, s{sB}, 6
    s_add_u32 s{sR2}, s{sA}, s{sB}
    s_add_u32 s{sC}, s{sC}, {OPT.c2rot}
    s_and_b32 s{sC}, s{sC}, 7
    s_lshl_b32 s{sC2}, s{sC}, 6
    s_waitcnt lgkmcnt(0)
    s_mov_b32 s40, s{sU}
    s_mov_b32 s41, s{sU+1}
    s_mov_b32 s42, {2048*512*2}
    s_mov_b32 s43, 0x20000
    s_mov_b32 s44, s{sW1}
    s_mov_b32 s45, s{sW1+1}
    s_mov_b32 s46, {512*1376*2}
    s_mov_b32 s47, 0x20000
    s_mov_b32 s48, s{sW2}
    s_mov_b32 s49, s{sW2+1}
    s_mov_b32 s50, {512*1376*2}
    s_mov_b32 s51, 0x20000
    s_mov_b32 s52, s{sWs}
    s_mov_b32 s53, s{sWs+1}
    s_mov_b32 s54, {WS_SIZE}
    s_mov_b32 s55, 0x20000
    s_mov_b32 s56, s{sOut}
    s_mov_b32 s57, s{sOut+1}
    s_mov_b32 s58, {2048*512*2}
    s_mov_b32 s59, 0x20000
    """)

def first_loads(S):
    S.vmem(f"buffer_load_dword v3, off, {SWS}, 0 sc1", "nonce")
    S(f"s_add_u32 s{sA}, s{sT0}, s{sWave}")
    S(f"s_lshl_b32 s{sA}, s{sA}, 10")
    S.vmem(f"buffer_load_dwordx4 v[4:7], v2, {SU}, s{sA} offen", "xrow")

def dma_setup(S):
    S(f"""
    v_lshrrev_b32 v33, 3, v0
    v_lshlrev_b32 v33, 10, v33
    v_and_b32 v34, 7, v0
    v_lshrrev_b32 v35, 4, v0
    v_xor_b32 v36, v34, v35
    v_lshl_add_u32 v240, v36, 4, v33
    v_xor_b32 v36, 4, v36
    v_lshl_add_u32 v241, v36, 4, v33
    s_mov_b32 s{sA}, 0x15555556
    s_movk_i32 s{sB}, 2752
    """)
    for b in range(3):
        S(f"""
        v_add_u32 v33, {64*b}, v0
        v_mul_hi_u32 v34, v33, s{sA}
        v_mul_u32_u24 v35, 12, v34
        v_sub_u32 v35, v33, v35
        v_bfe_u32 v36, v34, 3, 1
        v_lshlrev_b32 v36, 1, v36
        v_xor_b32 v35, v35, v36
        v_lshlrev_b32 v35, 4, v35
        v_mad_u32_u24 v{242+b}, v34, s{sB}, v35
        """)
    S(f"""
    s_lshl_b32 s{sA}, s{sR0}, 10
    s_lshl_b32 s{sB}, s{sF0}, 1
    s_cmp_eq_u32 s{sG1ok}, 1
    s_cselect_b32 s{sXoff}, s{sA}, {OOB}
    s_cselect_b32 s{sWoff}, s{sB}, {OOB}
    """)

def dma_x(S, c, j_sreg_mul, joff, tag):
    slot = (c % 4)*SLOT1
    S(f"s_add_u32 s{sA}, s{j_sreg_mul}, {joff}")
    S(f"s_lshl_b32 s{sB}, s{sA}, 10")
    S(f"s_add_u32 m0, s{sB}, {slot}")
    S(f"s_lshl_b32 s{sA}, s{sA}, 13")
    S(f"s_add_u32 s{sA}, s{sA}, {c*128}")
    S(f"s_add_u32 s{sA}, s{sA}, s{sXoff}")
    S.vmem(f"buffer_load_dwordx4 v{240 + (joff & 1)}, {SU}, s{sA} offen lds", tag)

def dma_w(S, csreg, cconst, asreg, tag):
    if csreg is None: S(f"s_mov_b32 s{sC}, {cconst}")
    else: S(f"s_add_u32 s{sC}, s{csreg}, {cconst}")
    S(f"s_lshl_b32 s{sD}, s{sC}, 2")
    S(f"s_add_u32 s{sD}, s{sD}, s{asreg}")
    S(f"s_mul_i32 s{sD}, s{sD}, {16*2752}")
    S(f"s_add_u32 s{sD}, s{sD}, s{sWoff}")
    S(f"s_and_b32 s{sC}, s{sC}, 3")
    S(f"s_mul_i32 s{sC}, s{sC}, {SLOT1}")
    S(f"s_mul_i32 s{sE}, s{asreg}, 3072")
    S(f"s_add_u32 s{sC}, s{sC}, s{sE}")
    S(f"s_add_u32 s{sC}, s{sC}, 16384")
    for b in range(3):
        S(f"s_add_u32 m0, s{sC}, {b*1024}")
        S.vmem(f"buffer_load_dwordx4 v{242+b}, {SW1}, s{sD} offen lds", tag)

def initial_dma(S, role):
    S(f"s_lshl_b32 s{sF}, s{sWave}, 1")
    S(f"s_lshr_b32 s{sG}, s{sWave}, 2")
    S(f"s_and_b32 s{sH}, s{sWave}, 3")
    wt = lambda m: f"w{2*m + (0 if role == 'C' else 1)}"
    for c in range(4):
        dma_x(S, c, sF, 0, f"x{c}"); dma_x(S, c, sF, 1, f"x{c}")
        if c in (0, 2):
            dma_w(S, sG, c, sH, wt(c//2))

def nonce_setup(S):
    S.wait_vm("nonce")
    S(f"""
    v_readfirstlane_b32 s{sN}, v3
    s_mul_i32 s{sN}, s{sN}, 1664525
    s_add_u32 s{sN}, s{sN}, 1013904223
    s_and_b32 s{sTagLo}, s{sN}, 0xffff
    s_lshl_b32 s{sTagHi}, s{sN}, 16
    """)

def wave_sum(S, v, sdst):
    for m in ("row_shr:1", "row_shr:2", "row_shr:4", "row_shr:8"):
        S(f"v_add_f32_dpp v{v}, v{v}, v{v} {m} row_mask:0xf bank_mask:0xf")
    S(f"v_add_f32_dpp v{v}, v{v}, v{v} row_bcast:15 row_mask:0xa bank_mask:0xf")
    S(f"v_add_f32_dpp v{v}, v{v}, v{v} row_bcast:31 row_mask:0xc bank_mask:0xf")
    S(f"v_readlane_b32 s{sdst}, v{v}, 63")

def wave_max(S, v, sdst):
    for m in ("row_shr:1", "row_shr:2", "row_shr:4", "row_shr:8"):
        S(f"v_max_f32_dpp v{v}, v{v}, v{v} {m} row_mask:0xf bank_mask:0xf")
    S(f"v_max_f32_dpp v{v}, v{v}, v{v} row_bcast:15 row_mask:0xa bank_mask:0xf")
    S(f"v_max_f32_dpp v{v}, v{v}, v{v} row_bcast:31 row_mask:0xc bank_mask:0xf")
    S(f"v_readlane_b32 s{sdst}, v{v}, 63")

def p1_part1(S, last_tag):
    S.wait_vm(last_tag)
    stamp(S, 13)
    for j in range(4):
        S(f"v_lshlrev_b32 v{8+2*j}, 16, v{4+j}")
        S(f"v_and_b32 v{9+2*j}, 0xffff0000, v{4+j}")
    S("""
    v_add_f32 v16, v8, v9
    v_add_f32 v17, v10, v11
    v_add_f32 v18, v12, v13
    v_add_f32 v19, v14, v15
    v_add_f32 v16, v16, v17
    v_add_f32 v18, v18, v19
    v_add_f32 v16, v16, v18
    """)
    wave_sum(S, 16, sA)
    S(f"v_mov_b32 v17, {f32(1/512)}")
    S(f"v_mul_f32 v17, s{sA}, v17")
    for j in range(8):
        S(f"v_sub_f32 v{24+j}, v{8+j}, v17")
    S("v_mul_f32 v16, v24, v24")
    for j in range(1, 8):
        S(f"v_fmac_f32 v16, v{24+j}, v{24+j}")
    wave_sum(S, 16, sA)
    S(f"""
    v_cvt_pk_bf16_f32 v20, v17, v17
    v_and_b32 v20, 0xffff0000, v20
    v_mov_b32 v18, {f32(1/512)}
    v_mul_f32 v18, s{sA}, v18
    v_cvt_pk_bf16_f32 v18, v18, v18
    v_and_b32 v18, 0xffff0000, v18
    v_add_f32 v18, {f32(1e-5)}, v18
    v_cvt_pk_bf16_f32 v18, v18, v18
    v_and_b32 v18, 0xffff0000, v18
    v_sqrt_f32 v19, v18
    v_rcp_f32 v21, v19
    v_fma_f32 v23, -v19, v19, v18
    v_mul_f32 v21, 0.5, v21
    v_fmac_f32 v19, v23, v21
    v_cvt_pk_bf16_f32 v19, v19, v19
    v_and_b32 v19, 0xffff0000, v19
    v_rcp_f32 v22, v19
    v_fma_f32 v23, -v19, v22, 1.0
    v_fmac_f32 v22, v23, v22
    v_mul_f32 v23, v20, v22
    """)
    for j in range(8):
        S(f"v_fma_f32 v{24+j}, v{8+j}, v22, -v23")
    for j in range(4):
        S(f"v_cvt_pk_f16_f32 v{4+j}, v{24+2*j}, v{25+2*j}")
    S(f"s_mul_i32 s{sA}, s{sWave}, {P1ROW}")
    S(f"s_add_u32 s{sA}, s{sA}, {P1BUF}")
    S(f"v_add_u32 v16, s{sA}, v2")
    S.lds("ds_write_b128 v16, v[4:7]", "p1w")
    S.wait_lg_all()

def p1_part2(S):
    S(f"""
    v_mov_b32 v4, v20
    v_mov_b32 v5, s{sN}
    v_mov_b32 v6, v22
    v_mov_b32 v7, s{sN}
    s_add_u32 s{sA}, s{sT0}, s{sWave}
    s_lshl_b32 s{sA}, s{sA}, 4
    s_add_u32 s{sA}, s{sA}, {WS_STATS}
    s_mov_b64 exec, 1
    """)
    S.vmem(f"buffer_store_dwordx4 v[4:7], off, {SWS}, s{sA} sc1", "statst")
    S("s_mov_b64 exec, -1")
    S(f"""
    v_and_b32 v8, 1, v1
    v_mul_u32_u24 v8, {4*P1ROW}, v8
    v_and_b32 v9, 0x1fe, v1
    v_add_u32 v8, v8, v9
    v_add_u32 v8, {P1BUF}, v8
    """)
    for k in range(2):
        for j in range(4):
            S.lds(f"ds_read_u16 v{12+4*k+j}, v8 offset:{j*P1ROW + 512*k}", f"p1r{k}")
    S(f"v_lshlrev_b32 v9, 4, v1")
    S(f"s_lshl_b32 s{sA}, s{sTB}, 14")
    S(f"s_add_u32 s{sA}, s{sA}, {WS_XNT}")
    S(f"s_add_u32 s{sB}, s{sA}, 8192")
    for k in range(2):
        S.wait_lg(f"p1r{k}")
        for j in range(4):
            S(f"v_or_b32 v{12+4*k+j}, s{sTagHi}, v{12+4*k+j}")
        S.vmem(f"buffer_store_dwordx4 v[{12+4*k}:{15+4*k}], v9, {SWS}, s{sA if k == 0 else sB} offen sc1", "xntst")

ACC1 = 64
S1A  = 112
ONES = 124
XF = (128, 160); WF = (144, 176)

def h_offsets(S):
    S(f"""
    s_and_b32 s{sA}, s{sWave}, 1
    s_lshr_b32 s{sB}, s{sWave}, 1
    s_lshr_b32 s{sC}, s{sR0}, 5
    s_lshl_b32 s{sA}, s{sA}, 1
    s_add_u32 s{sC}, s{sC}, s{sA}
    s_mul_i32 s{sC}, s{sC}, 86
    s_lshr_b32 s{sD}, s{sF0}, 4
    s_mul_i32 s{sB}, s{sB}, 3
    s_add_u32 s{sD}, s{sD}, s{sB}
    s_add_u32 s{sC}, s{sC}, s{sD}
    s_lshl_b32 s{sC}, s{sC}, 10
    s_add_u32 s{sH0}, s{sC}, {WS_H}
    s_add_u32 s{sH1}, s{sH0}, {86*1024}
    s_mov_b32 s{sM}, s{sD}
    """)

def h_soff(S, alpha, pp, dst):
    S(f"s_add_u32 s{dst}, s{sM}, {alpha}")
    S(f"s_cmp_lt_u32 s{dst}, 86")
    S(f"s_cselect_b32 s{dst}, s{sH1 if pp else sH0}, {OOB}")

def h_clear(S):
    for j in range(4): S(f"v_mov_b32 v{8+j}, 0x80008000")
    for a in range(3):
        for pp in range(2):
            h_soff(S, a, pp, sA)
            S.vmem(f"buffer_store_dwordx4 v[8:11], v2, {SWS}, s{sA} offen offset:{a*1024} sc1", "clear")

def g1_addr(S):
    S(f"""
    s_and_b32 s{sA}, s{sWave}, 1
    s_lshr_b32 s{sB}, s{sWave}, 1
    v_and_b32 v33, 15, v0
    v_lshrrev_b32 v34, 4, v0
    v_lshrrev_b32 v35, 1, v33
    v_xor_b32 v35, v35, v34
    v_lshlrev_b32 v35, 4, v35
    v_lshl_add_u32 v35, v33, 7, v35
    s_lshl_b32 s{sC}, s{sA}, 13
    v_add_u32 v24, s{sC}, v35
    v_xor_b32 v25, 64, v24
    v_lshrrev_b32 v35, 2, v33
    v_lshl_add_u32 v35, v34, 3, v35
    v_mul_u32_u24 v35, 192, v35
    v_bfe_u32 v36, v0, 1, 1
    v_lshl_add_u32 v35, v36, 4, v35
    v_and_b32 v36, 1, v0
    v_lshl_add_u32 v35, v36, 3, v35
    s_mul_i32 s{sC}, s{sB}, 96
    s_add_u32 s{sC}, s{sC}, 16384
    v_add_u32 v35, s{sC}, v35
    v_and_b32 v36, 1, v34
    v_lshlrev_b32 v36, 5, v36
    v_add_u32 v26, v35, v36
    v_sub_u32 v27, v35, v36
    """)
    S(f"""
    s_cmp_eq_u32 s{sB}, 1
    s_cselect_b64 vcc, -1, 0
    v_cndmask_b32 v35, v26, v27, vcc
    v_cndmask_b32 v27, v27, v26, vcc
    v_mov_b32 v26, v35
    """)

def g1_reads(S, c, s, st, tag):
    slot = (c % 4)*SLOT1
    xa = 37 + s; wa = (39, 40)
    if s == 0:
        S(f"v_add_u32 v37, {slot}, v24")
        S(f"v_add_u32 v38, {slot}, v25")
        S(f"v_add_u32 v39, {slot}, v26")
        S(f"v_add_u32 v40, {slot}, v27")
    for a in range(3):
        for h in range(2):
            off = (32*s + 4*h)*192 + 32*a
            S.lds(f"ds_read_b64_tr_b16 {vr(WF[st]+4*a+2*h, 2)}, v{wa[a & 1]} offset:{off}", tag)
    for tt in range(4):
        S.lds(f"ds_read_b128 {vr(XF[st]+4*tt, 4)}, v{xa} offset:{tt*2048}", tag)

def g1_mfmas(S, st, first):
    for a in range(3):
        for tt in range(4):
            acc = ACC1 + 16*a + 4*tt
            c = "0" if first else vr(acc, 4)
            S(f"v_mfma_f32_16x16x32_bf16 {vr(acc,4)}, {vr(WF[st]+4*a,4)}, {vr(XF[st]+4*tt,4)}, {c}")
        acc = S1A + 4*a
        c = "0" if first else vr(acc, 4)
        S(f"v_mfma_f32_16x16x32_bf16 {vr(acc,4)}, {vr(WF[st]+4*a,4)}, {vr(ONES,4)}, {c}")

def gemm1(S):
    g1_addr(S)
    for j in range(4): S(f"v_mov_b32 v{ONES+j}, 0x3f803f80")
    S.wait_vm("x0"); S.wait_vm("w0")
    S.barrier("G0")
    stamp(S, 2)
    g1_reads(S, 0, 0, 0, "r0_0")
    for c in range(8):
        g1_reads(S, c, 1, 1, f"r{c}_1")
        S.wait_lg(f"r{c}_0")
        g1_mfmas(S, 0, c == 0)
        if c == 4:
            g1_epi_loads(S)
        S.wait_lg(f"r{c}_1")
        if c < 3:
            S.wait_vm(f"x{c+1}")
            if c+1 == 2: S.wait_vm("w2")
        S.barrier(f"G{c+1}")
        stamp(S, 16 + c)
        if c < 7:
            g1_reads(S, c+1, 0, 0, f"r{c+1}_0")
        g1_mfmas(S, 1, False)

STAT = 188; B1R = 204; B1F = 210
def g1_epi_loads(S):
    S(f"""
    s_and_b32 s{sA}, s{sWave}, 1
    s_lshl_b32 s{sA}, s{sA}, 6
    s_add_u32 s{sA}, s{sA}, s{sR0}
    s_lshl_b32 s{sA}, s{sA}, 4
    s_add_u32 s{sE}, s{sA}, {WS_STATS}
    v_and_b32 v41, 15, v0
    v_lshlrev_b32 v41, 4, v41
    """)
    for tt in range(4):
        S.vmem(f"buffer_load_dwordx4 {vr(STAT+4*tt,4)}, v41, {SWS}, s{sE} offen offset:{tt*256} sc1", "stat")
    S(f"""
    s_lshr_b32 s{sB}, s{sWave}, 1
    s_mul_i32 s{sB}, s{sB}, 48
    s_add_u32 s{sB}, s{sB}, s{sF0}
    v_lshrrev_b32 v42, 4, v0
    v_lshlrev_b32 v42, 2, v42
    v_add_u32 v42, s{sB}, v42
    """)
    for a in range(3):
        S(f"v_add_u32 v43, {16*a}, v42")
        S(f"v_min_u32 v43, 1372, v43")
        S(f"v_lshlrev_b32 v43, 1, v43")
        S.vmem(f"global_load_dwordx2 {vr(B1R+2*a,2)}, v43, {sp(sB1)}", "b1")

def check_stats(S, lab):
    S(f"s_mov_b32 s{sRetry}, 0")
    S.wait_vm("stat")
    S(f"{lab}_chk:")
    for tt in range(4):
        b = STAT + 4*tt
        S(f"v_xor_b32 v44, s{sN}, v{b+1}")
        S(f"v_xor_b32 v45, s{sN}, v{b+3}")
        if tt == 0: S(f"v_or_b32 v46, v44, v45")
        else: S(f"v_or3_b32 v46, v46, v44, v45")
    S(f"""
    v_cmp_ne_u32 vcc, 0, v46
    s_cbranch_vccz {lab}_ok
    s_add_u32 s{sRetry}, s{sRetry}, 1
    s_cmp_ge_u32 s{sRetry}, 4096
    s_cbranch_scc1 {lab}_ok
    """)
    for tt in range(4):
        S(f"buffer_load_dwordx4 {vr(STAT+4*tt,4)}, v41, {SWS}, s{sE} offen offset:{tt*256} sc1")
    S("s_waitcnt vmcnt(0)")
    S(f"s_branch {lab}_chk")
    S(f"{lab}_ok:")

def g1_epilogue(S):
    check_stats(S, "L_st")
    S.wait_vm("b1")
    for a in range(3):
        for h in range(2):
            S(f"v_lshlrev_b32 v{B1F+4*a+2*h}, 16, v{B1R+2*a+h}")
            S(f"v_and_b32 v{B1F+4*a+2*h+1}, 0xffff0000, v{B1R+2*a+h}")
    for a in range(3):
        for pp in range(2):
            for q in range(2):
                tt = 2*pp + q
                acc = ACC1 + 16*a + 4*tt
                m = STAT + 4*tt; r = m + 2
                for h in range(2):
                    A = vr(acc+2*h, 2)
                    S(f"v_pk_fma_f32 {A}, {vr(S1A+4*a+2*h,2)}, {vr(m,2)}, {A} op_sel_hi:[1,0,1] neg_lo:[0,1,0] neg_hi:[0,1,0]")
                    S(f"v_pk_fma_f32 {A}, {A}, {vr(r,2)}, {vr(B1F+4*a+2*h,2)} op_sel_hi:[1,0,1]")
                for j in range(4):
                    S(f"v_max_f32 v{acc+j}, 0, v{acc+j}")
                for h in range(2):
                    A = vr(acc+2*h, 2)
                    S(f"v_pk_mul_f32 {A}, {A}, {A}")
                base = 48 + 4*((2*a+pp) & 1)
                S(f"v_cvt_pk_bf16_f32 v{base+2*q}, v{acc}, v{acc+1}")
                S(f"v_cvt_pk_bf16_f32 v{base+2*q+1}, v{acc+2}, v{acc+3}")
            base = 48 + 4*((2*a+pp) & 1)
            S(f"v_permlane16_swap_b32 v{base}, v{base+2}")
            S(f"v_permlane16_swap_b32 v{base+1}, v{base+3}")
            h_soff(S, a, pp, sA)
            S.vmem(f"buffer_store_dwordx4 {vr(base,4)}, v2, {SWS}, s{sA} offen offset:{a*1024} sc1", "hst")

FK = 64; CACC = 196; BRING = 216; GF = 232
VF = 32; DW = 48; BANDE = 56; BANDO = 60

def conv_setup(S):
    S(f"""
    s_lshr_b32 s{sA}, s{sWave}, 1
    v_and_b32 v33, 15, v0
    v_lshrrev_b32 v34, 4, v0
    s_mul_i32 s{sB}, s{sA}, {UTSZ}
    s_add_u32 s{sB}, s{sB}, {UT+16}
    v_lshlrev_b32 v35, 5, v33
    v_lshl_add_u32 v35, v34, 4, v35
    v_add_u32 v24, s{sB}, v35
    v_sub_u32 v35, 3, v33
    v_and_b32 v35, 3, v35
    s_mul_i32 s{sB}, s{sA}, {KCSZ}
    s_add_u32 s{sB}, s{sB}, {KC}
    v_mul_u32_u24 v36, {KCOPY}, v35
    v_add_u32 v36, s{sB}, v36
    v_add_u32 v35, v35, v33
    v_lshlrev_b32 v37, 3, v34
    v_sub_u32 v37, v37, v35
    v_add_u32 v37, 27, v37
    v_lshl_add_u32 v25, v37, 1, v36
    v_lshlrev_b32 v37, 2, v34
    v_sub_u32 v37, v37, v35
    v_add_u32 v37, 19, v37
    v_lshl_add_u32 v26, v37, 1, v36
    s_lshl_b32 s{sB}, s{sA}, 2
    s_add_u32 s{sB}, s{sB}, {MISC}
    v_mov_b32 v27, s{sB}
    """)
    for (dst, h) in ((BANDE, 4), (BANDO, 3)):
        S(f"v_add_u32 v35, {8-h}, v33")
        S(f"v_mov_b32 v36, {(1 << (2*h+1)) - 1}")
        S(f"v_lshlrev_b32 v36, v35, v36")
        S(f"v_lshlrev_b32 v35, 3, v34")
        S(f"v_lshrrev_b32 v36, v35, v36")
        for j in range(4):
            S(f"v_bfe_u32 v35, v36, {2*j}, 1")
            S(f"v_bfe_u32 v37, v36, {2*j+1}, 1")
            S(f"v_lshl_or_b32 v35, v37, 16, v35")
            S(f"v_mul_u32_u24 v{dst+j}, 0x3c00, v35")

def conv_far(S, svals, pairs):
    S.lds(f"ds_read_b32 v28, v27", "sig")
    taus = [t for s in svals for t in (2*s, 2*s+1)]
    first = set()
    for s in svals:
        for (name, Z, band, vf, sec) in (("E", 24, BANDE, VF + 4*s, SEC_E), ("O", 16, BANDO, VF + 8 + 4*s, SEC_O)):
            for q in range(2):
                tau = 2*s + q
                S.lds(f"ds_read_b128 {vr(BRING+4*q,4)}, v24 offset:{528 + 512*tau - 2*Z}", f"U{name}{tau}")
            for q in range(2):
                S.wait_lg(f"U{name}{2*s+q}")
                S(f"v_mfma_f32_16x16x32_f16 {vr(DW+4*q,4)}, {vr(BRING+4*q,4)}, {vr(band,4)}, 0")
            for q in range(2):
                S(f"v_cvt_pk_f16_f32 v{vf+2*q}, v{DW+4*q}, v{DW+4*q+1}")
                S(f"v_cvt_pk_f16_f32 v{vf+2*q+1}, v{DW+4*q+2}, v{DW+4*q+3}")
    n = 0
    for (cl, s, delta) in pairs:
        for (name, vf, sec) in (("E", VF + 4*s, SEC_E), ("O", VF + 8 + 4*s, SEC_O)):
            g = GF + 4*(n % 4); n += 1
            off = sec + 32*(7 - delta)
            S.lds(f"ds_read_b64 {vr(g,2)}, v26 offset:{off}", f"G{n}")
            S.lds(f"ds_read_b64 {vr(g+2,2)}, v26 offset:{off+32}", f"G{n}")
            S.wait_lg(f"G{n}")
            acc = CACC + 4*cl
            c = vr(acc, 4) if cl in first else "0"
            first.add(cl)
            S(f"v_mfma_f32_16x16x32_f16 {vr(acc,4)}, {vr(vf,4)}, {vr(g,4)}, {c}")
    return first

def conv_near(S, tiles, first):
    kmax = lambda c: min(32, 8*c + 8)
    xi_hi = 8*tiles[-1]; xi_lo = min(8*c - kmax(c) for c in tiles)
    steps = list(range(xi_hi, xi_lo - 1, -1))
    D = 2
    def issue(i):
        xi = steps[i]
        kn = xi_hi - xi
        if kn <= 32:
            S.lds(f"ds_read_b64 {vr(FK+4*kn,2)}, v25 offset:{64*(32-kn)}", f"s{i}")
            S.lds(f"ds_read_b64 {vr(FK+4*kn+2,2)}, v25 offset:{64*(32-kn)+8}", f"s{i}")
        S.lds(f"ds_read_b128 {vr(BRING+4*(i % 4),4)}, v24 offset:{64*(xi+8)}", f"s{i}")
    for i in range(min(D, len(steps))): issue(i)
    first = set(first)
    for i, xi in enumerate(steps):
        if i + D < len(steps): issue(i + D)
        S.wait_lg(f"s{i}")
        for cl, c in enumerate(tiles):
            k = 8*c - xi
            if 0 <= k <= kmax(c):
                acc = CACC + 4*cl
                cc = vr(acc, 4) if cl in first else "0"
                first.add(cl)
                S(f"v_mfma_f32_16x16x32_f16 {vr(acc,4)}, {vr(FK+4*k,4)}, {vr(BRING+4*(i % 4),4)}, {cc}")

def conv_store(S, tiles):
    S(f"""
    s_lshr_b32 s{sA}, s{sWave}, 1
    s_add_u32 s{sA}, s{sA}, s{sD0}
    s_lshl_b32 s{sA}, s{sA}, 13
    s_add_u32 s{sA}, s{sA}, {WS_Y}
    v_and_b32 v33, 15, v0
    v_lshrrev_b32 v34, 4, v0
    v_lshlrev_b32 v33, 6, v33
    v_lshl_add_u32 v33, v34, 4, v33
    v_mov_b32 v34, 0xffff0000
    """)
    for cl, c in enumerate(tiles):
        acc = CACC + 4*cl
        for j in range(4): S(f"v_mul_f32 v{acc+j}, v28, v{acc+j}")
        S(f"v_cvt_pk_bf16_f32 v35, v{acc}, v{acc+1}")
        S(f"v_cvt_pk_bf16_f32 v36, v{acc+2}, v{acc+3}")
        S(f"v_lshl_or_b32 v{acc}, v35, 16, s{sTagLo}")
        S(f"v_and_b32 v35, v34, v35")
        S(f"v_or_b32 v{acc+1}, s{sTagLo}, v35")
        S(f"v_lshl_or_b32 v{acc+2}, v36, 16, s{sTagLo}")
        S(f"v_and_b32 v36, v34, v36")
        S(f"v_or_b32 v{acc+3}, s{sTagLo}, v36")
        S(f"s_add_u32 s{sB}, s{sA}, {c*1024}")
        S.vmem(f"buffer_store_dwordx4 {vr(acc,4)}, v33, {SWS}, s{sB} offen sc1", "yst")

def conv(S):
    conv_setup(S)
    S(f"s_bitcmp1_b32 s{sWave}, 0")
    S(f"s_cbranch_scc1 L_convB")
    save_lg = (list(S.lg), S.lg_done); save_vm = (list(S.vm), S.vm_done)
    first = conv_far(S, [0], [(4, 0, 4)])
    conv_near(S, [0, 1, 2, 3, 4], first)
    conv_store(S, [0, 1, 2, 3, 4])
    S.wait_lg_all()
    S("s_branch L_convE")
    S("L_convB:")
    vmA = list(S.vm)
    S.lg, S.lg_done = save_lg; S.vm, S.vm_done = save_vm
    first = conv_far(S, [0, 1], [(0, 0, 5), (1, 0, 6), (1, 1, 4), (2, 0, 7), (2, 1, 5)])
    conv_near(S, [5, 6, 7], first)
    conv_store(S, [5, 6, 7])
    S(f"s_mov_b32 s{sB}, {OOB}")
    for _ in range(2):
        S.vmem(f"buffer_store_dwordx4 {vr(CACC,4)}, v33, {SWS}, s{sB} offen sc1", "yst")
    S.wait_lg_all()
    assert len(S.vm) == len(vmA)
    S("L_convE:")

ACC2 = 64; HR = 96; BF2 = (160, 168); XT = 176; B2R = 180; YR = 184; PR = 200
RD = 16
def gemm2_setup(S):
    S(f"""
    s_lshr_b32 s{sA}, s{sWave}, 1
    s_and_b32 s{sB}, s{sWave}, 1
    s_lshr_b32 s{sC}, s{sR2}, 5
    s_add_u32 s{sC}, s{sC}, s{sB}
    s_mul_i32 s{sC}, s{sC}, 86
    s_mul_i32 s{sD}, s{sA}, 43
    s_add_u32 s{sC}, s{sC}, s{sD}
    s_lshl_b32 s{sC}, s{sC}, 10
    s_add_u32 s{sH0}, s{sC}, {WS_H}
    v_lshrrev_b32 v33, 5, v0
    v_lshlrev_b32 v33, 3, v33
    v_bfe_u32 v34, v0, 2, 2
    v_add_u32 v33, v33, v34
    v_lshlrev_b32 v33, 7, v33
    v_bfe_u32 v34, v0, 4, 1
    v_lshlrev_b32 v34, 1, v34
    v_bfe_u32 v35, v0, 1, 1
    v_add_u32 v34, v34, v35
    s_lshl_b32 s{sD}, s{sA}, 2
    v_or_b32 v34, s{sD}, v34
    v_bfe_u32 v35, v0, 3, 1
    v_lshlrev_b32 v35, 2, v35
    v_xor_b32 v34, v34, v35
    v_lshl_add_u32 v33, v34, 4, v33
    v_and_b32 v34, 1, v0
    v_lshl_add_u32 v33, v34, 3, v33
    s_lshl_b32 s{sD}, s{sA}, 13
    v_add_u32 v24, s{sD}, v33
    v_xor_b32 v25, 64, v24
    """)

def xtile_load(S):
    S(f"""
    v_lshrrev_b32 v30, 3, v1
    v_add_u32 v30, s{sR2}, v30
    v_lshlrev_b32 v30, 10, v30
    v_and_b32 v31, 7, v1
    v_lshlrev_b32 v31, 4, v31
    s_lshl_b32 s{sA}, s{sC2}, 1
    v_add3_u32 v30, v30, v31, s{sA}
    """)
    S.vmem(f"buffer_load_dwordx4 {vr(XT,4)}, v30, {SU}, 0 offen", "xt")

def h_load(S, f, tag=True):
    r = HR + 4*(f % RD)
    if f % 4 == 0 or not tag:
        S(f"s_add_u32 s{sE}, s{sH0}, {(f//4)*4096}")
    txt = f"buffer_load_dwordx4 {vr(r,4)}, v2, {SWS}, s{sE} offen offset:{(f % 4)*1024} sc1"
    if tag: S.vmem(txt, f"h{f}")
    else: S(txt)

def g2_reads(S, j, s, st, tag):
    if s == 0:
        S(f"v_add_u32 v26, {slot2(j)}, v24")
        S(f"v_add_u32 v27, {slot2(j)}, v25")
    for lc in range(2):
        for h in range(2):
            S.lds(f"ds_read_b64_tr_b16 {vr(BF2[st]+4*lc+2*h,2)}, v{26+lc} offset:{(16*s+4*h)*128}", tag)

def y_loads(S, tag=True):
    for q in range(4):
        txt = f"buffer_load_dwordx4 {vr(YR+4*q,4)}, v28, {SWS}, s{sG} offen offset:{q*32} sc1"
        if tag: S.vmem(txt, "y")
        else: S(txt)

def gemm2(S):
    gemm2_setup(S)
    xtile_load(S)
    S(f"""
    s_lshr_b32 s{sA}, s{sWave}, 1
    s_lshl_b32 s{sA}, s{sA}, 5
    s_add_u32 s{sA}, s{sA}, s{sC2}
    v_and_b32 v28, 31, v0
    v_add_u32 v28, s{sA}, v28
    v_lshlrev_b32 v29, 1, v28
    """)
    S.vmem(f"global_load_ushort v{B2R}, v29, {sp(sB2)}", "b2")
    S(f"""
    v_lshlrev_b32 v28, 13, v28
    v_lshrrev_b32 v29, 5, v0
    v_lshl_add_u32 v28, v29, 4, v28
    s_and_b32 s{sB}, s{sWave}, 1
    s_lshl_b32 s{sB}, s{sB}, 5
    s_add_u32 s{sB}, s{sB}, s{sR2}
    s_lshl_b32 s{sB}, s{sB}, 2
    s_add_u32 s{sG}, s{sB}, {WS_Y}
    """)
    for f in range(RD): h_load(S, f)
    S.barrier("W0")
    stamp(S, 7)
    g2_reads(S, 0, 0, 0, "b0_0")
    f = 0; st = 0
    for j in range(11):
        ns = 4 if j < 10 else 3
        S.wait_vm(f"h{f+ns-1}")
        lab = f"L_h{j}"
        S(f"s_mov_b32 s{sRetry}, 0")
        S(f"{lab}_chk:")
        regs = [HR + 4*((f+k) % RD) + e for k in range(ns) for e in range(4)]
        S(f"v_or3_b32 v33, v{regs[0]}, v{regs[1]}, v{regs[2]}")
        k = 3
        while k < len(regs):
            if k + 1 < len(regs):
                S(f"v_or3_b32 v33, v33, v{regs[k]}, v{regs[k+1]}"); k += 2
            else:
                S(f"v_or_b32 v33, v33, v{regs[k]}"); k += 1
        S(f"""
        v_and_b32 v33, 0x80008000, v33
        v_cmp_ne_u32 vcc, 0, v33
        s_cbranch_vccz {lab}_ok
        s_add_u32 s{sRetry}, s{sRetry}, 1
        s_cmp_ge_u32 s{sRetry}, 4096
        s_cbranch_scc1 {lab}_ok
        """)
        S(f"s_add_u32 s{sF}, s{sH0}, {f*1024}")
        for k in range(ns):
            S(f"buffer_load_dwordx4 {vr(HR+4*((f+k) % RD),4)}, v2, {SWS}, s{sF} offen offset:{k*1024} sc1")
        S("s_waitcnt vmcnt(0)")
        S(f"s_branch {lab}_chk")
        S(f"{lab}_ok:")
        for s in range(ns):
            if s < ns - 1:
                g2_reads(S, j, s+1, st ^ 1, f"b{j}_{s+1}")
                S.wait_lg(f"b{j}_{s}")
            else:
                S.wait_lg(f"b{j}_{s}")
                S.barrier(f"W{j+1}")
                if j < 10: g2_reads(S, j+1, 0, st ^ 1, f"b{j+1}_0")
            for lc in range(2):
                acc = ACC2 + 16*lc
                c = "0" if f == 0 else vr(acc, 16)
                S(f"v_mfma_f32_32x32x16_bf16 {vr(acc,16)}, {vr(HR+4*(f % RD),4)}, {vr(BF2[st]+4*lc,4)}, {c}")
            if f + RD < 43: h_load(S, f + RD)
            if f + RD == 43: y_loads(S)
            f += 1; st ^= 1

def final_C(S):
    S(f"s_lshl_b32 s{sA}, s{sWave}, 12")
    S(f"s_add_u32 s{sA}, s{sA}, {XCH}")
    S(f"v_add_u32 v33, s{sA}, v2")
    for q in range(4):
        S.lds(f"ds_write_b128 v33, {vr(ACC2+16+4*q,4)} offset:{q*1024}", "xw")
    S.wait_lg_all()
    S.barrier("FX")
    S(f"s_xor_b32 s{sA}, s{sWave}, 2")
    S(f"s_lshl_b32 s{sA}, s{sA}, 12")
    S(f"s_add_u32 s{sA}, s{sA}, {XCH}")
    S(f"v_add_u32 v33, s{sA}, v2")
    for q in range(4):
        S.lds(f"ds_read_b128 {vr(PR+4*q,4)}, v33 offset:{q*1024}", "xr")
    S.wait_vm("y")
    S(f"s_mov_b32 s{sRetry}, 0")
    S("L_y_chk:")
    for k in range(16):
        S(f"v_xor_b32 v34, s{sTagLo}, v{YR+k}")
        if k == 0: S("v_mov_b32 v35, v34")
        else: S("v_or_b32 v35, v35, v34")
    S(f"""
    v_and_b32 v35, 0xffff, v35
    v_cmp_ne_u32 vcc, 0, v35
    s_cbranch_vccz L_y_ok
    s_add_u32 s{sRetry}, s{sRetry}, 1
    s_cmp_ge_u32 s{sRetry}, 4096
    s_cbranch_scc1 L_y_ok
    """)
    y_loads(S, tag=False)
    S("s_waitcnt vmcnt(0)")
    S("s_branch L_y_chk")
    S("L_y_ok:")
    S.wait_vm("b2")
    S(f"v_lshlrev_b32 v{B2R}, 16, v{B2R}")
    S.wait_lg("xr")
    for k in range(16):
        S(f"v_and_b32 v{YR+k}, 0xffff0000, v{YR+k}")
        S(f"v_add_f32 v{ACC2+k}, v{ACC2+k}, v{PR+k}")
        S(f"v_add_f32 v{YR+k}, v{YR+k}, v{B2R}")
        S(f"v_fma_f32 v{ACC2+k}, v{ACC2+k}, s5, v{YR+k}")
    S(f"""
    s_and_b32 s{sA}, s{sWave}, 1
    s_mul_i32 s{sA}, s{sA}, {32*TTROW}
    s_lshr_b32 s{sB}, s{sWave}, 1
    s_lshl_b32 s{sB}, s{sB}, 7
    s_add_u32 s{sA}, s{sA}, s{sB}
    s_add_u32 s{sA}, s{sA}, {TT}
    v_lshrrev_b32 v33, 5, v0
    v_mul_u32_u24 v33, {4*TTROW}, v33
    v_and_b32 v34, 31, v0
    v_lshl_add_u32 v33, v34, 2, v33
    v_add_u32 v33, s{sA}, v33
    """)
    for k in range(16):
        S.lds(f"ds_write_b32 v33, v{ACC2+k} offset:{(8*(k >> 2) + (k & 3))*TTROW}", "tw")
    S.wait_lg_all()

def final_all(S):
    S.barrier("FT")
    S(f"""
    v_lshrrev_b32 v33, 3, v1
    v_mul_u32_u24 v33, {TTROW}, v33
    v_and_b32 v34, 7, v1
    v_lshl_add_u32 v33, v34, 5, v33
    v_add_u32 v33, {TT}, v33
    """)
    S.lds("ds_read_b128 v[40:43], v33", "tr")
    S.lds("ds_read_b128 v[44:47], v33 offset:16", "tr")
    S.wait_vm("xt")
    for j in range(4):
        S(f"v_lshlrev_b32 v{48+2*j}, 16, v{XT+j}")
        S(f"v_and_b32 v{49+2*j}, 0xffff0000, v{XT+j}")
    S.wait_lg_all()
    for j in range(8): S(f"v_add_f32 v{40+j}, v{40+j}, v{48+j}")
    for j in range(4): S(f"v_cvt_pk_bf16_f32 v{48+j}, v{40+2*j}, v{41+2*j}")
    S.vmem(f"buffer_store_dwordx4 v[48:51], v30, {SOUT}, 0 offen", "out")

LOG2E = 1.4426950408889634
L_HI = struct.unpack("<f", struct.pack("<I", 0x3FB8AA00))[0]
L_LO = LOG2E - L_HI
CC, Z1, Z2, Z4, Z8, Z128 = 16, 18, 20, 22, 24, 26
PA, PB = 28, 30
RR = 40
CV = 80
BE = 96
AE = 112
DD = 128
WA = 144
RA = 152
DP = 172
SIGH = 95

def cmul(S, d, a, b):
    S(f"v_pk_mul_f32 {vr(d,2)}, {vr(a,2)}, {vr(b,2)} op_sel_hi:[0,1]")
    S(f"v_pk_fma_f32 {vr(d,2)}, {vr(a,2)}, {vr(b,2)}, {vr(d,2)} op_sel:[1,1,0] op_sel_hi:[1,0,1] neg_lo:[1,0,0]")

def zpow(S, d, p):
    S(f"v_mul_f32 v34, {f32(p)}, v14")
    S(f"v_mul_f32 v35, {f32(p)}, v15")
    S("v_exp_f32 v34, v34")
    S("v_fract_f32 v35, v35")
    S("v_cos_f32 v36, v35")
    S("v_sin_f32 v37, v35")
    S(f"v_mul_f32 v{d}, v34, v36")
    S(f"v_mul_f32 v{d+1}, v34, v37")

def param_loads(S, base=4):
    S(f"""
    s_sub_u32 s{sHW}, s{sWave}, {base}
    s_lshr_b32 s{sCH}, s{sHW}, 1
    s_and_b32 s{sNH}, s{sHW}, 1
    s_add_u32 s{sA}, s{sD0}, s{sCH}
    s_lshl_b32 s{sB}, s{sA}, 7
    s_lshl_b32 s{sC}, s{sNH}, 6
    s_add_u32 s{sB}, s{sB}, s{sC}
    v_add_u32 v33, s{sB}, v0
    v_lshlrev_b32 v33, 1, v33
    s_lshl_b32 s{sA}, s{sA}, 1
    v_mov_b32 v34, s{sA}
    """)
    if OPT.fine: stamp(S, 26)
    for k, s in enumerate((sAre, sAim, sBre, sBim, sCre, sCim)):
        S.vmem(f"global_load_ushort v{160+k}, v33, {sp(s)}", "par")
        if OPT.fine and k == 0: S("s_nop 7"); S("s_nop 7"); S("s_nop 7"); S("s_nop 7"); S("s_waitcnt lgkmcnt(0)"); stamp(S, 27)
        if OPT.fine and k == 3: S("s_waitcnt lgkmcnt(0)"); stamp(S, 28)
    S.vmem(f"global_load_ushort v166, v34, {sp(sLdt)}", "par")
    S.vmem(f"global_load_ushort v167, v34, {sp(sDsk)}", "par")

def code_prefetch(S):
    S(f"""
    s_lshl_b32 s{sA}, s{sI}, 2
    s_add_u32 s{sA}, s{sA}, s{sHW}
    s_and_b32 s{sA}, s{sA}, 31
    s_lshl_b32 s{sA}, s{sA}, 10
    s_min_u32 s{sA}, s{sA}, L_end-{KNAME}-1024
    s_getpc_b64 {sp(sP0)}
    L_pc:
    s_sub_u32 s{sP0}, s{sP0}, L_pc-{KNAME}
    s_subb_u32 s{sP0+1}, s{sP0+1}, 0
    v_add_u32 v35, s{sA}, v2
    """)
    S.vmem(f"global_load_dwordx4 v[168:171], v35, {sp(sP0)}", "pref")

def write_tile(S):
    for i in range(8):
        S.lds(f"ds_write2st64_b32 v{WA+i}, v{CV+i}, v{CV+8+i} offset0:{i} offset1:{i+8}", "ew")

def read_frags(S, dst, tag):
    for s in range(4):
        S.lds(f"ds_read_b128 {vr(dst+4*s,4)}, v{RA+s}", tag)

def kgen_atoms(S):
    S.wait_vm("par")
    for k in range(8): S(f"v_lshlrev_b32 v{160+k}, 16, v{160+k}")
    S(f"""
    v_mul_f32 v34, {f32(L_HI)}, v166
    v_mul_f32 v35, {f32(L_LO*0.6931471805599453)}, v166
    v_exp_f32 v34, v34
    s_nop 0
    v_fmac_f32 v34, v34, v35
    v_cvt_pk_bf16_f32 v34, v34, v34
    v_and_b32 v34, 0xffff0000, v34
    v_mul_f32 v14, v34, v160
    v_mul_f32 v15, v34, v161
    v_mul_f32 v14, {f32(LOG2E)}, v14
    v_mul_f32 v15, {f32(0.15915494309189535)}, v15
    v_mul_f32 v162, v34, v162
    v_mul_f32 v163, v34, v163
    """)
    cmul(S, CC, 164, 162)
    S(f"v_mul_f32 v38, v{CC}, v{CC}")
    S(f"v_fmac_f32 v38, v{CC+1}, v{CC+1}")
    wave_max(S, 38, sA)
    S(f"""
    v_mov_b32 v38, {f32(1e-36)}
    v_max_f32 v38, s{sA}, v38
    v_rsq_f32 v39, v38
    s_nop 0
    v_mul_f32 v38, v38, v39
    v_readfirstlane_b32 s{SIGH}, v38
    v_mul_f32 v{RR}, v{CC}, v39
    v_mul_f32 v{RR+1}, v{CC+1}, v39
    """)
    yield
    S(f"""
    s_lshl_b32 s{sA}, s{sHW}, 12
    s_add_u32 s{sA}, s{sA}, {ESCR}
    v_lshlrev_b32 v33, 2, v0
    """)
    for i in range(8):
        S(f"v_xor_b32 v{WA+i}, {32*i}, v33")
        S(f"v_add_u32 v{WA+i}, s{sA}, v{WA+i}")
    S(f"""
    v_and_b32 v33, 15, v0
    v_lshrrev_b32 v34, 4, v0
    v_and_b32 v35, 7, v33
    v_lshlrev_b32 v35, 1, v35
    v_xor_b32 v35, v35, v34
    v_lshlrev_b32 v35, 4, v35
    v_lshl_add_u32 v35, v33, 8, v35
    """)
    for s in range(4):
        S(f"v_xor_b32 v{RA+s}, {64*s}, v35")
        S(f"v_add_u32 v{RA+s}, s{sA}, v{RA+s}")
    yield
    zpow(S, Z1, 1); zpow(S, Z8, 8)
    yield
    zpow(S, Z128, 128)
    cmul(S, Z2, Z1, Z1); cmul(S, Z4, Z2, Z2)
    yield
    S(f"v_mov_b32 v{CV}, 0x00003c00")
    S(f"v_cvt_pk_f16_f32 v{CV+1}, v{Z8}, v{Z8+1}")
    cur = Z8
    for j in range(2, 16):
        nxt = PA if cur != PA else PB
        cmul(S, nxt, cur, Z8)
        S(f"v_cvt_pk_f16_f32 v{CV+j}, v{nxt}, v{nxt+1}")
        cur = nxt
        if j == 8: yield
    write_tile(S)
    read_frags(S, BE, "be")
    yield
    for i in range(1, 17):
        cmul(S, RR+2*i, RR+2*(i-1), Z128)
        if i == 8: yield
    yield
    def put(row, reg):
        S(f"v_cvt_pk_f16_f32 v{CV+row}, v{reg}, -v{reg+1}")
    def chain(row0, start, mult, n):
        put(row0, start)
        cur = start
        for j in range(1, n):
            nxt = PA if cur != PA else PB
            cmul(S, nxt, cur, mult)
            put(row0+j, nxt)
            cur = nxt
    def tile_out(t):
        write_tile(S)
        read_frags(S, AE + 16*(t & 1)*0, f"ae{t}")
    def tile_mm(t):
        S.wait_lg(f"ae{t}")
        for s in range(4):
            c = "0" if s == 0 else vr(DD+4*t, 4)
            S(f"v_mfma_f32_16x16x32_f16 {vr(DD+4*t,4)}, {vr(AE+4*s,4)}, {vr(BE+4*s,4)}, {c}")
    chain(0, RR, Z1, 8); yield
    chain(8, RR+2, Z1, 8)
    tile_out(0); yield
    chain(0, RR+4, Z2, 4); chain(4, RR+6, Z2, 4); yield
    for k in range(4): chain(8+2*k, RR+8+2*k, Z4, 2)
    S.wait_lg("be")
    tile_mm(0)
    tile_out(1); yield
    for i in range(8): put(i, RR+16+2*i)
    put(8, RR+32)
    for i in range(9, 16): S(f"v_mov_b32 v{CV+i}, 0")
    tile_mm(1)
    tile_out(2); yield
    tile_mm(2)
    if OPT.allwrite:
        S(f"s_lshl_b32 s{sA}, s{sHW}, 12")
        S(f"s_add_u32 s{sA}, s{sA}, {ESCR}")
        S(f"v_add_u32 v33, s{sA}, v2")
        S(f"v_mov_b32 v34, s{SIGH}")
        S(f"v_mov_b32 v35, s{sA}")
        for t in range(3):
            S.lds(f"ds_write_b128 v33, {vr(DD+4*t,4)} offset:{t*1024}", "dw")
        S.lds(f"ds_write_b32 v35, v34 offset:3072", "dw")
        yield "DX"
        return
    S(f"s_cmp_eq_u32 s{sNH}, 1")
    S(f"s_cbranch_scc0 L_kx")
    S(f"v_mov_b32 v34, s{SIGH}")
    S(f"s_mul_i32 s{sA}, s{sCH}, 8192")
    S(f"s_add_u32 s{sA}, s{sA}, {ESCR + 4096}")
    S(f"v_add_u32 v33, s{sA}, v2")
    S(f"v_mov_b32 v35, s{sA}")
    save = (list(S.lg), S.lg_done)
    for t in range(3):
        S(f"ds_write_b128 v33, {vr(DD+4*t,4)} offset:{t*1024}")
    S(f"ds_write_b32 v35, v34 offset:3072")
    S("L_kx:")
    S("s_waitcnt lgkmcnt(0)"); S.lg_done = len(S.lg)
    yield "DX"

def kgen_zero(S):
    S(f"""
    s_mul_i32 s{sA}, s{sCH}, {KCSZ}
    s_add_u32 s{sA}, s{sA}, {KC}
    v_mov_b32 v34, 0
    v_mov_b32 v35, 0
    v_mov_b32 v36, 0
    v_mov_b32 v37, 0
    v_add_u32 v33, s{sA}, v2
    """)
    S(f"s_lshl_b32 s{sB}, s{sNH}, 10")
    S(f"v_add_u32 v33, s{sB}, v33")
    S.lds("ds_write_b128 v33, v[34:37]", "z")
    S(f"v_cmp_gt_u32 vcc, {164-128}, v0")
    S(f"s_cmp_eq_u32 s{sNH}, 0")
    S(f"s_cselect_b64 {sp(sP0)}, -1, 0")
    S(f"s_and_b64 exec, vcc, {sp(sP0)}")
    S.lds("ds_write_b128 v33, v[34:37] offset:2048", "z")
    S("s_mov_b64 exec, -1")

def ut_zero(S):
    S(f"""
    s_mul_i32 s{sA}, s{sCH}, {UTSZ}
    s_add_u32 s{sA}, s{sA}, {UT}
    v_mov_b32 v34, 0
    v_mov_b32 v35, 0
    v_mov_b32 v36, 0
    v_mov_b32 v37, 0
    v_add_u32 v33, s{sA}, v2
    v_cmp_gt_u32 vcc, 34, v0
    s_mov_b64 exec, vcc
    """)
    S.lds("ds_write_b128 v33, v[34:37]", "z")
    S(f"v_cmp_gt_u32 vcc, 2, v0")
    S("s_mov_b64 exec, vcc")
    S.lds(f"ds_write_b128 v33, v[34:37] offset:{(272+2048)*2}", "z")
    S("s_mov_b64 exec, -1")

def kgen_combine(S):
    S(f"s_cmp_eq_u32 s{sNH}, 0")
    S(f"s_cbranch_scc0 L_kc")
    save = (list(S.lg), S.lg_done)
    S(f"""
    s_mul_i32 s{sA}, s{sCH}, 8192
    s_add_u32 s{sA}, s{sA}, {ESCR + 4096}
    v_add_u32 v33, s{sA}, v2
    v_mov_b32 v35, s{sA}
    """)
    for t in range(3):
        S(f"ds_read_b128 {vr(DP+4*t,4)}, v33 offset:{t*1024}")
    S("ds_read_b32 v38, v35 offset:3072")
    S("s_waitcnt lgkmcnt(0)")
    S(f"""
    v_mov_b32 v39, s{SIGH}
    v_and_b32 v34, 0x7fffffff, v167
    v_mul_f32 v34, {f32(1/1024)}, v34
    v_max3_f32 v34, v34, v38, v39
    v_rcp_f32 v35, v34
    s_nop 0
    v_mul_f32 v38, v38, v35
    v_mul_f32 v39, v39, v35
    v_mul_f32 v36, v167, v35
    s_lshl_b32 s{sA}, s{sCH}, 2
    s_add_u32 s{sA}, s{sA}, {MISC}
    v_mov_b32 v37, s{sA}
    ds_write_b32 v37, v34
    """)
    for k in range(12):
        S(f"v_mul_f32 v{DD+k}, v39, v{DD+k}")
        S(f"v_fmac_f32 v{DD+k}, v38, v{DP+k}")
    S(f"""
    v_cmp_eq_u32 vcc, 0, v0
    s_nop 1
    v_cndmask_b32 v36, 0, v36, vcc
    v_add_f32 v{DD}, v{DD}, v36
    s_mul_i32 s{sA}, s{sCH}, {KCSZ}
    s_add_u32 s{sA}, s{sA}, {KC}
    v_and_b32 v33, 15, v0
    v_lshrrev_b32 v34, 4, v0
    """)
    T0, T1, T2 = DD, DD+4, DD+8
    S(f"v_cvt_pk_f16_f32 v40, v{T1}, v{T1+1}")
    S(f"v_cvt_pk_f16_f32 v41, v{T1+2}, v{T1+3}")
    S(f"v_cvt_pk_f16_f32 v42, v{T2}, v{T2+1}")
    S(f"v_cvt_pk_f16_f32 v43, v{T2+2}, v{T2+3}")
    S(f"v_cvt_pk_f16_f32 v44, v{T0+3}, v{T0+2}")
    S(f"v_cvt_pk_f16_f32 v45, v{T0+1}, v{T0}")
    def w16(addr, reg, hi, off):
        S(f"ds_write_b16{'_d16_hi' if hi else ''} v{addr}, v{reg} offset:{off}")
    S(f"""
    v_lshlrev_b32 v35, 8, v34
    v_lshl_add_u32 v35, v33, 3, v35
    v_sub_u32 v35, {1059 - 5 - 128}, v35
    v_lshlrev_b32 v35, 1, v35
    v_add_u32 v35, s{sA}, v35
    v_cmp_le_u32 vcc, 32, v0
    s_mov_b64 exec, vcc
    """)
    for pair, (reg) in enumerate((40, 41)):
        o = 256*(1 - pair)
        for e in range(8):
            w16(35, reg, e < 3, o + 2*e)
    S(f"""
    s_mov_b64 exec, -1
    v_lshlrev_b32 v35, 7, v34
    v_lshl_add_u32 v35, v33, 3, v35
    v_sub_u32 v35, {1059 - 6 - 256}, v35
    v_lshlrev_b32 v35, 1, v35
    v_add_u32 v35, s{sA}, v35
    s_mov_b32 exec_hi, 0
    """)
    seq = [(41, True), (41, False), (41, False), (41, False), (40, True), (40, False), (40, False), (40, False)]
    for e, (reg, hi) in enumerate(seq): w16(35, reg, hi, 2*e)
    S(f"""
    v_lshrrev_b32 v36, 1, v33
    v_lshl_add_u32 v36, v34, 5, v36
    v_and_b32 v37, 1, v33
    v_mul_u32_u24 v38, {SEC_O - SEC_E - 2}, v37
    v_sub_u32 v36, {68 - 24}, v36
    v_lshlrev_b32 v36, 1, v36
    v_add3_u32 v36, v36, v38, s{sA}
    """)
    for r, (reg, hi) in enumerate(((42, False), (42, True), (43, False), (43, True))):
        w16(36, reg, hi, SEC_E + 2*(24 - 8*r))
    S("s_mov_b64 exec, -1")
    S(f"""
    v_readlane_b32 s{sB}, v42, 0
    v_readlane_b32 s{sC}, v42, 32
    v_lshlrev_b32 v35, 1, v0
    v_add_u32 v35, s{sA}, v35
    v_mov_b32 v36, s{sB}
    v_mov_b32 v37, 0
    v_mov_b32 v38, s{sC}
    s_mov_b64 exec, 0x7f
    ds_write_b16 v35, v36 offset:{2*(1059-1028)}
    s_mov_b64 exec, 1
    ds_write_b16 v35, v37 offset:{SEC_E + 2*68}
    ds_write_b16 v35, v38 offset:{SEC_E + 2*4}
    s_mov_b64 exec, -1
    """)
    S(f"""
    v_lshrrev_b32 v35, 1, v34
    v_lshlrev_b32 v35, 7, v35
    v_lshl_add_u32 v35, v33, 3, v35
    v_and_b32 v36, 1, v34
    v_lshl_add_u32 v35, v36, 2, v35
    v_sub_u32 v35, 1056, v35
    v_lshlrev_b32 v35, 1, v35
    v_add_u32 v35, s{sA}, v35
    ds_write_b64 v35, v[44:45]
    L_kc:
    s_waitcnt lgkmcnt(0)
    """)
    S.lg_done = len(S.lg)

def kgen_build(S):
    S(f"""
    s_mul_i32 s{sA}, s{sCH}, {KCSZ}
    s_add_u32 s{sA}, s{sA}, {KC}
    s_lshl_b32 s{sB}, s{sNH}, 10
    s_add_u32 s{sA}, s{sA}, s{sB}
    v_add_u32 v33, s{sA}, v2
    """)
    def rnd(off, tag):
        S.lds(f"ds_read_b128 v[40:43], v33 offset:{off}", tag)
        S.lds(f"ds_read_b64 v[44:45], v33 offset:{off+16}", tag)
        S.wait_lg(tag)
        for i in range(4): S(f"v_alignbit_b32 v{48+i}, v{41+i}, v{40+i}, 16")
        for i in range(4): S(f"v_alignbit_b32 v{52+i}, v{42+i}, v{41+i}, 16")
        S.lds(f"ds_write_b128 v33, v[48:51] offset:{off+KCOPY}", "bw")
        S.lds(f"ds_write2_b32 v56, v41, v42 offset0:0 offset1:1", "bw")
        S.lds(f"ds_write2_b32 v56, v43, v44 offset0:2 offset1:3", "bw")
        S.lds(f"ds_write_b128 v33, v[52:55] offset:{off+3*KCOPY}", "bw")
    S(f"v_add_u32 v56, {2*KCOPY}, v33")
    rnd(0, "br0")
    S(f"v_cmp_gt_u32 vcc, {162-128}, v0")
    S(f"s_cmp_eq_u32 s{sNH}, 0")
    S(f"s_cselect_b64 {sp(sP0)}, -1, 0")
    S(f"s_and_b64 exec, vcc, {sp(sP0)}")
    S(f"s_cbranch_execz L_kb")
    S(f"v_add_u32 v56, 2048, v56")
    save = (list(S.lg), S.lg_done)
    S("ds_read_b128 v[40:43], v33 offset:2048")
    S("ds_read_b64 v[44:45], v33 offset:2064")
    S("s_waitcnt lgkmcnt(0)")
    for i in range(4): S(f"v_alignbit_b32 v{48+i}, v{41+i}, v{40+i}, 16")
    for i in range(4): S(f"v_alignbit_b32 v{52+i}, v{42+i}, v{41+i}, 16")
    S(f"ds_write_b128 v33, v[48:51] offset:{2048+KCOPY}")
    S("ds_write2_b32 v56, v41, v42 offset0:0 offset1:1")
    S("ds_write2_b32 v56, v43, v44 offset0:2 offset1:3")
    S(f"ds_write_b128 v33, v[52:55] offset:{2048+3*KCOPY}")
    S("L_kb:")
    S("s_mov_b64 exec, -1")
    S.wait_lg_all()

XN = 192
def xnt_addr(S):
    S(f"""
    v_subrev_u32 v190, 256, v1
    v_lshrrev_b32 v33, 2, v190
    v_lshlrev_b32 v33, 14, v33
    v_and_b32 v34, 3, v190
    v_lshl_add_u32 v191, v34, 4, v33
    s_lshl_b32 s{sA}, s{sD0}, 5
    s_add_u32 s{sXoff}, s{sA}, {WS_XNT}
    """)
def xnt_loads(S, tag=True):
    for k in range(4):
        S(f"s_add_u32 s{sA}, s{sXoff}, {k*64*16384}")
        txt = f"buffer_load_dwordx4 {vr(XN+4*k,4)}, v191, {SWS}, s{sA} offen sc1"
        if tag: S.vmem(txt, "xnt")
        else: S(txt)

def xnt_finish(S):
    S.wait_vm("xnt")
    S(f"s_mov_b32 s{sRetry}, 0")
    S("L_u_chk:")
    for k in range(16):
        S(f"v_xor_b32 v34, s{sTagHi}, v{XN+k}")
        if k == 0: S("v_mov_b32 v35, v34")
        else: S("v_or_b32 v35, v35, v34")
    S(f"""
    v_and_b32 v35, 0xffff0000, v35
    v_cmp_ne_u32 vcc, 0, v35
    s_cbranch_vccz L_u_ok
    s_add_u32 s{sRetry}, s{sRetry}, 1
    s_cmp_ge_u32 s{sRetry}, 4096
    s_cbranch_scc1 L_u_ok
    """)
    xnt_loads(S, tag=False)
    S("s_waitcnt vmcnt(0)")
    S("s_branch L_u_chk")
    S("L_u_ok:")
    S(f"""
    v_lshrrev_b32 v33, 2, v190
    v_lshlrev_b32 v33, 4, v33
    v_and_b32 v34, 1, v190
    v_lshl_add_u32 v33, v34, 3, v33
    v_bfe_u32 v34, v190, 1, 1
    v_mul_u32_u24 v34, {UTSZ}, v34
    v_add3_u32 v33, v33, v34, s{sWoff}
    s_mov_b32 s{sA}, 0x05040100
    """)
    for k in range(4):
        b = XN + 4*k
        S(f"v_perm_b32 v{b}, v{b+1}, v{b}, s{sA}")
        S(f"v_perm_b32 v{b+1}, v{b+3}, v{b+2}, s{sA}")
        S.lds(f"ds_write_b64 v33, {vr(b,2)} offset:{k*1024}", "uw")
    S.wait_lg_all()

def w2_setup(S):
    fake = f"s_cmp_eq_u32 s{sD}, 384\n s_cselect_b32 s{sD}, 256, s{sD}" if OPT.fakej3 else ""
    S(f"""
    v_lshrrev_b32 v33, 3, v0
    v_lshlrev_b32 v33, 10, v33
    v_and_b32 v34, 7, v0
    v_bfe_u32 v35, v0, 4, 1
    v_lshlrev_b32 v35, 2, v35
    v_xor_b32 v34, v34, v35
    v_lshl_add_u32 v189, v34, 4, v33
    s_lshr_b32 s{sA}, s{sHW}, 1
    s_and_b32 s{sB}, s{sHW}, 1
    s_mul_i32 s{sC}, s{sA}, {688*1024}
    s_lshl_b32 s{sD}, s{sB}, 15
    s_add_u32 s{sC}, s{sC}, s{sD}
    s_lshl_b32 s{sD}, s{sC2}, 1
    {fake}
    s_add_u32 s{sH0}, s{sC}, s{sD}
    s_lshl_b32 s{sA}, s{sA}, 13
    s_lshl_b32 s{sB}, s{sB}, 12
    s_add_u32 s{sH1}, s{sA}, s{sB}
    """)
def w2_dma(S, j):
    S(f"s_add_u32 s{sA}, s{sH0}, {j*65536}")
    for q in range(4):
        S(f"s_add_u32 m0, s{sH1}, {slot2(j) + q*1024}")
        S(f"s_add_u32 s{sB}, s{sA}, {q*8192}")
        S.vmem(f"buffer_load_dwordx4 v189, {SW2}, s{sB} offen lds", f"c{j}")

def mid_dma(S, c):
    S(f"s_lshl_b32 s{sF}, s{sHW}, 2")
    for q in range(4): dma_x(S, c, sF, q, f"x{c}")
    dma_w(S, None, c, sHW, f"x{c}")

def dump_lds(S, off, nbytes, wsoff, stride):
    S(f"s_mul_i32 s{sA}, s2, {stride}")
    S(f"s_add_u32 s{sA}, s{sA}, {wsoff}")
    S(f"v_lshlrev_b32 v33, 4, v1")
    for k in range((nbytes + 4095)//4096):
        S(f"v_add_u32 v34, {off + 4096*k}, v33")
        S(f"ds_read_b128 v[36:39], v34")
        S("s_waitcnt lgkmcnt(0)")
        S(f"s_add_u32 s{sB}, s{sA}, {4096*k}")
        S.vmem(f"buffer_store_dwordx4 v[36:39], v33, {SWS}, s{sB} offen", "dump")
        S("s_waitcnt vmcnt(0)")
    S.vm_done = len(S.vm)

def build_C():
    S = Stream("C")
    S("L_roleC:")
    stamp(S, 0)
    first_loads(S)
    h_offsets(S)
    S(f"s_cmp_eq_u32 s{sG1ok}, 1")
    S(f"s_cselect_b32 s{sM}, s{sM}, 1000")
    h_clear(S)
    dma_setup(S)
    stamp(S, 10)
    initial_dma(S, "C")
    stamp(S, 11)
    nonce_setup(S)
    stamp(S, 12)
    p1_part1(S, "clear")
    stamp(S, 14)
    S.barrier("P1")
    stamp(S, 1)
    p1_part2(S)
    stamp(S, 15)
    gemm1(S)
    stamp(S, 3)
    g1_epilogue(S)
    stamp(S, 4)
    S.barrier("CONV")
    stamp(S, 5)
    if OPT.dumpK: dump_lds(S, KC, 2*KCSZ + 0, 0x1000000, 32768); dump_lds(S, UT, 2*UTSZ, 0x1000000 + 21504, 32768)
    conv(S)
    stamp(S, 6)
    gemm2(S)
    stamp(S, 8)
    final_C(S)
    final_all(S)
    stamp(S, 9)
    stamp_flush(S)
    S(f"s_or_b32 s{sA}, s2, s{sWave}")
    S(f"s_cmp_eq_u32 s{sA}, 0")
    S("s_cbranch_scc0 L_end")
    S(f"v_mov_b32 v33, s{sN}")
    S("s_mov_b64 exec, 1")
    S(f"buffer_store_dword v33, off, {SWS}, 0 sc1")
    S("s_branch L_end")
    return S

def build_H():
    S = Stream("H")
    S("L_roleH:")
    stamp(S, 0)
    first_loads(S)
    param_loads(S)
    code_prefetch(S)
    dma_setup(S)
    stamp(S, 10)
    initial_dma(S, "H")
    stamp(S, 11)
    nonce_setup(S)
    stamp(S, 12)
    p1_part1(S, "xrow")
    stamp(S, 14)
    S.barrier("P1")
    stamp(S, 1)
    p1_part2(S)
    kgen_zero(S)
    atoms = kgen_atoms(S)
    done = False
    def run(n):
        nonlocal done
        for _ in range(n):
            if done: return
            r = next(atoms)
            if r == "DX": done = True
    S.wait_vm("x0")
    S.barrier("G0")
    stamp(S, 2)
    plan = {0: 3, 1: 3, 2: 3, 3: 3, 4: 99}
    for c in range(8):
        if 1 <= c <= 4: mid_dma(S, c + 3)
        if c in plan: run(plan[c])
        if c == 4: stamp(S, 3)
        if c == 5:
            kgen_combine(S)
            xnt_addr(S)
            xnt_loads(S)
        if c == 6:
            kgen_build(S)
        if c == 7:
            S(f"s_mov_b32 s{sWoff}, {UT + 272*2}")
            ut_zero(S)
        if c + 1 <= 7:
            S.wait_vm(f"x{c+1}")
            if c + 1 in (1, 3): S.wait_vm(f"w{c+1}")
        S.wait_lg_all()
        stamp(S, 16 + c)
        S.barrier(f"G{c+1}")
    assert done
    stamp(S, 4)
    w2_setup(S)
    xnt_finish(S)
    stamp(S, 5)
    for j in range(3): w2_dma(S, j)
    S.barrier("CONV")
    for j in range(3, 7): w2_dma(S, j)
    xtile_load(S)
    stamp(S, 6)
    S.wait_vm("c0")
    S.barrier("W0")
    stamp(S, 7)
    for j in range(11):
        if j == 0:
            w2_dma(S, 7); w2_dma(S, 8)
        if j == 1: w2_dma(S, 9)
        if j == 2: w2_dma(S, 10)
        if j < 10: S.wait_vm(f"c{j+1}")
        S.barrier(f"W{j+1}")
    S.barrier("FX")
    final_all(S)
    stamp(S, 9)
    stamp_flush(S)
    S("s_branch L_end")
    return S

def generate():
    P = Stream("P")
    prologue(P)
    P(f"s_cmp_ge_u32 s{sWave}, 4")
    P("s_cbranch_scc1 L_roleH")
    C = build_C(); H = build_H()
    assert C.bars == H.bars, (C.bars, H.bars)
    lines = P.L + C.L + H.L + ["L_end:", "    s_endpgm"]
    lines, nn = hazard_pass(lines)
    head = open("cdna_kernels/" + KNAME[:-7] + ".s.ref").read().split("; Override launch")[0]
    txt = head + f"; @launch grid=(256,1,1) block=(512,1,1) lds={LDS_BYTES}\n"
    txt += f""".amdgcn_target "amdgcn-amd-amdhsa--gfx950"
.text
.globl {KNAME}
.p2align 8
.type {KNAME},@function
{KNAME}:
""" + "\n".join(lines) + f"""
.section .rodata,"a"
.p2align 6
.amdhsa_kernel {KNAME}
  .amdhsa_next_free_vgpr 256
  .amdhsa_next_free_sgpr 102
  .amdhsa_accum_offset 256
  .amdhsa_group_segment_fixed_size 0
  .amdhsa_kernarg_size 136
  .amdhsa_user_sgpr_count 2
  .amdhsa_user_sgpr_kernarg_segment_ptr 1
  .amdhsa_system_sgpr_workgroup_id_x 1
.end_amdhsa_kernel
"""
    return txt, nn

if __name__ == "__main__":
    out = sys.argv[1] if len(sys.argv) > 1 else "k.s"
    if "stamps" in sys.argv: OPT.stamps = True
    if "dumpK" in sys.argv: OPT.dumpK = True
    txt, nn = generate()
    open(out, "w").write(txt)
    print("written", out, "lines", txt.count("\n"), "nops inserted", nn)
```

```python
import sys
from gen import *
import gen as g1
from asmlib import Stream, hazard_pass

S1T = MISC + 64
B1T = S1T + 384
sXS, sWS, sXL, sWL = 82, 83, 98, 99
sHa = (85, 86, 95)

sHT, sSgn = 4, 5
def nonce_setup(S, crole=False):
    S.wait_vm("nonce")
    S(f"""
    v_readfirstlane_b32 s{sN}, v3
    s_not_b32 s{sN}, s{sN}
    s_bfe_u32 s{sA}, s{sN}, 0x1000f
    s_and_b32 s{sN}, s{sN}, 0x7fffffff
    s_lshl_b32 s{sA}, s{sA}, 31
    s_or_b32 s{sN}, s{sN}, s{sA}
    s_and_b32 s{sTagLo}, s{sN}, 0xffff
    s_and_b32 s{sTagHi}, s{sN}, 0xffff0000
    """)
    if crole:
        S(f"s_and_b32 s{sHT}, s{sN}, 0x80008000")
        S(f"s_or_b32 s{sSgn}, s{sA}, 0x3f800000")

def weave(S, mains, fills, lead=0, per=None):
    def put(x):
        if callable(x): x()
        else: S(x)
    fills = list(fills)
    for _ in range(min(lead, len(fills))): put(fills.pop(0))
    n = len(mains)
    for i, m in enumerate(mains):
        put(m)
        k = per if per is not None else -(-len(fills) // (n - i))
        if i == n - 1: k = len(fills)
        for _ in range(min(k, len(fills))): put(fills.pop(0))

def dma_setup2(S):
    S(f"""
    v_lshrrev_b32 v33, 3, v0
    v_lshlrev_b32 v33, 10, v33
    v_and_b32 v34, 7, v0
    v_lshrrev_b32 v35, 4, v0
    v_xor_b32 v36, v34, v35
    v_lshl_add_u32 v240, v36, 4, v33
    v_xor_b32 v36, 4, v36
    v_lshl_add_u32 v241, v36, 4, v33
    v_add_u32 v241, {8192-1024}, v241
    v_add_u32 v242, {2*(8192-1024)}, v240
    v_add_u32 v243, {2*(8192-1024)}, v241
    s_mov_b32 s{sA}, 0x15555556
    s_movk_i32 s{sB}, 2752
    """)
    for b in range(3):
        S(f"""
        v_add_u32 v33, {64*b}, v0
        v_mul_hi_u32 v34, v33, s{sA}
        v_mul_u32_u24 v35, 12, v34
        v_sub_u32 v35, v33, v35
        v_lshlrev_b32 v35, 4, v35
        v_mad_u32_u24 v{244+b}, v34, s{sB}, v35
        """)
        if b: S(f"v_subrev_u32 v{244+b}, {1024*b}, v{244+b}")
    S(f"""
    s_lshl_b32 s{sA}, s{sR0}, 10
    s_lshl_b32 s{sB}, s{sF0}, 1
    s_cmp_eq_u32 s{sG1ok}, 1
    s_cselect_b32 s{sA}, s{sA}, {OOB}
    s_cselect_b32 s{sB}, s{sB}, {OOB}
    s_lshl_b32 s{sC}, s{sWave}, 15
    s_add_u32 s{sXS}, s{sA}, s{sC}
    s_mul_i32 s{sC}, s{sWave}, {16*2752}
    s_add_u32 s{sWS}, s{sB}, s{sC}
    s_lshl_b32 s{sXL}, s{sWave}, 12
    s_mul_i32 s{sWL}, s{sWave}, 3072
    s_add_u32 s{sWL}, s{sWL}, 16384
    """)

sRot1, sRot2, sKc = 100, 101, 84
def rot_setup(S):
    S(f"""
    s_lshr_b32 s{sA}, s{sI}, 2
    s_and_b32 s{sB}, s{sI}, 3
    s_lshl_b32 s{sB}, s{sB}, 1
    s_add_u32 s{sA}, s{sA}, s{sB}
    s_and_b32 s{sRot1}, s{sA}, 7
    s_cmp_ge_u32 s{sA}, 10
    s_cselect_b32 s{sB}, 10, 0
    s_sub_u32 s{sRot2}, s{sA}, s{sB}
    """)
    if OPT.k3last:
        S(f"s_cmp_ge_u32 s{sA}, 7")
        S(f"s_cselect_b32 s{sB}, 7, 0")
        S(f"s_sub_u32 s{sRot1}, s{sA}, s{sB}")
    if OPT.norot or OPT.norot1: S(f"s_mov_b32 s{sRot1}, 0")
    if OPT.rot2j: S(f"s_lshr_b32 s{sRot2}, s{sI}, 2")
    if OPT.norot: S(f"s_mov_b32 s{sRot2}, 0")

def kc2_ops(j, dst):
    if j == 10: return [f"s_mov_b32 s{dst}, 10"]
    return [f"s_add_u32 s{dst}, s{sRot2}, {j}", f"s_cmp_ge_u32 s{dst}, 10", f"s_cselect_b32 s{sP1+1}, 10, 0",
            f"s_sub_u32 s{dst}, s{dst}, s{sP1+1}"]

def dma_chunk_ops(S, c):
    slot = (c % 4)*SLOT1; tag = f"d{c}"
    if not OPT.k3last:
        ops = [f"s_add_u32 s{sKc}, s{sRot1}, {c}", f"s_and_b32 s{sKc}, s{sKc}, 7"]
    elif c == 7:
        ops = [f"s_mov_b32 s{sKc}, 3"]
    else:
        ops = [f"s_add_u32 s{sKc}, s{sRot1}, {c}", f"s_cmp_ge_u32 s{sKc}, 7", f"s_cselect_b32 s{sA}, 7, 0", f"s_sub_u32 s{sKc}, s{sKc}, s{sA}",
               f"s_cmp_ge_u32 s{sKc}, 3", f"s_addc_u32 s{sKc}, s{sKc}, 0"]
    ops += [f"s_lshl_b32 s{sA}, s{sKc}, 7", f"s_add_u32 m0, s{sXL}, {slot}", f"s_add_u32 s{sA}, s{sA}, s{sXS}"]
    for q in range(4):
        ops.append(lambda q=q: S.vmem(f"buffer_load_dwordx4 v{240+q}, {SU}, s{sA} offen offset:{1024*q} lds", tag))
    ops += [f"s_mul_i32 s{sB}, s{sKc}, {64*2752}", f"s_add_u32 m0, s{sWL}, {slot}", f"s_add_u32 s{sB}, s{sB}, s{sWS}"]
    for b in range(3):
        ops.append(lambda b=b: S.vmem(f"buffer_load_dwordx4 v{244+b}, {SW1}, s{sB} offen offset:{1024*b} lds", tag))
    return ops

def emit(S, ops):
    for x in ops:
        if callable(x): x()
        else: S(x)

ACC = 64; S1R = 112; SEL = 116
FS = (120, 136, 152)
WLO, XLO, WHI, XHI = 24, 27, 31, 34

def g1_addr2(S):
    S(f"""
    v_and_b32 v40, 31, v0
    v_lshrrev_b32 v41, 5, v0
    v_bfe_u32 v42, v0, 1, 3
    v_xor_b32 v42, v42, v41
    v_lshlrev_b32 v42, 4, v42
    v_lshl_add_u32 v42, v40, 7, v42
    s_lshl_b32 s{sA}, s{sWave}, 12
    v_add_u32 v{XLO}, s{sA}, v42
    """)
    for s in range(1, 4): S(f"v_xor_b32 v{XLO+s}, {32*s}, v{XLO}")
    S(f"""
    v_bfe_u32 v42, v0, 2, 2
    v_lshl_add_u32 v42, v41, 3, v42
    v_mul_u32_u24 v42, 192, v42
    v_bfe_u32 v43, v0, 4, 1
    v_lshl_add_u32 v42, v43, 5, v42
    v_bfe_u32 v43, v0, 1, 1
    v_lshl_add_u32 v42, v43, 4, v42
    v_and_b32 v43, 1, v0
    v_lshl_add_u32 v42, v43, 3, v42
    v_add_u32 v42, 16384, v42
    """)
    for a in range(3):
        S(f"s_add_u32 s{sA}, s{sWave}, {a}")
        S(f"s_cmp_ge_u32 s{sA}, 3")
        S(f"s_cselect_b32 s{sB}, 3, 0")
        S(f"s_sub_u32 s{sA}, s{sA}, s{sB}")
        S(f"s_cmp_ge_u32 s{sA}, 3")
        S(f"s_cselect_b32 s{sB}, 3, 0")
        S(f"s_sub_u32 s{sA}, s{sA}, s{sB}")
        S(f"s_lshl_b32 s{sB}, s{sA}, 6")
        S(f"v_add_u32 v{WLO+a}, s{sB}, v42")
        S(f"s_lshr_b32 s{sC}, s{sR0}, 5")
        S(f"s_add_u32 s{sC}, s{sC}, s{sWave}")
        S(f"s_mul_i32 s{sC}, s{sC}, 86")
        S(f"s_lshr_b32 s{sD}, s{sF0}, 4")
        S(f"s_lshl_b32 s{sE}, s{sA}, 1")
        S(f"s_add_u32 s{sD}, s{sD}, s{sE}")
        S(f"s_add_u32 s{sC}, s{sC}, s{sD}")
        S(f"s_lshl_b32 s{sC}, s{sC}, 10")
        S(f"s_add_u32 s{sC}, s{sC}, {WS_H}")
        S(f"s_cmp_lt_u32 s{sD}, 86")
        S(f"s_cselect_b32 s{sHa[a]}, s{sC}, {OOB}")
        S(f"s_lshl_b32 s{sB}, s{sA}, 7")
        S(f"s_add_u32 s{sB}, s{sB}, {S1T}")
        S(f"v_lshl_add_u32 v{44+a}, v41, 4, s{sB}")
    for k in range(3): S(f"v_add_u32 v{WHI+k}, {2*SLOT1}, v{WLO+k}")
    for k in range(4): S(f"v_add_u32 v{XHI+k}, {2*SLOT1}, v{XLO+k}")
    S(f"""
    v_and_b32 v40, 15, v0
    v_bfe_u32 v41, v0, 4, 1
    v_cmp_eq_u32 vcc, v40, v41
    v_mov_b32 v42, 0x3f803f80
    v_cndmask_b32 v{SEL}, 0, v42, vcc
    v_mov_b32 v{SEL+1}, v{SEL}
    v_mov_b32 v{SEL+2}, v{SEL}
    v_mov_b32 v{SEL+3}, v{SEL}
    """)

def g1_read_ops(S, sg):
    c, s = divmod(sg, 4); st = FS[sg % 3]
    slot = c % 4; hi = slot >= 2; base = (slot & 1)*SLOT1
    W = WHI if hi else WLO; X = XHI if hi else XLO
    tag = f"g{sg}"; ops = []
    ops.append(lambda: S.lds(f"ds_read_b128 {vr(st+12,4)}, v{X+s} offset:{base}", tag))
    for a in range(3):
        for h in range(2):
            off = base + (16*s + 4*h)*192
            ops.append(lambda a=a, h=h, off=off: S.lds(f"ds_read_b64_tr_b16 {vr(st+4*a+2*h,2)}, v{W+a} offset:{off}", tag))
    return ops

STATR = 216
def stat_load(S, tag=True):
    txt = f"buffer_load_dwordx4 {vr(STATR,4)}, v47, {SWS}, s{sE} offen sc1"
    if tag: S.vmem(txt, "stat")
    else: S(txt)

def gemm1_v2(S):
    g1_addr2(S)
    S.wait_vm("d0")
    S.barrier("G0"); stamp(S, 2)
    emit(S, g1_read_ops(S, 0)); emit(S, g1_read_ops(S, 1))
    pend = []
    for c in range(OPT.pre, 4): pend += dma_chunk_ops(S, c)
    for sg in range(32):
        c, s = divmod(sg, 4); st = FS[sg % 3]
        if s == 2 and c < 7:
            S.wait_vm(f"d{c+1}")
            S.barrier(f"G{c+1}")
            if not OPT.wst: stamp(S, 16 + c)
            if 4 <= c + 3 <= 7 and c >= 1: pend = pend + dma_chunk_ops(S, c + 3)
        S.wait_lg(f"g{sg}")
        if sg == 31:
            S.barrier("G8")
        fills = []
        if sg + 2 < 32: fills += g1_read_ops(S, sg + 2)
        take = pend[:9]; pend = pend[9:]
        fills2 = list(take)
        if sg == 20:
            def ep():
                S(f"s_lshl_b32 s{sE}, s{sWave}, 5")
                S(f"s_add_u32 s{sE}, s{sE}, s{sR0}")
                S(f"s_lshl_b32 s{sE}, s{sE}, 4")
                S(f"s_add_u32 s{sE}, s{sE}, {WS_STATS}")
                S(f"v_and_b32 v47, 31, v0")
                S(f"v_lshlrev_b32 v47, 4, v47")
                stat_load(S)
            fills2.append(ep)
        mains = []
        for a in range(3):
            acc = ACC + 16*a
            cc = "0" if sg == 0 else vr(acc, 16)
            mains.append(f"v_mfma_f32_32x32x16_bf16 {vr(acc,16)}, {vr(st+4*a,4)}, {vr(st+12,4)}, {cc}")
        mains.insert(1, f"v_mfma_f32_16x16x32_bf16 {vr(S1R,4)}, {vr(st,4)}, {vr(SEL,4)}, {'0' if sg == 0 else vr(S1R,4)}")
        allf = fills + fills2
        weave(S, mains, allf)
    S(f"""
    v_lshrrev_b32 v42, 5, v0
    v_lshlrev_b32 v42, 4, v42
    v_sub_u32 v42, v44, v42
    v_and_b32 v41, 15, v0
    v_lshl_add_u32 v42, v41, 6, v42
    v_lshrrev_b32 v40, 4, v0
    v_lshl_add_u32 v42, v40, 4, v42
    v_cmp_gt_u32 vcc, 2, v41
    s_mov_b64 exec, vcc
    """)
    S.lds(f"ds_write_b128 v42, {vr(S1R,4)}", "s1w")
    S("s_mov_b64 exec, -1")
    S.wait_lg_all()
    S.barrier("G9")

def g1_epilogue2(S):
    SQ, BQ = 120, 168
    for a in range(3):
        for j in range(4):
            S.lds(f"ds_read_b128 {vr(SQ+16*a+4*j,4)}, v{44+a} offset:{32*j}", f"t{a}")
            S.lds(f"ds_read_b128 {vr(BQ+16*a+4*j,4)}, v{44+a} offset:{384+32*j}", f"t{a}")
    S.wait_vm("stat")
    S(f"s_mov_b32 s{sRetry}, 0")
    S("L_st_chk:")
    S(f"""
    v_xor_b32 v40, s{sN}, v{STATR+1}
    v_xor_b32 v41, s{sN}, v{STATR+3}
    v_or_b32 v40, v40, v41
    v_cmp_ne_u32 vcc, 0, v40
    s_cbranch_vccz L_st_ok
    s_add_u32 s{sRetry}, s{sRetry}, 1
    s_cmp_ge_u32 s{sRetry}, 4096
    s_cbranch_scc1 L_st_ok
    """)
    stat_load(S, tag=False)
    S("s_waitcnt vmcnt(0)")
    S("s_branch L_st_chk")
    S("L_st_ok:")
    m, r = STATR, STATR + 2
    n = 0
    for a in range(3):
        S.wait_lg(f"t{a}")
        for mm in range(2):
            base = 48 + 4*(n & 1); n += 1
            for q in range(2):
                j = 2*mm + q
                acc = ACC + 16*a + 4*j
                for h in range(2):
                    A = vr(acc+2*h, 2)
                    S(f"v_pk_fma_f32 {A}, {vr(SQ+16*a+4*j+2*h,2)}, {vr(m,2)}, {A} op_sel_hi:[1,0,1] neg_lo:[0,1,0] neg_hi:[0,1,0]")
                for h in range(2):
                    A = vr(acc+2*h, 2)
                    S(f"v_pk_fma_f32 {A}, {A}, {vr(r,2)}, {vr(BQ+16*a+4*j+2*h,2)} op_sel_hi:[1,0,1]")
                for e in range(4): S(f"v_max_f32 v{acc+e}, 0, v{acc+e}")
                for h in range(2):
                    A = vr(acc+2*h, 2)
                    S(f"v_pk_mul_f32 {A}, {A}, {A}")
                S(f"v_cvt_pk_bf16_f32 v{base+2*q}, v{acc}, v{acc+1}")
                S(f"v_cvt_pk_bf16_f32 v{base+2*q+1}, v{acc+2}, v{acc+3}")
            for e in range(4): S(f"v_or_b32 v{base+e}, s{sHT}, v{base+e}")
            S(f"v_permlane32_swap_b32 v{base}, v{base+2}")
            S(f"v_permlane32_swap_b32 v{base+1}, v{base+3}")
            off = f" offset:1024" if mm else ""
            S.vmem(f"buffer_store_dwordx4 {vr(base,4)}, v2, {SWS}, s{sHa[a]} offen{off} sc1", "hst")

def h_first_loads(S):
    S(f"s_sub_u32 s{sHW}, s{sWave}, 4")
    S(f"s_lshl_b32 s{sA}, s{sHW}, 1")
    S(f"s_add_u32 s{sA}, s{sA}, s{sT0}")
    S(f"s_lshl_b32 s{sA}, s{sA}, 10")
    S.vmem(f"buffer_load_dwordx4 v[4:7], v2, {SU}, s{sA} offen", "xrow")
    S.vmem(f"buffer_load_dwordx4 v[8:11], v2, {SU}, s{sA} offen offset:1024", "xrow")
    S.vmem(f"buffer_load_dword v3, off, {SWS}, 0 sc1", "nonce")

def h_clear2(S):
    S(f"""
    s_lshr_b32 s{sC}, s{sR0}, 5
    s_add_u32 s{sC}, s{sC}, s{sHW}
    s_mul_i32 s{sC}, s{sC}, 86
    s_lshr_b32 s{sD}, s{sF0}, 4
    s_add_u32 s{sC}, s{sC}, s{sD}
    s_lshl_b32 s{sC}, s{sC}, 10
    s_add_u32 s{sC}, s{sC}, {WS_H}
    s_cmp_eq_u32 s{sG1ok}, 1
    s_cselect_b32 s{sD}, s{sD}, 1000
    """)
    for j in range(4): S(f"v_mov_b32 v{12+j}, 0x80008000")
    for k in range(6):
        S(f"s_add_u32 s{sA}, s{sD}, {k}")
        S(f"s_cmp_lt_u32 s{sA}, 86")
        S(f"s_cselect_b32 s{sA}, s{sC}, {OOB}")
        if k >= 4:
            S(f"s_add_u32 s{sA}, s{sA}, 4096")
        S.vmem(f"buffer_store_dwordx4 v[12:15], v2, {SWS}, s{sA} offen offset:{(k % 4)*1024} sc1", "clear")

def p1_row(raw, x, t, sreg):
    L = []
    for j in range(4):
        L.append(f"v_lshlrev_b32 v{x+2*j}, 16, v{raw+j}")
        L.append(f"v_and_b32 v{x+2*j+1}, 0xffff0000, v{raw+j}")
    L += [f"v_add_f32 v{t}, v{x}, v{x+1}", f"v_add_f32 v{t+1}, v{x+2}, v{x+3}", f"v_add_f32 v{t+2}, v{x+4}, v{x+5}",
          f"v_add_f32 v{t+3}, v{x+6}, v{x+7}", f"v_add_f32 v{t}, v{t}, v{t+1}", f"v_add_f32 v{t+2}, v{t+2}, v{t+3}",
          f"v_add_f32 v{t}, v{t}, v{t+2}"]
    def red():
        o = [f"v_add_f32_dpp v{t}, v{t}, v{t} {m} row_mask:0xf bank_mask:0xf" for m in ("row_shr:1", "row_shr:2", "row_shr:4", "row_shr:8")]
        o.append(f"v_add_f32_dpp v{t}, v{t}, v{t} row_bcast:15 row_mask:0xa bank_mask:0xf")
        o.append(f"v_add_f32_dpp v{t}, v{t}, v{t} row_bcast:31 row_mask:0xc bank_mask:0xf")
        o.append(f"v_readlane_b32 s{sreg}, v{t}, 63")
        return o
    L += red()
    L.append(f"v_mov_b32 v{t+1}, {f32(1/512)}")
    L.append(f"v_mul_f32 v{t+1}, s{sreg}, v{t+1}")
    L.append(f"v_sub_f32 v{t+2}, v{x}, v{t+1}")
    L.append(f"v_mul_f32 v{t}, v{t+2}, v{t+2}")
    for j in range(1, 8):
        L.append(f"v_sub_f32 v{t+2+(j & 1)}, v{x+j}, v{t+1}")
        L.append(f"v_fmac_f32 v{t}, v{t+2+(j & 1)}, v{t+2+(j & 1)}")
    L += red()
    L += [f"v_cvt_pk_bf16_f32 v{t+4}, v{t+1}, v{t+1}", f"v_and_b32 v{t+4}, 0xffff0000, v{t+4}",
          f"v_mov_b32 v{t+2}, {f32(1/512)}", f"v_mul_f32 v{t+2}, s{sreg}, v{t+2}",
          f"v_cvt_pk_bf16_f32 v{t+2}, v{t+2}, v{t+2}", f"v_and_b32 v{t+2}, 0xffff0000, v{t+2}",
          f"v_add_f32 v{t+2}, {f32(1e-5)}, v{t+2}",
          f"v_cvt_pk_bf16_f32 v{t+2}, v{t+2}, v{t+2}", f"v_and_b32 v{t+2}, 0xffff0000, v{t+2}",
          f"v_sqrt_f32 v{t+3}, v{t+2}", f"v_rcp_f32 v{t+5}, v{t+3}",
          f"v_fma_f32 v{t+7}, -v{t+3}, v{t+3}, v{t+2}", f"v_mul_f32 v{t+5}, 0.5, v{t+5}", f"v_fmac_f32 v{t+3}, v{t+7}, v{t+5}",
          f"v_cvt_pk_bf16_f32 v{t+3}, v{t+3}, v{t+3}", f"v_and_b32 v{t+3}, 0xffff0000, v{t+3}",
          f"v_rcp_f32 v{t+6}, v{t+3}", f"v_fma_f32 v{t+7}, -v{t+3}, v{t+6}, 1.0", f"v_fmac_f32 v{t+6}, v{t+7}, v{t+6}",
          f"v_mul_f32 v{t+7}, v{t+4}, v{t+6}"]
    for j in range(8): L.append(f"v_fma_f32 v{x+j}, v{x+j}, v{t+6}, -v{t+7}")
    for j in range(4): L.append(f"v_cvt_pk_f16_f32 v{raw+j}, v{x+2*j}, v{x+2*j+1}")
    return L

TA, TB_ = 56, 64
def p1a(S):
    S.wait_vm("xrow")
    stamp(S, 13)
    A = p1_row(4, 40, TA, sA); B = p1_row(8, 48, TB_, sB)
    n = len(A)
    for i, (a, b) in enumerate(zip(A, B)):
        S(a); S(b)
        if i in (n//4, n//2, 3*n//4): yield
    S(f"s_mul_i32 s{sA}, s{sHW}, {2*P1ROW}")
    S(f"s_add_u32 s{sA}, s{sA}, {P1BUF}")
    S(f"v_add_u32 v16, s{sA}, v2")
    S.lds("ds_write_b128 v16, v[4:7]", "p1w")
    S.lds(f"ds_write_b128 v16, v[8:11] offset:{P1ROW}", "p1w")
    S(f"v_mov_b32 v230, v{TA+4}")
    S(f"v_mov_b32 v231, v{TA+6}")
    S(f"v_mov_b32 v232, v{TB_+4}")
    S(f"v_mov_b32 v233, v{TB_+6}")
    yield

def p1b(S):
    S(f"""
    v_cmp_eq_u32 vcc, 0, v0
    v_mov_b32 v225, s{sN}
    v_mov_b32 v227, s{sN}
    v_cndmask_b32 v224, v232, v230, vcc
    v_cndmask_b32 v226, v233, v231, vcc
    s_lshl_b32 s{sA}, s{sHW}, 1
    s_add_u32 s{sA}, s{sA}, s{sT0}
    s_lshl_b32 s{sA}, s{sA}, 4
    s_add_u32 s{sA}, s{sA}, {WS_STATS}
    s_mov_b64 exec, 3
    """)
    S.vmem(f"buffer_store_dwordx4 v[224:227], v2, {SWS}, s{sA} offen sc1", "statst")
    S("s_mov_b64 exec, -1")
    S(f"""
    v_subrev_u32 v190, 256, v1
    v_and_b32 v228, 1, v190
    v_mul_u32_u24 v228, {4*P1ROW}, v228
    v_and_b32 v229, 0xfe, v190
    v_add3_u32 v228, v228, v229, s{sP1}
    """)
    for k in range(4):
        for j in range(4):
            S.lds(f"ds_read_u16 v{208+4*k+j}, v228 offset:{j*P1ROW + 256*k}", f"p1r{k}")
    S(f"v_lshlrev_b32 v229, 4, v190")
    S(f"s_lshl_b32 s{sA}, s{sTB}, 14")
    S(f"s_add_u32 s{sA}, s{sA}, {WS_XNT}")
    for k in range(4):
        S.wait_lg(f"p1r{k}")
        for j in range(4):
            S(f"v_or_b32 v{208+4*k+j}, s{sTagHi}, v{208+4*k+j}")
        S(f"s_add_u32 s{sB}, s{sA}, {4096*k}")
        S.vmem(f"buffer_store_dwordx4 v[{208+4*k}:{211+4*k}], v229, {SWS}, s{sB} offen sc1", "xntst")

def b1_table(S):
    S(f"""
    v_lshlrev_b32 v33, 1, v0
    v_add_u32 v33, s{sF0}, v33
    v_min_u32 v33, 1374, v33
    v_lshlrev_b32 v33, 1, v33
    """)
    S.vmem(f"global_load_dword v188, v33, {sp(sB1)}", "b1")
def b1_table_write(S):
    S.wait_vm("b1")
    S(f"""
    v_lshlrev_b32 v34, 16, v188
    v_and_b32 v35, 0xffff0000, v188
    v_lshlrev_b32 v33, 3, v0
    v_add_u32 v33, {B1T}, v33
    v_cmp_gt_u32 vcc, 48, v0
    s_mov_b64 exec, vcc
    """)
    S.lds("ds_write_b64 v33, v[34:35]", "b1w")
    S("s_mov_b64 exec, -1")

def conv_wave(S, tiles, svals, pairs):
    UF = 64; DWF = 96; GFR = 128
    S.lds(f"ds_read_b32 v28, v27", "sig")
    wins = []
    for s in svals:
        for (name, Z, band, vf) in (("E", 24, BANDE, VF + 4*s), ("O", 16, BANDO, VF + 8 + 4*s)):
            for q in range(2): wins.append((name, Z, band, vf, s, q))
    for n, (name, Z, band, vf, s, q) in enumerate(wins):
        S.lds(f"ds_read_b128 {vr(UF+4*n,4)}, v24 offset:{528 + 512*(2*s+q) - 2*Z}", f"U{n}")
    gl = []
    for (cl, s, delta) in pairs:
        for (name, vf, sec) in (("E", VF + 4*s, SEC_E), ("O", VF + 8 + 4*s, SEC_O)):
            gl.append((cl, vf, sec + 32*(7 - delta)))
    gops = []
    for n, (cl, vf, off) in enumerate(gl):
        gops.append(lambda n=n, off=off: S.lds(f"ds_read_b64 {vr(GFR+4*n,2)}, v26 offset:{off}", f"G{n}"))
        gops.append(lambda n=n, off=off: S.lds(f"ds_read_b64 {vr(GFR+4*n+2,2)}, v26 offset:{off+32}", f"G{n}"))
    mains = []
    for n, (name, Z, band, vf, s, q) in enumerate(wins):
        def m(n=n, band=band):
            S.wait_lg(f"U{n}")
            S(f"v_mfma_f32_16x16x32_f16 {vr(DWF+4*n,4)}, {vr(UF+4*n,4)}, {vr(band,4)}, 0")
        mains.append(m)
    weave(S, mains, gops)
    kmax = lambda c: min(32, 8*c + 8)
    xi_hi = 8*tiles[-1]; xi_lo = min(8*c - kmax(c) for c in tiles)
    steps = list(range(xi_hi, xi_lo - 1, -1))
    D = 3
    def bops(i):
        xi = steps[i]
        return [lambda: S.lds(f"ds_read_b128 {vr(BRING+4*(i % 4),4)}, v24 offset:{64*(xi+8)}", f"s{i}")]
    def fops(kn, tag):
        return [lambda: S.lds(f"ds_read_b64 {vr(FK+4*kn,2)}, v25 offset:{64*(32-kn)}", tag),
                lambda: S.lds(f"ds_read_b64 {vr(FK+4*kn+2,2)}, v25 offset:{64*(32-kn)+8}", tag)]
    for n, (name, Z, band, vf, s, q) in enumerate(wins):
        S(f"v_cvt_pk_f16_f32 v{vf+2*q}, v{DWF+4*n}, v{DWF+4*n+1}")
        S(f"v_cvt_pk_f16_f32 v{vf+2*q+1}, v{DWF+4*n+2}, v{DWF+4*n+3}")
    first = set(); mains = []
    for n, (cl, vf, off) in enumerate(gl):
        def m(n=n, cl=cl, vf=vf, c=(cl in first)):
            S.wait_lg(f"G{n}")
            acc = CACC + 4*cl
            S(f"v_mfma_f32_16x16x32_f16 {vr(acc,4)}, {vr(vf,4)}, {vr(GFR+4*n,4)}, {vr(acc,4) if c else '0'}")
        first.add(cl); mains.append(m)
    pre = []
    for i in range(D): pre += fops(i, f"s{i}") + bops(i)
    weave(S, mains, pre)
    for i, xi in enumerate(steps):
        fills = []
        if i + D < len(steps):
            kn = i + D
            if kn <= 32: fills += fops(kn, f"s{i+D}")
            fills += bops(i + D)
        S.wait_lg(f"s{i}")
        mains = []
        for cl, c in enumerate(tiles):
            k = 8*c - xi
            if 0 <= k <= kmax(c):
                acc = CACC + 4*cl
                cc = vr(acc, 4) if cl in first else "0"
                first.add(cl)
                mains.append(f"v_mfma_f32_16x16x32_f16 {vr(acc,4)}, {vr(FK+4*k,4)}, {vr(BRING+4*(i % 4),4)}, {cc}")
        weave(S, mains, fills)

def g2_scalar_setup(S):
    S(f"""
    s_lshr_b32 s{sA}, s{sWave}, 1
    s_and_b32 s{sB}, s{sWave}, 1
    s_lshr_b32 s{sC}, s{sR2}, 5
    s_add_u32 s{sC}, s{sC}, s{sB}
    s_mul_i32 s{sC}, s{sC}, 86
    s_mul_i32 s{sD}, s{sA}, 43
    s_add_u32 s{sC}, s{sC}, s{sD}
    s_lshl_b32 s{sC}, s{sC}, 10
    s_add_u32 s{sH0}, s{sC}, {WS_H}
    """)

def early_h(S):
    for f in range(OPT.early): h_load2(S, f)

sY = (6, 7, 8, 9, 10)
YA = 249
def conv_cvt(S, tiles):
    S(f"""
    s_lshr_b32 s{sA}, s{sWave}, 1
    s_add_u32 s{sA}, s{sA}, s{sD0}
    s_lshl_b32 s{sA}, s{sA}, 13
    s_add_u32 s{sA}, s{sA}, {WS_Y}
    v_and_b32 v33, 15, v0
    v_lshrrev_b32 v34, 4, v0
    v_lshlrev_b32 v33, 6, v33
    v_lshl_add_u32 v{YA}, v34, 4, v33
    v_mov_b32 v34, 0xffff0000
    """)
    for n in range(5):
        if n < len(tiles): S(f"s_add_u32 s{sY[n]}, s{sA}, {tiles[n]*1024}")
        else: S(f"s_mov_b32 s{sY[n]}, {OOB}")
    for cl, c in enumerate(tiles):
        acc = CACC + 4*cl
        for j in range(4): S(f"v_mul_f32 v{acc+j}, v28, v{acc+j}")
        S(f"v_cvt_pk_bf16_f32 v35, v{acc}, v{acc+1}")
        S(f"v_cvt_pk_bf16_f32 v36, v{acc+2}, v{acc+3}")
        S(f"v_lshl_or_b32 v{acc}, v35, 16, s{sTagLo}")
        S(f"v_and_b32 v35, v34, v35")
        S(f"v_or_b32 v{acc+1}, s{sTagLo}, v35")
        S(f"v_lshl_or_b32 v{acc+2}, v36, 16, s{sTagLo}")
        S(f"v_and_b32 v36, v34, v36")
        S(f"v_or_b32 v{acc+3}, s{sTagLo}, v36")

def y_store(S, n):
    S.vmem(f"buffer_store_dwordx4 {vr(CACC+4*n,4)}, v{YA}, {SWS}, s{sY[n]} offen sc1", "yst")

def conv2(S):
    conv_setup(S)
    g2_scalar_setup(S)
    S(f"s_bitcmp1_b32 s{sWave}, 0")
    S(f"s_cbranch_scc1 L_convB")
    save_lg = (list(S.lg), S.lg_done); save_vm = (list(S.vm), S.vm_done)
    conv_wave(S, [0, 1, 2, 3, 4], [0], [(4, 0, 4)])
    early_h(S)
    if OPT.ylate: conv_cvt(S, [0, 1, 2, 3, 4])
    else: conv_store(S, [0, 1, 2, 3, 4])
    S.wait_lg_all()
    S("s_branch L_convE")
    S("L_convB:")
    vmA = list(S.vm)
    S.lg, S.lg_done = save_lg; S.vm, S.vm_done = save_vm
    conv_wave(S, [5, 6, 7], [0, 1], [(0, 0, 5), (1, 0, 6), (1, 1, 4), (2, 0, 7), (2, 1, 5)])
    early_h(S)
    if OPT.ylate: conv_cvt(S, [5, 6, 7])
    else:
        conv_store(S, [5, 6, 7])
        S(f"s_mov_b32 s{sB}, {OOB}")
        for _ in range(2):
            S.vmem(f"buffer_store_dwordx4 {vr(CACC,4)}, v33, {SWS}, s{sB} offen sc1", "yst")
    S.wait_lg_all()
    assert len(S.vm) == len(vmA)
    S("L_convE:")

BS = (160, 168, 176)
g1.XT = 184; g1.B2R = 248; g1.YR = 192; g1.PR = 208
XT, B2R, YR, PR = 184, 248, 192, 208
def b2_load(S):
    S(f"""
    s_lshr_b32 s{sA}, s{sWave}, 1
    s_lshl_b32 s{sA}, s{sA}, 5
    s_add_u32 s{sA}, s{sA}, s{sC2}
    v_and_b32 v247, 31, v0
    v_add_u32 v247, s{sA}, v247
    v_lshlrev_b32 v247, 1, v247
    """)
    S.vmem(f"global_load_ushort v{B2R}, v247, {sp(sB2)}", "b2")

def h_load2(S, f):
    r = HR + 4*(f % RD)
    if f % 4 == 0:
        emit(S, kc2_ops(f // 4, sE))
        S(f"s_lshl_b32 s{sE}, s{sE}, 12")
        S(f"s_add_u32 s{sE}, s{sE}, s{sH0}")
    S.vmem(f"buffer_load_dwordx4 {vr(r,4)}, v2, {SWS}, s{sE} offen offset:{(f % 4)*1024} sc1", f"h{f}")

def w2_dma2(S, j):
    emit(S, kc2_ops(j, sA))
    S(f"s_lshl_b32 s{sA}, s{sA}, 16")
    S(f"s_add_u32 s{sA}, s{sA}, s{sH0}")
    for q in range(4):
        S(f"s_add_u32 m0, s{sH1}, {slot2x(j) + q*1024}")
        S(f"s_add_u32 s{sB}, s{sA}, {q*8192}")
        S.vmem(f"buffer_load_dwordx4 v189, {SW2}, s{sB} offen lds", f"c{j}")

def g2_read_ops(S, f):
    j, s = divmod(f, 4); st = BS[f % 3]; tag = f"b{f}"; ops = []
    if s == 0:
        ops.append(f"v_add_u32 v26, {slot2x(j)}, v24")
        ops.append(f"v_add_u32 v27, {slot2x(j)}, v25")
    for lc in range(2):
        for h in range(2):
            ops.append(lambda lc=lc, h=h: S.lds(f"ds_read_b64_tr_b16 {vr(st+4*lc+2*h,2)}, v{26+lc} offset:{(16*s+4*h)*128}", tag))
    return ops

def h_check_ops(S, j, out_of_line):
    f0 = 4*j; ns = 4 if j < 10 else 3
    regs = [HR + 4*((f0+k) % RD) + e for k in range(ns) for e in range(4)]
    def body(T):
        o = []
        for k in range(0, len(regs), 4):
            o.append(f"v_bitop3_b32 v34, s{sHT}, v{regs[k]}, v{regs[k+1]} bitop3:0x7e")
            o.append(f"v_bitop3_b32 v35, s{sHT}, v{regs[k+2]}, v{regs[k+3]} bitop3:0x7e")
            o.append("v_or_b32 v33, v34, v35" if k == 0 else "v_or3_b32 v33, v33, v34, v35")
        o += ["v_and_b32 v33, 0x80008000, v33", "v_cmp_ne_u32 vcc, 0, v33"]
        return o
    ops = [lambda: S.wait_vm(f"h{f0+ns-1}")] + body(S)
    ops.append(f"s_cbranch_vccnz L_hr{j}")
    ops.append(f"L_hb{j}:")
    R = out_of_line
    R.append(f"L_hr{j}:")
    R.append(f"    s_mov_b32 s{sRetry}, 0")
    R.append(f"L_hr{j}_again:")
    R += ["    " + x for x in kc2_ops(j, sF)]
    R.append(f"    s_lshl_b32 s{sF}, s{sF}, 12")
    R.append(f"    s_add_u32 s{sF}, s{sF}, s{sH0}")
    for k in range(ns):
        R.append(f"    buffer_load_dwordx4 {vr(HR+4*((f0+k) % RD),4)}, v2, {SWS}, s{sF} offen offset:{k*1024} sc1")
    R.append("    s_waitcnt vmcnt(0)")
    R += ["    " + x for x in body(None)]
    R.append(f"    s_cbranch_vccz L_hb{j}")
    R.append(f"    s_add_u32 s{sRetry}, s{sRetry}, 1")
    R.append(f"    s_cmp_lt_u32 s{sRetry}, 4096")
    R.append(f"    s_cbranch_scc1 L_hr{j}_again")
    R.append(f"    s_branch L_hb{j}")
    return ops

def gemm2_v2(S, ool):
    gemm2_setup(S)
    g1.xtile_load(S)
    S(f"""
    s_lshr_b32 s{sA}, s{sWave}, 1
    s_lshl_b32 s{sA}, s{sA}, 5
    s_add_u32 s{sA}, s{sA}, s{sC2}
    v_and_b32 v28, 31, v0
    v_add_u32 v28, s{sA}, v28
    """)
    S(f"""
    v_lshlrev_b32 v28, 13, v28
    v_lshrrev_b32 v29, 5, v0
    v_lshl_add_u32 v28, v29, 4, v28
    s_and_b32 s{sB}, s{sWave}, 1
    s_lshl_b32 s{sB}, s{sB}, 5
    s_add_u32 s{sB}, s{sB}, s{sR2}
    s_lshl_b32 s{sB}, s{sB}, 2
    s_add_u32 s{sG}, s{sB}, {WS_Y}
    """)
    S.barrier("W0"); stamp(S, 7)
    for f in range(OPT.early, RD): h_load2(S, f)
    emit(S, g2_read_ops(S, 0)); emit(S, g2_read_ops(S, 1))
    emit(S, h_check_ops(S, 0, ool))
    for f in range(43):
        j, s = divmod(f, 4); st = BS[f % 3]
        if s == 2 and j < 10:
            if OPT.wst: stamp(S, 16 + j)
            S.barrier(f"W{j+1}")
        S.wait_lg(f"b{f}")
        fills = []
        if f + 2 < 43: fills += g2_read_ops(S, f + 2)
        after = []
        if f + RD < 43: after.append(lambda f=f: h_load2(S, f + RD))
        if OPT.ylate and OPT.ys0 <= f < OPT.ys0 + 5: after.append(lambda f=f: y_store(S, f - OPT.ys0))
        if f + RD == 43: after.append(lambda: g1.y_loads(S))
        mains = []
        for lc in range(2):
            acc = ACC2 + 16*lc
            c = "0" if f == 0 else vr(acc, 16)
            mains.append(f"v_mfma_f32_32x32x16_bf16 {vr(acc,16)}, {vr(HR+4*(f % RD),4)}, {vr(st+4*lc,4)}, {c}")
        weave(S, mains, fills)
        emit(S, after)
        if s == 3 and j < 10:
            emit(S, h_check_ops(S, j + 1, ool))

def build_C2(ool):
    S = Stream("C")
    S("L_roleC:")
    stamp(S, 0)
    if OPT.ckgen and not OPT.dmafirst:
        param_loads(S, 0)
        stamp(S, 24)
    rot_setup(S)
    dma_setup2(S)
    stamp(S, 10)
    if OPT.ckgen:
        emit(S, dma_chunk_ops(S, 0))
        if OPT.dmafirst: param_loads(S, 0)
        S.vmem(f"buffer_load_dword v3, off, {SWS}, 0 sc1", "nonce")
        b2_load(S)
        stamp(S, 25)
        nxt = 1
        for n, r in enumerate(kgen_atoms(S)):
            if n == 0: stamp(S, 1)
            while nxt < OPT.pre and n == OPT.dpos[nxt-1]:
                emit(S, dma_chunk_ops(S, nxt)); nxt += 1
        assert nxt == OPT.pre
        S.wait_lg_all()
    else:
        for c in range(OPT.pre): emit(S, dma_chunk_ops(S, c))
        S.vmem(f"buffer_load_dword v3, off, {SWS}, 0 sc1", "nonce")
        b2_load(S)
    stamp(S, 11)
    gemm1_v2_pre = None
    if OPT.skipC:
        for c in range(10): S.barrier(f"G{c}"); stamp(S, {0: 2}.get(c, 15 + c))
    else:
        gemm1_v2(S)
    stamp(S, 3)
    if OPT.stop == "G9":
        stamp_flush(S); S("s_branch L_end"); return S
    nonce_setup(S, True)
    g1_epilogue2(S)
    stamp(S, 4)
    S.barrier("CONV")
    stamp(S, 5)
    if OPT.dumpK: dump_lds(S, KC, 2*KCSZ + 0, 0x1000000, 32768); dump_lds(S, UT, 2*UTSZ, 0x1000000 + 21504, 32768)
    conv2(S)
    stamp(S, 6)
    gemm2_v2(S, ool)
    stamp(S, 8)
    final_C(S)
    final_all(S)
    stamp(S, 9)
    stamp_flush(S)
    S(f"s_or_b32 s{sA}, s2, s{sWave}")
    S(f"s_cmp_eq_u32 s{sA}, 0")
    S("s_cbranch_scc0 L_end")
    S(f"v_mov_b32 v33, s{sN}")
    S("s_mov_b64 exec, 1")
    S(f"buffer_store_dword v33, off, {SWS}, 0 sc1")
    S("s_branch L_end")
    return S

def count_since(S, n0): return len(S.L) - n0

def slot2x(j):
    if OPT.slot7:
        if j <= 6: return j*SLOT2
        if j == 7: return ESCR
        if j == 8: return KC
        return (j-9)*SLOT2
    return slot2(j)

def w2_sched(S, items):
    for j in items:
        if j >= 0: w2_dma2(S, j)
        else: S.wait_vm(f"c{-j-1}")

def h_first(S):
    h_first_loads(S)
    stamp(S, 24)
    if not OPT.ckgen:
        param_loads(S)
        code_prefetch(S)
        b1_table(S)
        return
    S(f"""
    s_lshr_b32 s{sCH}, s{sHW}, 1
    s_and_b32 s{sNH}, s{sHW}, 1
    s_add_u32 s{sA}, s{sD0}, s{sCH}
    s_lshl_b32 s{sA}, s{sA}, 1
    v_mov_b32 v34, s{sA}
    """)
    code_prefetch(S)
    stamp(S, 25)
    S.vmem(f"global_load_ushort v167, v34, {sp(sDsk)}", "dsk")
    b1_table(S)

def build_H2(S):
    S("L_roleH:")
    stamp(S, 1)
    if OPT.skipH:
        for c in range(10): S.barrier(f"G{c}"); stamp(S, {0: 2}.get(c, 15 + c))
        stamp(S, 4); stamp_flush(S); S("s_branch L_end"); return S
    rot_setup(S)
    S(f"s_mov_b32 s{sP1}, {P1BUF}")
    kgen_zero(S)
    for _ in p1a(S): pass
    S.wait_lg_all()
    stamp(S, 12)
    S.barrier("G0"); stamp(S, 2)
    def runner(gen):
        state = {"done": False}
        def run(budget):
            n0 = len(S.L)
            while not state["done"] and len(S.L) - n0 < budget:
                try:
                    r = next(gen)
                    if r == "DX": state["done"] = True
                except StopIteration:
                    state["done"] = True
        return run, state
    sch = OPT.hs
    def runner(gen):
        state = {"done": False}
        def run(budget):
            n0 = len(S.L)
            while not state["done"] and len(S.L) - n0 < budget:
                try:
                    r = next(gen)
                    if r == "DX": state["done"] = True
                except StopIteration:
                    state["done"] = True
        return run, state
    if not OPT.ckgen: krun, kst = runner(kgen_atoms(S))
    for c in range(8):
        if c == 0:
            nonce_setup(S); p1b(S); stamp(S, 15)
        if not OPT.ckgen and c < len(OPT.hb): krun(OPT.hb[c])
        if c == sch["comb"]:
            if not OPT.ckgen: assert kst["done"]
            kgen_combine3(S)
        if c == sch["build"]: kgen_build(S); stamp(S, 3)
        if c == sch["xnt"]:
            xnt_addr(S)
            xnt_loads(S)
        if c == sch["zero"]:
            S(f"s_mov_b32 s{sWoff}, {UT + 272*2}")
            ut_zero(S)
            b1_table_write(S)
            w2_setup(S)
        w2_sched(S, sch["w2"].get(c, []))
        S.wait_lg_all()
        if not OPT.wst: stamp(S, 16 + c)
        S.barrier(f"G{c+1}")
    w2_sched(S, sch["w2"].get(8, []))
    S.barrier("G9")
    stamp(S, 4)
    if OPT.stop == "G9":
        stamp_flush(S); S("s_branch L_end"); return S
    w2_sched(S, sch["w2"].get(9, []))
    if sch["build"] == 9: kgen_build(S)
    xnt_finish(S)
    stamp(S, 5)
    S.barrier("CONV")
    w2_sched(S, sch["w2"].get(10, []))
    g1.xtile_load(S)
    stamp(S, 6)
    S.wait_vm("c0")
    S.barrier("W0")
    stamp(S, 7)
    for j in range(10):
        if j == 0:
            if not OPT.slot7: w2_dma2(S, 7)
            w2_dma2(S, 8)
        if j == 2: w2_dma2(S, 9)
        if j == 3: w2_dma2(S, 10)
        S.wait_vm(f"c{j+1}")
        if OPT.wst: stamp(S, 16 + j)
        S.barrier(f"W{j+1}")
    S.barrier("FX")
    final_all(S)
    stamp(S, 9)
    stamp_flush(S)
    S("s_branch L_end")
    return S

def kgen_combine3(S):
    T = Stream("tmp")
    kgen_combine(T)
    L = [x.strip() for x in T.L]
    i0 = [i for i, x in enumerate(L) if x.startswith("; sigma") or x.startswith("v_mov_b32 v39, s")][0]
    cut = [i for i, x in enumerate(L) if x.startswith("s_mov_b64 exec, -1")][0]
    i1 = [i for i, x in enumerate(L) if x.startswith("v_lshlrev_b32 v35, 8, v34")][0]
    if OPT.ckgen:
        S.wait_vm("dsk")
        S("v_lshlrev_b32 v167, 16, v167")
    S(f"""
    s_lshl_b32 s{sA}, s{sCH}, 13
    s_add_u32 s{sA}, s{sA}, {ESCR}
    v_add_u32 v33, s{sA}, v2
    v_mov_b32 v35, s{sA}
    """)
    for t in range(3):
        S(f"ds_read_b128 {vr(DD+4*t,4)}, v33 offset:{t*1024}")
        S(f"ds_read_b128 {vr(DP+4*t,4)}, v33 offset:{4096 + t*1024}")
    S("ds_read_b32 v39, v35 offset:3072")
    S(f"ds_read_b32 v38, v35 offset:{4096 + 3072}")
    S("s_waitcnt lgkmcnt(0)")
    for x in L[i0+1:i1]: S(x)
    S(f"s_cmp_eq_u32 s{sNH}, 0")
    S("s_cbranch_scc0 L_kc2")
    for x in L[i1:cut+1]: S(x)
    S("s_branch L_kc")
    S("L_kc2:")
    for x in L[cut+1:]: S(x)
    S.lg_done = len(S.lg)

def generate2():
    P = Stream("P")
    prologue(P)
    P(f"s_cmp_ge_u32 s{sWave}, 4")
    P("s_cbranch_scc0 L_roleC")
    ool = []
    H = Stream("H")
    stamp(H, 0)
    if not OPT.skipH: h_first(H)
    H("s_branch L_roleH")
    nfirst = len(H.L)
    C = build_C2(ool); build_H2(H)
    assert C.bars == H.bars, (C.bars, H.bars)
    lines = P.L + H.L[:nfirst] + C.L + ool + H.L[nfirst:] + ["L_end:", "    s_endpgm"]
    lines, nn = hazard_pass(lines)
    head = open("cdna_kernels/" + KNAME[:-7] + ".s.ref").read().split("; Override launch")[0]
    txt = head + f"; @launch grid=(256,1,1) block=(512,1,1) lds={LDS_BYTES}\n"
    txt += f""".amdgcn_target "amdgcn-amd-amdhsa--gfx950"
.text
.globl {KNAME}
.p2align 8
.type {KNAME},@function
{KNAME}:
""" + "\n".join(lines) + f"""
.section .rodata,"a"
.p2align 6
.amdhsa_kernel {KNAME}
  .amdhsa_next_free_vgpr 256
  .amdhsa_next_free_sgpr 102
  .amdhsa_accum_offset 256
  .amdhsa_group_segment_fixed_size 0
  .amdhsa_kernarg_size 136
  .amdhsa_user_sgpr_count 2
  .amdhsa_user_sgpr_kernarg_segment_ptr 1
  .amdhsa_system_sgpr_workgroup_id_x 1
.end_amdhsa_kernel
"""
    return txt, nn

if __name__ == "__main__":
    out = sys.argv[1] if len(sys.argv) > 1 else "k.s"
    if "stamps" in sys.argv: OPT.stamps = True
    if "dumpK" in sys.argv: OPT.dumpK = True
    if "dbgst" in sys.argv: OPT.dbgst = True; OPT.stamps = True
    OPT.norot = "norot" in sys.argv; OPT.norot1 = "norot1" in sys.argv
    OPT.budget = 110
    OPT.pre = 2
    OPT.allwrite = True
    OPT.fine = "fine" in sys.argv
    OPT.ckgen = "hkgen" not in sys.argv
    OPT.dmafirst = "dmafirst" in sys.argv
    OPT.k3last = "k3any" not in sys.argv
    OPT.rot2j = "rot2j" in sys.argv
    OPT.fakej3 = "fakej3" in sys.argv
    OPT.wst = "wst" in sys.argv
    OPT.early = 12
    OPT.ylate = "ynow" not in sys.argv
    OPT.ys0 = 1
    OPT.slot7 = "noslot7" not in sys.argv
    w2s = {6: [0], 7: [1], 10: [2, 3, -3, 4, -4, 5, -5, 6] + ([-6, 7] if OPT.slot7 else [])}
    if OPT.ckgen:
        OPT.pre = 4
        OPT.dpos = [1, 5, 9]
        OPT.hs = dict(comb=1, build=2, xnt=6, zero=4, w2=w2s)
    else:
        OPT.pre = 2
        OPT.hb = [30, 85, 85, 85, 85, 10**6]
        OPT.hs = dict(comb=6, build=9, xnt=7, zero=5, w2=w2s)
    for a in sys.argv:
        if a.startswith("c2rot="): OPT.c2rot = int(a[6:])
        if a.startswith("ys0="): OPT.ys0 = int(a[4:])
        if a.startswith("early="): OPT.early = int(a[6:])
        if a.startswith("pre="): OPT.pre = int(a[4:])
        if a.startswith("dpos="): OPT.dpos = [int(x) for x in a[5:].split(",")]
        if a.startswith("hs="): OPT.hs.update(eval(a[3:]))
    OPT.skipC = "skipC" in sys.argv; OPT.skipH = "skipH" in sys.argv
    if "stopG9" in sys.argv: OPT.stop = "G9"
    txt, nn = generate2()
    open(out, "w").write(txt)
    print("written", out, "lines", txt.count("\n"), "nops inserted", nn)
```
